```python
import torch

def _softmax(x, axis=-1):
    return torch.softmax(x, dim=axis)
def _gelu(x):
    return torch.nn.functional.gelu(x, approximate="tanh")
def _silu(x):
    return torch.nn.functional.silu(x)
def _sigmoid(x):
    return torch.sigmoid(x)
def _layernorm(x, axis=-1, eps=1e-5):
    m = x.mean(dim=axis, keepdim=True)
    v = x.var(dim=axis, keepdim=True, unbiased=False)
    return (x - m) / torch.sqrt(v + eps)
def _scatter_add(tgt, idx, src, axis=0):
    return tgt.clone().index_add_(axis, idx, src)
def _segment_sum(src, seg, n):
    out = torch.zeros((n,) + src.shape[1:], dtype=src.dtype)
    return out.index_add_(0, seg, src)
def _pad(x, pw):
    flat = tuple(v for pair in reversed(pw) for v in pair)
    return torch.nn.functional.pad(x, flat)

kernel_name = 'concat_heads__ssm_conv_s5__compressed_kv_cla__prompt'

def setup_inputs():

    _w = (lambda a: (lambda t: t.to(torch.bfloat16) if t.is_floating_point() else t)(torch.as_tensor(a)))
    def _A_setup():
        B, S, D = 1, 2048, 640
        P = D
        Lambda_re = -0.5 * (lambda _x: torch.exp(torch.as_tensor(_x)))((lambda *s: torch.randn(*s, dtype=torch.bfloat16) * 0.2)(P))
        Lambda_im = (lambda *s: torch.randn(*s, dtype=torch.bfloat16) * 0.4)(P) * 1.0
        B_re = (lambda *s: torch.randn(*s, dtype=torch.bfloat16) * 0.2)(P, D) * (D ** -0.5)
        B_im = (lambda *s: torch.randn(*s, dtype=torch.bfloat16) * 0.2)(P, D) * (D ** -0.5)
        C_re = (lambda *s: torch.randn(*s, dtype=torch.bfloat16) * 0.2)(D, P) * (P ** -0.5)
        C_im = (lambda *s: torch.randn(*s, dtype=torch.bfloat16) * 0.2)(D, P) * (P ** -0.5)
        log_dt = (lambda *s: torch.randn(*s, dtype=torch.bfloat16) * 0.2)(P) * 0.3 - 2.0
        Dskip = (lambda *s: torch.randn(*s, dtype=torch.bfloat16) * 0.05)(D)
        return {
            "x": _w((lambda *s: torch.randn(*s, dtype=torch.bfloat16) * 0.05)(B, S, D)),
            "Lambda_re": _w(Lambda_re),
            "Lambda_im": _w(Lambda_im),
            "B_re": _w(B_re),
            "B_im": _w(B_im),
            "C_re": _w(C_re),
            "C_im": _w(C_im),
            "log_dt": _w(log_dt),
            "Dskip": _w(Dskip),
        }
    _A_in = _A_setup()

    def _B_setup():
        B, H, Sq, Sk, D, M = 1, 32, 2048, 2048, 128, 640
        Dc = 4 * D
        return {
            "x": _w((lambda *s: torch.randn(*s, dtype=torch.bfloat16) * 0.8)(B, Sq, M)),
            "c_kv": _w((lambda *s: torch.randn(*s, dtype=torch.bfloat16) * 0.2)(B, Sk, Dc)),
            "w_q": _w((lambda *s: torch.randn(*s, dtype=torch.bfloat16) * 3.2)(M, H, D) * (M ** -0.5)),
            "w_uk": _w((lambda *s: torch.randn(*s, dtype=torch.bfloat16) * 3.2)(Dc, H, D) * (Dc ** -0.5)),
            "w_uv": _w((lambda *s: torch.randn(*s, dtype=torch.bfloat16) * 0.2)(Dc, H, D) * (Dc ** -0.5)),
            "w_o": _w((lambda *s: torch.randn(*s, dtype=torch.bfloat16) * 0.2)(H, D, M) * ((H * D) ** -0.5)),
        }
    _B_in = _B_setup()

    return {
        "A_x": _A_in["x"],
        "A_Lambda_re": _A_in["Lambda_re"],
        "A_Lambda_im": _A_in["Lambda_im"],
        "A_B_re": _A_in["B_re"],
        "A_B_im": _A_in["B_im"],
        "A_C_re": _A_in["C_re"],
        "A_C_im": _A_in["C_im"],
        "A_log_dt": _A_in["log_dt"],
        "A_Dskip": _A_in["Dskip"],
        "B_x": _B_in["x"],
        "B_c_kv": _B_in["c_kv"],
        "B_w_q": _B_in["w_q"],
        "B_w_uk": _B_in["w_uk"],
        "B_w_uv": _B_in["w_uv"],
        "B_w_o": _B_in["w_o"],
    }

def reference(A_x, A_Lambda_re, A_Lambda_im, A_B_re, A_B_im, A_C_re, A_C_im, A_log_dt, A_Dskip, B_x, B_c_kv, B_w_q, B_w_uk, B_w_uv, B_w_o):
    def _A_ref(x, Lambda_re, Lambda_im, B_re, B_im, C_re, C_im, log_dt, Dskip):
        Bsz, L, H = x.shape
        Lam = Lambda_re + 1j * Lambda_im
        Bmat = B_re + 1j * B_im
        Cmat = C_re + 1j * C_im
        dt = torch.exp(log_dt)
        Lam_bar = torch.exp(dt * Lam)
        B_bar = ((Lam_bar - 1.0) / Lam)[:, None] * Bmat
        Bu = torch.einsum("bld,pd->blp", x + 0j, B_bar)
        h = torch.zeros_like(Bu[:, 0, :])
        hs = []
        for t in range(L):
            h = Lam_bar[None, :] * h + Bu[:, t, :]
            hs.append(h)
        hseq = torch.stack(hs, 1)
        y = 2.0 * torch.einsum("blp,dp->bld", hseq, Cmat).real + x * Dskip[None, None, :]
        return y

    def _B_ref(x, c_kv, w_q, w_uk, w_uv, w_o):
        B, Sq, M = x.shape[0], x.shape[1], x.shape[2]
        Sk = c_kv.shape[1]
        H, D = w_q.shape[1], w_q.shape[2]
        q = torch.einsum("bqm,mhd->bhqd", x, w_q)
        k = torch.einsum("bkc,chd->bhkd", c_kv, w_uk)
        v = torch.einsum("bkc,chd->bhkd", c_kv, w_uv)
        scores = torch.einsum("bhqd,bhkd->bhqk", q, k) * (D ** -0.5)
        off = Sk - Sq
        qi = torch.arange(Sq)[:, None]
        kj = torch.arange(Sk)[None, :]
        cmask = kj <= (qi + off)
        scores = torch.where(cmask[None, None], scores, -1e9)
        p = _softmax(scores, axis=-1)
        ctx = torch.einsum("bhqk,bhkd->bhqd", p, v)
        return torch.einsum("bhqd,hdm->bqm", ctx, w_o)

    a = _A_ref(A_x, A_Lambda_re, A_Lambda_im, A_B_re, A_B_im, A_C_re, A_C_im, A_log_dt, A_Dskip)
    b = _B_ref(B_x, B_c_kv, B_w_q, B_w_uk, B_w_uv, B_w_o)
    return torch.concatenate([a, b], axis=-1)
```

```python
import re

HEADER = open('concat_heads__ssm_conv_s5__compressed_kv_cla__prompt.s.ref').read().split('; @launch')[0]

TRANS = ('v_exp_f32', 'v_log_f32', 'v_rcp_f32', 'v_rsq_f32', 'v_sqrt_f32', 'v_sin_f32', 'v_cos_f32', 'v_rcp_iflag_f32')

_reg_re = re.compile(r'^(-|\|)?(abs\()?([vsa])(\d+|\[(\d+):(\d+)\])\)?\|?$')

def parse_reg(tok):
    tok = tok.strip()
    if tok in ('vcc',):
        return [('s', 106), ('s', 107)]
    if tok == 'vcc_lo':
        return [('s', 106)]
    if tok == 'vcc_hi':
        return [('s', 107)]
    if tok == 'exec':
        return [('s', 126), ('s', 127)]
    if tok == 'm0':
        return [('s', 124)]
    m = _reg_re.match(tok)
    if not m:
        return []
    k = m.group(3)
    if m.group(5) is not None:
        return [(k, i) for i in range(int(m.group(5)), int(m.group(6)) + 1)]
    return [(k, int(m.group(4)))]

class Ins:
    __slots__ = ('text', 'op', 'kind', 'dst', 'src', 'srcC', 'srcAB', 'passes', 'lds', 'wide', 'states', 'label', 'target', 'dpp', 'sdata')
    def __init__(self, text):
        self.text = text
        t = text.split(';')[0].strip()
        self.label = None; self.target = None
        self.dst = []; self.src = []; self.srcC = []; self.srcAB = []
        self.passes = 0; self.lds = False; self.wide = False; self.states = 1; self.dpp = False; self.sdata = []
        if t.endswith(':'):
            self.label = t[:-1]; self.kind = 'label'; self.op = ''; self.states = 0
            return
        if not t or t.startswith('.'):
            self.kind = 'dir'; self.op = ''; self.states = 0
            return
        parts = t.split(None, 1)
        op = parts[0]; self.op = op
        rest = parts[1] if len(parts) > 1 else ''
        ops = []; cur = ''; depth = 0
        for ch in rest:
            if ch in '[(':
                depth += 1
            if ch in '])':
                depth -= 1
            if ch == ',' and depth == 0:
                ops.append(cur.strip()); cur = ''
            else:
                cur += ch
        if cur.strip():
            ops.append(cur.strip())
        mods = []
        if ops:
            lp = ops[-1].split()
            if lp:
                ops[-1] = lp[0]; mods = lp[1:]
        R = [parse_reg(o) for o in ops]
        flat = lambda L: [r for x in L for r in x]
        if op.startswith('v_mfma'):
            self.kind = 'mfma'
            self.dst = R[0]; self.srcAB = R[1] + R[2]; self.srcC = R[3]; self.src = self.srcAB + self.srcC
            self.passes = 8 if '32x32' in op else 4
        elif op.startswith('v_'):
            self.kind = 'valu'
            if any(m.startswith(('row_', 'quad_perm', 'wave_', 'row_bcast')) for m in mods) or '_dpp' in op:
                self.dpp = True
            if op.startswith('v_permlane') and 'swap' in op:
                self.dst = R[0] + R[1]; self.src = R[0] + R[1]; self.dpp = True
            elif op.startswith('v_cmpx'):
                self.dst = R[0] + [('s', 126), ('s', 127)]; self.src = flat(R[1:])
            elif op.startswith(('v_add_co', 'v_sub_co', 'v_addc_co', 'v_subb_co', 'v_subrev_co', 'v_div_scale', 'v_mad_u64')):
                self.dst = R[0] + R[1]; self.src = flat(R[2:])
            elif op == 'v_nop':
                pass
            else:
                self.dst = R[0]; self.src = flat(R[1:])
                if op.startswith(('v_fmac', 'v_pk_fmac', 'v_writelane', 'v_dot2c')) or self.dpp:
                    self.src = self.src + R[0]
                if op.startswith('v_cndmask') and len(ops) == 3:
                    self.src += [('s', 106), ('s', 107)]
        elif op.startswith('s_'):
            self.kind = 'salu'
            if op == 's_nop':
                self.states = int(ops[0], 0) + 1
            elif op.startswith(('s_branch', 's_cbranch')):
                self.target = ops[0]; self.kind = 'branch'
            elif op.startswith(('s_cmp', 's_waitcnt', 's_barrier', 's_endpgm', 's_setprio', 's_bitcmp', 's_sleep')):
                self.src = flat(R)
            elif op.startswith('s_load') or op.startswith('s_buffer_load'):
                self.kind = 'smem'; self.dst = R[0]; self.src = flat(R[1:])
            else:
                self.dst = R[0] if R else []; self.src = flat(R[1:])
                if 'saveexec' in op:
                    self.dst = self.dst + [('s', 126), ('s', 127)]
        elif op.startswith('ds_'):
            self.kind = 'ds'
            if op.startswith(('ds_read', 'ds_bpermute', 'ds_permute', 'ds_swizzle')) or 'rtn' in op:
                self.dst = R[0]; self.src = flat(R[1:])
            else:
                self.src = flat(R)
        elif op.startswith(('buffer_', 'global_')):
            self.kind = 'vmem'
            self.lds = 'lds' in mods or '_lds_' in op
            if 'load' in op and not self.lds:
                self.dst = R[0]; self.src = flat(R[1:])
            elif 'atomic' in op and 'sc0' in mods:
                if op.startswith('buffer_'):
                    self.dst = R[0]; self.src = flat(R)
                else:
                    self.dst = R[0]; self.src = flat(R[1:])
            else:
                self.src = flat(R)
            if self.lds:
                self.src = self.src + [('s', 124)]
            if 'store' in op and ('x3' in op or 'x4' in op):
                self.wide = True
                self.sdata = R[0] if op.startswith('buffer_') else R[1]
        else:
            raise ValueError('unknown instruction: ' + text)

def need(p, c):
    n = 0
    pd = set(p.dst)
    if p.kind == 'valu':
        vd = {r for r in pd if r[0] in 'va'}
        sd = {r for r in pd if r[0] == 's'}
        if c.kind == 'mfma' and vd & set(c.src):
            n = max(n, 2)
        if c.kind == 'valu':
            if p.op in TRANS and c.op not in TRANS and vd & set(c.src):
                n = max(n, 1)
            if c.op.startswith(('v_readfirstlane', 'v_readlane')) and vd & set(c.src):
                n = max(n, 1)
            if c.dpp and vd & set(c.src):
                n = max(n, 2)
            if sd & set(c.src):
                n = max(n, 4 if c.op.startswith(('v_readlane', 'v_writelane', 'v_div_fmas')) else 2)
            if ('s', 126) in sd:
                if c.dpp: n = max(n, 5)
                if c.op.startswith(('v_readlane', 'v_readfirstlane', 'v_writelane')): n = max(n, 4)
        if c.kind == 'mfma' and ('s', 126) in sd:
            n = max(n, 4)
        if c.kind == 'vmem' and sd & set(c.src):
            n = max(n, 5)
        if c.kind in ('salu', 'branch', 'smem') and (sd & set(c.src) or (c.kind == 'branch' and 'vcc' in c.op and ('s', 106) in sd)):
            n = max(n, 1 if c.kind != 'branch' else 5)
    if p.kind == 'mfma':
        big = 12 if p.passes == 8 else 8
        ovl = 10 if p.passes == 8 else 6
        if c.kind == 'mfma':
            if pd & set(c.srcAB):
                n = max(n, big)
            if pd & set(c.srcC):
                if not (c.srcC == p.dst and c.passes == p.passes):
                    n = max(n, ovl)
            elif pd & set(c.dst):
                n = max(n, ovl)
        elif c.kind in ('valu', 'vmem', 'ds'):
            if pd & (set(c.src) | set(c.dst)):
                n = max(n, big)
        if c.kind == 'valu' and set(p.srcC) & set(c.dst):
            n = max(n, 7 if p.passes == 8 else 3)
        if c.kind in ('ds', 'vmem') and set(p.srcC) & set(c.dst):
            n = max(n, 7 if p.passes == 8 else 3)
    if p.kind == 'salu' and ('s', 124) in pd:
        if c.kind == 'vmem' and c.lds:
            n = max(n, 1)
        if c.kind == 'ds' and 'addtid' in c.op:
            n = max(n, 1)
    if p.kind == 'vmem' and p.wide and set(p.sdata) & set(c.dst):
        n = max(n, 2 if c.kind in ('valu', 'mfma') else 1)
    return n

MAXW = 12

class Asm:
    def __init__(self):
        self.lines = []
    def __call__(self, s):
        for l in s.split('\n'):
            if l.strip():
                self.lines.append(l.strip())
    def label(self, name):
        self.lines.append(name + ':')
    def extend(self, L):
        for l in L:
            self(l)

def fix_hazards(lines):
    ins = [Ins(l) for l in lines]
    n = len(ins)
    prev = {}
    for i in range(n):
        prev[id(ins[i])] = ins[i - 1] if i > 0 else None
    labels = {x.label: x for x in ins if x.label}
    preds = {}
    for x in ins:
        if x.target is not None:
            assert x.target in labels, 'unknown label ' + x.target
            preds.setdefault(x.target, []).append(x)
    before = {}
    total = 0
    for c in ins:
        if c.states == 0 or c.op == 's_nop':
            continue
        worst = 0
        stack = [(prev[id(c)], 0, False)]
        seen = set()
        while stack:
            p, dist, jumped = stack.pop()
            while p is not None and dist < MAXW:
                key = (id(p), dist)
                if key in seen:
                    break
                seen.add(key)
                if p.label:
                    for b in preds.get(p.label, []):
                        stack.append((b, dist, True))
                    p = prev[id(p)]; jumped = False
                    continue
                if p.kind == 'dir':
                    p = prev[id(p)]; jumped = False
                    continue
                if p.op == 's_endpgm' or (p.op == 's_branch' and not jumped):
                    break
                k = need(p, c)
                if k > dist:
                    worst = max(worst, k - dist)
                dist += p.states
                p = prev[id(p)]; jumped = False
        if worst > 0:
            nop = Ins('s_nop %d' % (worst - 1))
            prev[id(nop)] = prev[id(c)]
            prev[id(c)] = nop
            before[id(c)] = nop
            total += 1
    out = []
    for c in ins:
        if id(c) in before:
            out.append(before[id(c)].text)
        out.append(c.text)
    return out, total

def build_file(kernels):
    out = HEADER
    for k in kernels:
        out += '; @launch kernel=%s grid=(%d,1,1) block=(%d,1,1) lds=%d\n' % (k['name'], k['grid'], k['block'], k['lds'])
    out += '.amdgcn_target "amdgcn-amd-amdhsa--gfx950"\n.text\n'
    done = set()
    for k in kernels:
        if k['name'] in done:
            continue
        done.add(k['name'])
        lines, nn = fix_hazards(k['asm'].lines)
        out += '.globl %s\n.p2align 8\n.type %s,@function\n%s:\n' % (k['name'], k['name'], k['name'])
        for l in lines:
            out += ('' if l.endswith(':') else '  ') + l + '\n'
    out += '.section .rodata,"a"\n'
    done = set()
    for k in kernels:
        if k['name'] in done:
            continue
        done.add(k['name'])
        out += '.p2align 6\n.amdhsa_kernel %s\n' % k['name']
        out += '  .amdhsa_next_free_vgpr %d\n  .amdhsa_next_free_sgpr %d\n  .amdhsa_accum_offset %d\n' % (k['nvgpr'], k.get('nsgpr', 102), k['accum'])
        out += '  .amdhsa_group_segment_fixed_size 0\n  .amdhsa_kernarg_size 144\n  .amdhsa_user_sgpr_count 2\n  .amdhsa_user_sgpr_kernarg_segment_ptr 1\n  .amdhsa_system_sgpr_workgroup_id_x 1\n.end_amdhsa_kernel\n'
    return out
```

```python
from asmlib import *

WS_KV   = 0
WS_UT   = 32 << 20
WS_CC   = 38 << 20
WS_HT   = 40 << 20
WS_CTX  = 48 << 20
WS_PART = 64 << 20
WS_FLAG = WS_PART + (8 << 20)
WS_TS   = 200 << 20

KA = dict(A_x=0, Lre=8, Lim=16, Bre=24, Bim=32, Cre=40, Cim=48, logdt=56, Dskip=64, B_x=72, ckv=80, wq=88, wuk=96, wuv=104, wo=112, out=120, dbg=128, ws=136)

def vr(b, n):
    return 'v[%d:%d]' % (b, b + n - 1) if n > 1 else 'v%d' % b
def sr(b, n):
    return 's[%d:%d]' % (b, b + n - 1) if n > 1 else 's%d' % b

class VM:
    def __init__(self):
        self.n = 0
        self.done = 0
    def issue(self):
        self.n += 1
        return self.n
    def wait_for(self, a, tag):
        if tag <= self.done:
            return
        k = self.n - tag
        assert k <= 63
        a('s_waitcnt vmcnt(%d)' % k)
        self.done = tag

def mk_srd(a, s, ptr, size, off=0):
    if off:
        a('s_add_u32 s%d, s%d, 0x%x' % (s, ptr, off)); a('s_addc_u32 s%d, s%d, 0' % (s + 1, ptr + 1))
        a('s_and_b32 s%d, s%d, 0xffff' % (s + 1, s + 1))
    else:
        a('s_mov_b32 s%d, s%d' % (s, ptr)); a('s_and_b32 s%d, s%d, 0xffff' % (s + 1, ptr + 1))
    a('s_mov_b32 s%d, 0x%x' % (s + 2, size)); a('s_mov_b32 s%d, 0x00020000' % (s + 3))

def interleave(main, side, start=0):
    out = []
    n = len(main)
    if n == 0:
        return list(side)
    slots = n - start
    k = 0
    for i, m in enumerate(main):
        out.append(m)
        if i >= start:
            upto = (len(side) * (i - start + 1) + slots - 1) // slots
            while k < upto:
                out.append(side[k]); k += 1
    out += side[k:]
    return out

def stamp(a, sreg):
    a('s_memrealtime %s' % sr(sreg, 2))

def stamp_store(a, kidx, s0, s1, tmp_s, tmp_v, lbl):
    a('s_load_dwordx2 %s, s[0:1], 136' % sr(tmp_s, 2))
    a('s_waitcnt lgkmcnt(0)')
    mk_srd(a, tmp_s, tmp_s, 8192, WS_TS + kidx * 8192)
    for i, s in enumerate((s0, s0 + 1, s1, s1 + 1)):
        a('v_mov_b32 v%d, s%d' % (tmp_v + i, s))
    a('s_lshl_b32 s%d, s2, 4' % (tmp_s + 4))
    a('v_cmp_eq_u32 vcc, 0, v0')
    a('s_and_saveexec_b64 %s, vcc' % sr(tmp_s + 6, 2))
    a('s_cbranch_execz %s' % lbl)
    a('v_mov_b32 v%d, 0' % (tmp_v + 4))
    a('buffer_store_dwordx4 %s, v%d, %s, s%d offen' % (vr(tmp_v, 4), tmp_v + 4, sr(tmp_s, 4), tmp_s + 4))
    a.label(lbl)
    a('s_mov_b64 exec, %s' % sr(tmp_s + 6, 2))

class LG:
    def __init__(self):
        self.n = 0; self.done = 0
    def issue(self):
        self.n += 1
        return self.n
    def wait_for(self, a, tag):
        if tag <= self.done:
            return
        k = min(self.n - tag, 15)
        a('s_waitcnt lgkmcnt(%d)' % k)
        self.done = self.n - k

LOG2E = 1.4426950408889634
INV2PI = 0.15915494309189535
import struct
def f32(x):
    return '0x%08x' % struct.unpack('<I', struct.pack('<f', x))[0]

class Sched:
    def __init__(self):
        self.m = []; self.pre = {}; self.post = {}
    def mfma(self, text):
        self.m.append(text); return len(self.m) - 1
    def add_pre(self, i, x):
        self.pre.setdefault(i, []).append(x)
    def add_post(self, i, x):
        self.post.setdefault(i, []).append(x)
    def spread(self, items, i0, i1):
        n = i1 - i0
        for k, it in enumerate(items):
            self.add_post(i0 + (k * n) // len(items), it)
    def emit(self, a, i0, i1):
        for i in range(i0, i1):
            for x in self.pre.get(i, []):
                x(a) if callable(x) else a(x)
            a(self.m[i])
            for x in self.post.get(i, []):
                x(a) if callable(x) else a(x)

def ts(a, idx, vreg=0, s=100):
    a('s_memtime %s' % sr(s, 2)); a('s_waitcnt lgkmcnt(0)'); a('v_writelane_b32 v%d, s%d, %d' % (vreg, s, idx))

def ts_store(a, kidx, swave, tmp_s, tmp_v, lbl, vreg=0, wave=0):
    a('s_cmp_lg_u32 s%d, %d' % (swave, wave)); a('s_cbranch_scc1 %s' % lbl)
    a('s_load_dwordx2 %s, s[0:1], 136' % sr(tmp_s, 2)); a('s_waitcnt lgkmcnt(0)')
    mk_srd(a, tmp_s, tmp_s, 65536, WS_TS + (1 << 20) + kidx * 65536)
    a('v_mbcnt_lo_u32_b32 v%d, -1, 0' % tmp_v); a('v_mbcnt_hi_u32_b32 v%d, -1, v%d' % (tmp_v, tmp_v)); a('v_lshlrev_b32 v%d, 2, v%d' % (tmp_v, tmp_v))
    a('s_lshl_b32 s%d, s2, 8' % (tmp_s + 4))
    a('buffer_store_dword v%d, v%d, %s, s%d offen' % (vreg, tmp_v, sr(tmp_s, 4), tmp_s + 4))
    a.label(lbl)

def tsr(a, idx, vreg=0, s=100):
    a('s_memrealtime %s' % sr(s, 2)); a('s_waitcnt lgkmcnt(0)'); a('v_writelane_b32 v%d, s%d, %d' % (vreg, s, idx))

def delay_kernel(iters=400):
    a = Asm()
    a('s_cmp_ge_u32 s2, 256'); a('s_cbranch_scc1 delay_end')
    a('s_mov_b32 s20, %d' % iters)
    for i in range(8, 32): a('v_mov_b32 v%d, 0' % i)
    a.label('delay_spin')
    for i in range(8):
        a('v_mfma_f32_32x32x16_bf16 v[16:31], v[8:11], v[12:15], v[16:31]')
    a('s_sub_u32 s20, s20, 1'); a('s_cmp_lg_u32 s20, 0'); a('s_cbranch_scc1 delay_spin')
    a.label('delay_end')
    a('s_endpgm')
    return dict(name='delay_kernel', grid=256, block=256, lds=0, asm=a, nvgpr=32, accum=32)
```

```python
from common import *
MF = 'v_mfma_f32_16x16x32_bf16 %s, %s, %s, %s'

def lam_params(a, T, vlre, vlim, vldt):
    a('v_mul_f32 v%d, %s, v%d' % (vldt, f32(LOG2E), vldt)); a('v_exp_f32 v%d, v%d' % (vldt, vldt))
    a('v_cvt_pk_bf16_f32 v%d, v%d, v%d' % (vldt, vldt, vldt)); a('v_lshlrev_b32 v%d, 16, v%d' % (vldt, vldt))
    a('v_mul_f32 v%d, v%d, v%d' % (T, vldt, vlre)); a('v_mul_f32 v%d, v%d, v%d' % (T + 1, vldt, vlim))
    a('v_mul_f32 v%d, %s, v%d' % (T, f32(LOG2E), T)); a('v_mul_f32 v%d, %s, v%d' % (T + 1, f32(INV2PI), T + 1))

def gen_k1(dbg=0):
    a = Asm(); N = 'k1_kernel'
    vm = VM(); lg = LG()
    ACT, WR = 0, 98304
    USLOT = [0, 32768, 65536, 98304, 131072]
    vDA = 2; vW = 6; vT = 8; vAr = 16; vSt = 18; vW2 = 19; vTb = 21; UAD = 22
    WB = 32; ACC = 64; AF = 128
    sCKV, sWK, sWV, sKVO, sUS, sUO = 4, 8, 12, 16, 20, 24
    a('s_cmp_ge_u32 s2, 256'); a('s_cbranch_scc1 k1_end')
    a('s_load_dwordx8 s[52:59], s[0:1], 80')
    a('s_load_dwordx16 s[36:51], s[0:1], 0')
    a('s_load_dwordx2 s[60:61], s[0:1], 136')
    a('v_lshrrev_b32 v2, 6, v0'); a('v_readfirstlane_b32 s3, v2')
    a('v_and_b32 v1, 63, v0')
    a('s_and_b32 s28, s2, 7'); a('s_lshr_b32 s29, s2, 3')
    a('s_and_b32 s30, s29, 3'); a('s_lshl_b32 s31, s28, 2'); a('s_add_u32 s30, s30, s31')
    a('s_lshr_b32 s31, s29, 2')
    t = 32
    a('v_lshrrev_b32 v34, 4, v1')
    a('s_lshl_b32 s33, s3, 3'); a('v_add_u32 v37, s33, v34'); a('v_lshlrev_b32 v37, 13, v37')
    a('s_and_b32 s33, s3, 1'); a('s_lshl_b32 s33, s33, 3'); a('v_lshl_add_u32 v39, v34, 1, s33')
    a('v_and_b32 v38, 15, v1'); a('v_xor_b32 v38, v38, v39')
    a('v_lshl_add_u32 v37, v38, 4, v37'); a('s_lshl_b32 s33, s30, 8'); a('v_add_u32 v%d, s33, v37' % vW)
    a('s_lshl_b32 s32, s31, 8'); a('s_lshl_b32 s33, s3, 5'); a('s_add_u32 s32, s32, s33')
    a('v_lshrrev_b32 v32, 3, v1'); a('v_add_u32 v33, s32, v32'); a('v_lshlrev_b32 v33, 10, v33')
    a('v_and_b32 v35, 7, v1'); a('v_xor_b32 v35, v34, v35'); a('v_xor_b32 v36, 4, v35')
    for i in range(4):
        a('v_lshl_add_u32 v%d, v%d, 4, v33' % (vDA + i, 35 + (i & 1)))
        if i: a('v_add_u32 v%d, 0x%x, v%d' % (vDA + i, i * 8192, vDA + i))
    a('s_lshl_b32 s35, s3, 11')
    a('s_mul_i32 s34, s3, 12288')
    a('s_waitcnt lgkmcnt(0)')
    if dbg: ts(a, 0); tsr(a, 60)
    mk_srd(a, sCKV, 52, 2048 * 1024); mk_srd(a, sWK, 56, 512 * 8192); mk_srd(a, sWV, 58, 512 * 8192)
    tagW = {}; tagA = {}; tagU = {}
    def dmaW(s):
        def f(a):
            for i in range(2):
                a('s_add_u32 m0, s35, 0x%x' % (WR + (s % 4) * 16384 + i * 1024))
                if s < 8:
                    a('s_mov_b32 s32, 0x%x' % (s * 524288 + i * 32768))
                    a('buffer_load_dwordx4 v%d, %s, s32 offen lds' % (vW, sr(sWK, 4)))
                else:
                    a('s_mov_b32 s32, 0x%x' % ((s & 3) * 128 * 8192 + ((s - 8) >> 2) * 128))
                    a('buffer_load_dwordx4 v%d, %s, s32 offen lds' % (vW2 + i, sr(sWV, 4)))
                tagW[s] = vm.issue()
        return f
    def dmaA(s, i):
        def f(a):
            a('s_add_u32 m0, s34, 0x%x' % (ACT + (s % 3) * 4096 + i * 1024))
            a('s_movk_i32 s33, 0x%x' % (s * 128))
            a('buffer_load_dwordx4 v%d, %s, s33 offen lds' % (vDA + i, sr(sCKV, 4)))
            tagA[s] = vm.issue()
        return f
    def dmaU(n, i):
        def f(a):
            a('s_add_u32 m0, s88, 0x%x' % (USLOT[n % 5] + i * 1024))
            a('s_movk_i32 s33, 0x%x' % (n * 128))
            a('buffer_load_dwordx4 v%d, %s, s33 offen lds' % (vDA + i, sr(sUS, 4)))
            tagU[n] = vm.issue()
        return f
    dmaW(0)(a)
    for i in range(4): dmaA(0, i)(a)
    C0 = 64
    a('s_mov_b32 s64, 1000')
    a('s_cmp_lt_u32 s29, 20'); a('s_cbranch_scc1 k1_nocc1')
    a('s_sub_u32 s64, s29, 20'); a('s_lshl_b32 s64, s64, 3'); a('s_add_u32 s64, s64, s28'); a('s_mul_i32 s65, s3, 96'); a('s_add_u32 s64, s64, s65')
    a('s_cmp_ge_u32 s64, 400'); a('s_cbranch_scc1 k1_nocc1')
    a('s_mul_i32 s65, s64, 6554'); a('s_lshr_b32 s65, s65, 16')
    a('s_mul_i32 s66, s65, 10'); a('s_sub_u32 s66, s64, s66')
    mk_srd(a, 68, 38, 1280); mk_srd(a, 72, 40, 1280); mk_srd(a, 76, 50, 1280)
    mk_srd(a, 80, 46, 640 * 1280); mk_srd(a, 84, 48, 640 * 1280)
    a('v_lshlrev_b32 v40, 1, v1'); a('s_lshl_b32 s67, s66, 7')
    for p, srd in enumerate((68, 72, 76)):
        a('buffer_load_ushort v%d, v40, %s, s67 offen' % (C0 + p, sr(srd, 4)))
    a('v_and_b32 v41, 15, v1'); a('s_lshl_b32 s33, s65, 4'); a('v_add_u32 v41, s33, v41'); a('v_mul_u32_u24 v41, 1280, v41'); a('v_lshl_add_u32 v41, v34, 5, v41')
    for p, srd in enumerate((80, 84)):
        a('buffer_load_dwordx4 %s, v41, %s, s67 offen' % (vr(C0 + 8 + 8 * p, 4), sr(srd, 4)))
        a('buffer_load_dwordx4 %s, v41, %s, s67 offen offset:16' % (vr(C0 + 12 + 8 * p, 4), sr(srd, 4)))
    a.label('k1_nocc1')
    nbefore = vm.n
    for s in range(1, 3):
        dmaW(s)(a)
        for i in range(4): dmaA(s, i)(a)
    dmaW(3)(a)
    a('v_bfe_u32 v32, v1, 2, 2')
    a('v_lshl_add_u32 v33, v34, 3, v32')
    a('v_and_b32 v35, 3, v1'); a('v_lshlrev_b32 v35, 3, v35'); a('v_add_u32 v35, 0x%x, v35' % WR)
    a('v_lshl_add_u32 v36, v33, 8, v35')
    a('v_and_b32 v37, 1, v34'); a('v_lshl_add_u32 v38, v37, 2, v32')
    for dt in range(8):
        a('v_xor_b32 v39, %d, v38' % dt); a('v_lshl_add_u32 v%d, v39, 5, v36' % (vT + dt))
    a('v_lshl_add_u32 v36, v33, 7, v35'); a('v_lshrrev_b32 v39, 1, v32'); a('v_lshl_add_u32 v39, v37, 1, v39')
    a('v_lshl_add_u32 v%d, v39, 5, v36' % vTb)
    a('v_lshrrev_b32 v39, 3, v1'); a('s_lshl_b32 s33, s3, 4'); a('v_add_u32 v39, s33, v39'); a('v_lshlrev_b32 v39, 13, v39')
    a('v_and_b32 v40, 7, v1'); a('v_lshlrev_b32 v41, 1, v37'); a('v_xor_b32 v40, v40, v41')
    a('v_lshl_add_u32 v39, v40, 4, v39'); a('s_lshl_b32 s33, s30, 8'); a('v_add_u32 v%d, s33, v39' % vW2)
    a('v_xor_b32 v39, 64, v%d' % vW2); a('v_add_u32 v%d, 0x10000, v39' % (vW2 + 1))
    a('v_and_b32 v39, 15, v1'); a('v_lshrrev_b32 v40, 1, v39'); a('v_xor_b32 v40, v40, v34')
    a('v_lshlrev_b32 v39, 7, v39'); a('v_add_u32 v39, s34, v39')
    a('v_lshl_add_u32 v%d, v40, 4, v39' % vAr); a('v_xor_b32 v%d, 64, v%d' % (vAr + 1, vAr))
    a('v_lshlrev_b32 v%d, 4, v1' % vSt)
    a('s_lshl_b32 s32, s30, 6'); a('s_lshl_b32 s33, s31, 3'); a('s_add_u32 s32, s32, s33'); a('s_add_u32 s32, s32, s3')
    a('s_lshl_b32 s32, s32, 14')
    a('s_add_u32 s%d, s60, s32' % sKVO); a('s_addc_u32 s%d, s61, 0' % (sKVO + 1)); a('s_and_b32 s%d, s%d, 0xffff' % (sKVO + 1, sKVO + 1))
    a('s_mov_b32 s%d, 16384' % (sKVO + 2)); a('s_mov_b32 s%d, 0x00020000' % (sKVO + 3))
    mk_srd(a, sUO, 60, 640 * 8192, WS_UT)
    a('s_cmp_lt_u32 s3, 6'); a('s_cselect_b32 s62, s42, s44'); a('s_cselect_b32 s63, s43, s45')
    a('s_cmp_lt_u32 s3, 4'); a('s_cselect_b32 s%d, s36, s62' % sUS); a('s_cselect_b32 s63, s37, s63')
    a('s_mov_b32 s62, 0x%x' % (640 * 1280)); a('s_cselect_b32 s62, 0x%x, s62' % (2048 * 1280))
    a('s_and_b32 s%d, s63, 0xffff' % (sUS + 1))
    a('s_cmp_lt_u32 s29, 20'); a('s_cselect_b32 s%d, s62, 0' % (sUS + 2)); a('s_mov_b32 s%d, 0x00020000' % (sUS + 3))
    a('s_cmp_ge_u32 s64, 400'); a('s_cbranch_scc1 k1_nocc2')
    a('s_waitcnt vmcnt(%d)' % (vm.n - nbefore))
    T = 96
    for p in range(3): a('v_lshlrev_b32 v%d, 16, v%d' % (C0 + p, C0 + p))
    lam_params(a, T + 3, C0, C0 + 1, C0 + 2)
    a('v_exp_f32 v%d, v%d' % (T + 3, T + 3)); a('v_cos_f32 v%d, v%d' % (T + 5, T + 4)); a('v_sin_f32 v%d, v%d' % (T + 4, T + 4))
    a('v_fma_f32 v%d, v%d, v%d, -1.0' % (T + 5, T + 3, T + 5)); a('v_mul_f32 v%d, v%d, v%d' % (T + 4, T + 3, T + 4))
    a('v_mul_f32 v%d, v%d, v%d' % (T + 6, C0, C0)); a('v_fmac_f32 v%d, v%d, v%d' % (T + 6, C0 + 1, C0 + 1))
    a('v_rcp_f32 v%d, v%d' % (T + 6, T + 6)); a('v_add_f32 v%d, v%d, v%d' % (T + 6, T + 6, T + 6))
    a('v_mul_f32 v%d, v%d, v%d' % (T + 7, T + 5, C0)); a('v_fmac_f32 v%d, v%d, v%d' % (T + 7, T + 4, C0 + 1))
    a('v_mul_f32 v%d, v%d, v%d' % (T + 8, T + 4, C0)); a('v_fma_f32 v%d, -v%d, v%d, v%d' % (T + 8, T + 5, C0 + 1, T + 8))
    AR, NAR, NAI = T, T + 1, T + 2
    a('v_mul_f32 v%d, v%d, v%d' % (AR, T + 7, T + 6)); a('v_mul_f32 v%d, -v%d, v%d' % (NAR, T + 7, T + 6)); a('v_mul_f32 v%d, -v%d, v%d' % (NAI, T + 8, T + 6))
    mk_srd(a, 68, 60, 1600 * 1024, WS_CC)
    a('s_lshr_b32 s75, s65, 3'); a('s_mul_i32 s75, s75, 10'); a('s_add_u32 s75, s75, s66'); a('s_lshl_b32 s75, s75, 3')
    a('s_and_b32 s76, s65, 7'); a('s_add_u32 s75, s75, s76'); a('s_lshl_b32 s75, s75, 12')
    O = 112
    for n in range(16):
        X = T + 4 + 4 * (n & 1)
        re = C0 + 8 + (n >> 1); im = re + 8
        if n & 1:
            a('v_and_b32 v%d, 0xffff0000, v%d' % (X, re)); a('v_and_b32 v%d, 0xffff0000, v%d' % (X + 1, im))
        else:
            a('v_lshlrev_b32 v%d, 16, v%d' % (X, re)); a('v_lshlrev_b32 v%d, 16, v%d' % (X + 1, im))
        D = ' row_newbcast:%d row_mask:0xf bank_mask:0xf' % n
        a('v_mul_f32_dpp v%d, v%d, v%d' % (X + 2, AR, X) + D); a('v_mul_f32_dpp v%d, v%d, v%d' % (X + 3, NAR, X + 1) + D)
        a('v_fmac_f32_dpp v%d, v%d, v%d' % (X + 2, NAI, X + 1) + D); a('v_fmac_f32_dpp v%d, v%d, v%d' % (X + 3, NAI, X) + D)
        a('v_cvt_pk_bf16_f32 v%d, v%d, v%d' % (O + n, X + 2, X + 3))
        if n & 3 == 3:
            a('buffer_store_dwordx4 %s, v%d, s[68:71], s75 offen offset:%d sc1' % (vr(O + n - 3, 4), vSt, (n >> 2) * 1024))
    a.label('k1_nocc2')
    a('s_cmp_lg_u32 s2, 0'); a('s_cbranch_scc1 k1_noz')
    mk_srd(a, 68, 60, 8192, WS_FLAG)
    for r in range(4): a('v_mov_b32 v%d, 0' % (96 + r))
    a('s_lshl_b32 s75, s3, 10')
    a('buffer_store_dwordx4 v[96:99], v%d, s[68:71], s75 offen sc1' % vSt)
    a.label('k1_noz')

    S = Sched()
    tagRW = {}; tagRA = {}
    def rdW(s, g, q, half):
        def f(a):
            dst = WB + (g & 1) * 16 + q * 4 + half * 2
            if s < 8: ad, off = vT + 2 * g + (q >> 1), (q & 1) * 8192 + half * 1024
            else: ad, off = vT + g, q * 4096 + half * 512
            a('ds_read_b64_tr_b16 %s, v%d offset:%d' % (vr(dst, 2), ad, (s % 4) * 16384 + off))
            tagRW[(s, g, q)] = lg.issue()
        return f
    def af(kstep, kt): return AF + (kstep * 2 + kt) * 4
    def rdA(s, ks, kt):
        def f(a):
            a('ds_read_b128 %s, v%d offset:%d' % (vr(af(2 * s + ks, kt), 4), vAr + ks, (s % 3) * 4096 + kt * 2048))
            tagRA[(s, ks, kt)] = lg.issue()
        return f
    UF = [160, 208]; UACC = 128
    def rdU(n, ks, q):
        def f(a):
            dst = UF[n & 1] + (ks * 6 + q) * 4
            ad = UAD + ks + (2 if q >= 2 else 0)
            a('ds_read_b128 %s, v%d offset:%d' % (vr(dst, 4), ad, (q & 1) * 2048 + (8192 if q >= 4 else 0)))
            lg.issue()
        return f
    def uaddr(n):
        L = ['s_add_u32 s98, s86, 0x%x' % USLOT[n % 5], 's_add_u32 s99, s87, 0x%x' % USLOT[n % 5]]
        for ks in range(2):
            L.append('v_add_u32 v%d, s98, v%d' % (UAD + ks, vAr + ks)); L.append('v_add_u32 v%d, s99, v%d' % (UAD + 2 + ks, vAr + ks))
        return L
    def tile(kt, dt): return ACC + (kt * 8 + dt) * 4
    def vtile(kt, dv): return tile(kt, 2 * dv + 1) if dv < 4 else tile(kt, 2 * (dv - 4))
    def pack(A, B):
        return ['v_cvt_pk_bf16_f32 v%d, v%d, v%d' % (A, A, A + 1), 'v_cvt_pk_bf16_f32 v%d, v%d, v%d' % (A + 1, A + 2, A + 3),
                'v_cvt_pk_bf16_f32 v%d, v%d, v%d' % (A + 2, B, B + 1), 'v_cvt_pk_bf16_f32 v%d, v%d, v%d' % (A + 3, B + 2, B + 3)]
    def st(reg, idx):
        def f(a):
            a('s_movk_i32 s33, 0x%x' % (idx * 1024))
            a('buffer_store_dwordx4 %s, v%d, %s, s33 offen sc1' % (vr(reg, 4), vSt, sr(sKVO, 4)))
            vm.issue()
        return f
    for s in range(16):
        for g in range(4):
            for q in range(4):
                for kt in range(2):
                    w = vr(WB + (g & 1) * 16 + q * 4, 4)
                    if s < 8:
                        d = vr(tile(kt, 2 * g + (q >> 1)), 4); ac = vr(af(2 * s + (q & 1), kt), 4); first = (s == 0 and (q & 1) == 0)
                        i = S.mfma(MF % (d, w, ac, '0' if first else d))
                    else:
                        d = vr(vtile(kt, g + 4 * ((s - 8) >> 2)), 4); ac = vr(af(4 * (s & 3) + q, kt), 4); first = ((s & 3) == 0 and q == 0)
                        i = S.mfma(MF % (d, ac, w, '0' if first else d))
                    if kt == 0: S.add_pre(i, lambda a, s=s, g=g, q=q: lg.wait_for(a, tagRW[(s, g, q)]))
                    if s < 8 and g == 0 and q < 2:
                        S.add_pre(i, lambda a, s=s, q=q, kt=kt: lg.wait_for(a, tagRA[(s, q, kt)]))
    for n in range(10):
        for ks in range(2):
            F = UF[n & 1] + ks * 24
            for ct in range(2):
                for ri in range(2):
                    for tt in range(2):
                        d = vr(UACC + ((ri * 2 + ct) * 2 + tt) * 4, 4)
                        S.mfma(MF % (d, vr(F + 4 * tt, 4), vr(F + 8 + 8 * ri + 4 * ct, 4), '0' if (n == 0 and ks == 0) else d))
    for s in range(16):
        b = 32 * s
        for g in range(3):
            S.spread([rdW(s, g + 1, q, hf) for q in range(4) for hf in range(2)], b + 8 * g, b + 8 * g + 6)
        if s + 3 < 8:
            S.spread([dmaA(s + 3, i) for i in range(4)], b + 8, b + 24)
        def bar(a, s=s):
            a('s_waitcnt lgkmcnt(0)'); lg.done = lg.n
            if s < 15:
                t = tagW[s + 1]
                if s + 1 < 8: t = max(t, tagA[s + 1])
            else:
                t = tagU[0]
            vm.wait_for(a, t)
            a('s_barrier')
            if dbg > 1: ts(a, 2 + s)
        S.add_post(b + 25, bar)
        L = []
        if s < 15:
            L += [rdW(s + 1, 0, q, hf) for q in range(4) for hf in range(2)]
            if s + 1 < 8:
                L = L[:2] + [rdA(s + 1, 0, 0), rdA(s + 1, 0, 1)] + L[2:4] + [rdA(s + 1, 1, 0), rdA(s + 1, 1, 1)] + L[4:]
        else:
            L += [rdU(0, ks, q) for ks in range(2) for q in range(6)]
        if s + 4 < 16:
            L.append(dmaW(s + 4))
        S.spread(L, b + 25, b + 31)
    S.spread(['v_xor_b32 v%d, %d, v%d' % (vT + d, d << 5, vTb) for d in range(4)], 32 * 7 + 10, 32 * 7 + 14)
    us = ['s_lshl_b32 s88, s3, 12',
          's_cmp_ge_u32 s29, 10\ns_cselect_b32 s96, 1, 0', 's_lshl_b32 s97, s28, 1', 's_add_u32 s89, s96, s97',
          's_mul_i32 s96, s96, 10', 's_sub_u32 s92, s29, s96',
          's_lshl_b32 s96, s89, 7', 's_lshl_b32 s97, s3, 5', 's_add_u32 s96, s96, s97',
          's_lshl_b32 s93, s92, 6', 's_and_b32 s97, s3, 1', 's_lshl_b32 s97, s97, 5', 's_add_u32 s97, s97, s93',
          's_cmp_lt_u32 s3, 4\ns_cselect_b32 s96, s96, s97\ns_cselect_b32 s97, 16, 8\ns_cselect_b32 s93, 4, 0\ns_cselect_b32 s94, 4, 16',
          's_mul_i32 s97, s97, 1280', 's_mul_i32 s94, s94, 1280',
          'v_lshrrev_b32 v2, 3, v1', 'v_lshrrev_b32 v3, 5, v1', 'v_mul_u32_u24 v3, s93, v3', 'v_add3_u32 v2, v2, v3, s96',
          'v_mul_u32_u24 v2, 1280, v2',
          'v_lshrrev_b32 v3, 4, v1', 'v_and_b32 v4, 7, v1', 'v_xor_b32 v3, v3, v4', 'v_xor_b32 v4, 4, v3',
          'v_lshlrev_b32 v3, 4, v3', 'v_lshlrev_b32 v4, 4, v4',
          'v_add3_u32 v5, v2, v4, s97', 'v_add_u32 v2, v2, v3',
          'v_mov_b32 v3, v5', 'v_add_u32 v4, s94, v2', 'v_add_u32 v5, s94, v3',
          's_lshr_b32 s86, s3, 1', 's_lshl_b32 s86, s86, 12', 's_sub_u32 s86, s86, s34',
          's_and_b32 s87, s3, 1', 's_lshl_b32 s87, s87, 12', 's_add_u32 s87, s87, 16384', 's_sub_u32 s87, s87, s34']
    S.spread(us, 32 * 8 + 8, 32 * 9 + 12)
    for n, s in ((0, 9), (1, 11), (2, 12)):
        S.spread([dmaU(n, i) for i in range(4)], 32 * s + 14, 32 * s + 24)
    S.spread([dmaU(3, i) for i in range(4)], 32 * 14, 32 * 14 + 16)
    S.spread(uaddr(0), 32 * 15 + 16, 32 * 15 + 24)
    for g in range(4):
        e = 32 * 7 + 8 * g + 7
        S.spread(pack(tile(0, 2 * g), tile(0, 2 * g + 1)) + pack(tile(1, 2 * g), tile(1, 2 * g + 1)), e + 3, e + 11)
        for kt in range(2):
            S.add_post(32 * (8 + g) + 4 + 13 * kt + (8 if g == 0 else 0), st(tile(kt, 2 * g), kt * 4 + g))
        e = 32 * 11 + 8 * g + 7
        S.spread(pack(vtile(0, g), vtile(1, g)), e + 3, e + 7)
        S.add_post(32 * (12 + g) + 12, st(vtile(0, g), 8 + g))
    for g in range(2):
        e = 32 * 15 + 8 * g + 7
        S.spread(pack(vtile(0, 4 + g), vtile(1, 4 + g)), e + 3, e + 7)
    vm.wait_for(a, tagA[0]); a('s_barrier')
    if dbg: ts(a, 1)
    for q in range(4):
        rdW(0, 0, q, 0)(a); rdW(0, 0, q, 1)(a)
        if q < 2: rdA(0, q, 0)(a); rdA(0, q, 1)(a)
    S.emit(a, 0, 512)
    a('s_cmp_ge_u32 s29, 20'); a('s_cbranch_scc1 k1_tail')
    B0 = 512
    S.spread(pack(vtile(0, 6), vtile(1, 6)) + pack(vtile(0, 7), vtile(1, 7)), B0 + 3, B0 + 11)
    for g in range(4):
        S.add_post(B0 + 16 * (2 * g + 1) + 8, st(vtile(0, 4 + g), 12 + g))
    for n in range(10):
        b = B0 + 16 * n
        def bar(a, n=n):
            a('s_waitcnt lgkmcnt(0)'); lg.done = lg.n
            if n < 9:
                vm.wait_for(a, tagU[n + 1]); a('s_barrier')
                if dbg > 1: ts(a, 50 + n)
        S.add_pre(b, bar)
        if n < 9:
            L = uaddr(n + 1) + [rdU(n + 1, ks, q) for ks in range(2) for q in range(6)]
            D = []
            if n == 0: D += [dmaU(4, i) for i in range(4)]
            if n + 5 < 10: D += [dmaU(n + 5, i) for i in range(4)]
            S.spread(L, b, b + 10)
            if D: S.spread(D, b + 10, b + 16)
    S.spread(['s_lshl_b32 s96, s92, 6', 's_and_b32 s97, s3, 1', 's_lshl_b32 s97, s97, 5', 's_add_u32 s96, s96, s97',
              'v_and_b32 v2, 15, v1', 'v_add_u32 v2, s96, v2', 'v_lshlrev_b32 v2, 13, v2',
              'v_lshrrev_b32 v3, 4, v1', 'v_lshl_add_u32 v2, v3, 5, v2',
              's_lshl_b32 s96, s89, 9', 's_lshr_b32 s97, s3, 1', 's_lshl_b32 s97, s97, 7', 's_add_u32 s96, s96, s97', 's_add_u32 s97, s96, 0x20000'], B0 + 144, B0 + 158)
    S.emit(a, B0, B0 + 160)
    for ct in range(2):
        for tt in range(2):
            R = UACC + (ct * 2 + tt) * 4
            for r in range(4):
                a('v_cvt_pk_bf16_f32 v%d, v%d, v%d' % (R + r, R + r, R + 16 + r))
            a('buffer_store_dwordx4 %s, v2, %s, s%d offen offset:%d sc1' % (vr(R, 4), sr(sUO, 4), 96 + ct, 16 * tt))
    a('s_branch k1_fin')
    a.label('k1_tail')
    st(vtile(0, 4), 12)(a); st(vtile(0, 5), 13)(a)
    for g in (6, 7):
        a.extend(pack(vtile(0, g), vtile(1, g))); st(vtile(0, g), 8 + g)(a)
    a.label('k1_fin')
    if dbg:
        ts(a, 62); a('s_waitcnt vmcnt(0)'); ts(a, 63); tsr(a, 61)
        ts_store(a, 0, 3, 64, 32, 'k1_ts')
    a.label('k1_end')
    a('s_endpgm')
    return dict(name=N, grid=256, block=512, lds=163840, asm=a, nvgpr=256, accum=256)

if __name__ == '__main__':
    import sys
    open('k1.s', 'w').write(build_file([delay_kernel(), gen_k1(int(sys.argv[1]) if len(sys.argv) > 1 else 1)]))
```

```python
from common import *
from k1 import MF, lam_params
QSCALE = 128 ** -0.5 * LOG2E

def gen_k2(dbg=0, X=()):
    a = Asm(); N = 'k2_kernel'
    WR = 98304; PUB = 131072
    vL16, vK, vV, vKS, T0, T1, L, NM, BS, vPub = 2, 3, 4, 5, 6, 7, 8, 10, 12, 31
    ET = 16; TMP = 24; FR = 32; ACC = 64; Q = 128; SS = 160; P = 192; C = 208; QB = 224
    vT = 16; vW = 24; vX = 25; vAr = 27; XF = 160; vKS0 = 192
    sW, sX, sKV, sCT, sUT, sHT = 4, 8, 12, 16, 20, 24
    sJ, sJ1, sXl, sD, sN, sThr, sMsk = 34, 35, 36, 37, 38, 43, 44
    sKm0, sKsrc, sVm0, sVsrc, sHW2, sDB, sCtA, sCtB, sWl, sCh = 52, 53, 54, 55, 56, 57, 58, 60, 62, 63
    NINF = '0xff800000'
    PD = 2 if 'pd' in X else 0
    RL = 2 if 'rl' in X else 0
    a('s_cmp_ge_u32 s2, 256'); a('s_cbranch_scc1 k2_end')
    a('s_load_dwordx8 s[80:87], s[0:1], 72')
    a('s_load_dwordx2 s[88:89], s[0:1], 136')
    a('s_load_dwordx16 s[64:79], s[0:1], 0')
    a('v_lshrrev_b32 v2, 6, v0'); a('v_readfirstlane_b32 s3, v2')
    a('v_and_b32 v1, 63, v0')
    a('s_and_b32 s28, s2, 7'); a('s_lshr_b32 s29, s2, 3')
    a('s_and_b32 s30, s29, 3'); a('s_lshl_b32 s31, s28, 2'); a('s_add_u32 s30, s30, s31')
    a('s_lshr_b32 s31, s29, 2')
    a('v_lshrrev_b32 v34, 4, v1')
    a('s_lshl_b32 s33, s3, 3'); a('v_add_u32 v37, s33, v34'); a('v_lshlrev_b32 v37, 13, v37')
    a('s_and_b32 s33, s3, 1'); a('s_lshl_b32 s33, s33, 3'); a('v_lshl_add_u32 v39, v34, 1, s33')
    a('v_and_b32 v38, 15, v1'); a('v_xor_b32 v40, v38, v39')
    a('v_lshl_add_u32 v37, v40, 4, v37'); a('s_lshl_b32 s33, s30, 8'); a('v_add_u32 v%d, s33, v37' % vW)
    a('s_sub_u32 s32, 15, s31'); a('s_and_b32 s33, s3, 3')
    a('s_lshl_b32 s%d, s32, 2' % sDB); a('s_add_u32 s%d, s%d, s33' % (sDB, sDB))
    a('s_lshl_b32 s%d, s31, 2' % sD); a('s_add_u32 s%d, s%d, s33' % (sD, sD))
    a('s_lshl_b32 s%d, s%d, 18' % (sCtA, sD)); a('s_lshl_b32 s%d, s%d, 18' % (sCtB, sDB))
    a('s_cmp_ge_u32 s3, 4'); a('s_cselect_b32 s%d, s%d, s%d' % (sD, sD, sDB)); a('s_cselect_b32 s%d, 2, 0' % sHW2)
    a('s_lshl_b32 s32, s%d, 5' % sD)
    a('v_lshrrev_b32 v32, 3, v1'); a('v_add_u32 v33, s32, v32'); a('v_mul_u32_u24 v33, 1280, v33')
    a('v_and_b32 v35, 7, v1'); a('v_xor_b32 v35, v34, v35'); a('v_xor_b32 v36, 4, v35')
    a('v_lshl_add_u32 v%d, v35, 4, v33' % vX); a('v_lshl_add_u32 v%d, v36, 4, v33' % (vX + 1)); a('v_add_u32 v%d, 10240, v%d' % (vX + 1, vX + 1))
    a('s_lshl_b32 s%d, s3, 12' % sXl)
    a('s_lshl_b32 s%d, s3, 11' % sWl)
    a('s_lshl_b32 s%d, s3, 8' % sCh); a('s_add_u32 s%d, s%d, s2' % (sCh, sCh))
    a('v_lshlrev_b32 v%d, 4, v1' % vL16)
    a('s_waitcnt lgkmcnt(0)')
    if dbg: ts(a, 0); tsr(a, 60)
    mk_srd(a, sW, 84, 640 * 8192); mk_srd(a, sX, 80, 2048 * 1280)

    def setup2(a):
        a('v_lshrrev_b32 v34, 4, v1')
        a('v_bfe_u32 v32, v1, 2, 2'); a('v_lshl_add_u32 v33, v34, 3, v32')
        a('v_and_b32 v35, 3, v1'); a('v_lshlrev_b32 v35, 3, v35'); a('v_add_u32 v35, 0x%x, v35' % WR)
        a('v_lshl_add_u32 v36, v33, 8, v35')
        a('v_and_b32 v37, 1, v34'); a('v_lshl_add_u32 v38, v37, 2, v32')
        for dt in range(8):
            a('v_xor_b32 v39, %d, v38' % dt); a('v_lshl_add_u32 v%d, v39, 5, v36' % (vT + dt))
        a('s_lshl_b32 s32, s30, 20')
        a('s_add_u32 s%d, s88, s32' % sKV); a('s_addc_u32 s%d, s89, 0' % (sKV + 1)); a('s_and_b32 s%d, s%d, 0xffff' % (sKV + 1, sKV + 1))
        a('s_sub_u32 s32, 16, s31'); a('s_lshl_b32 s%d, s32, 16' % (sKV + 2)); a('s_mov_b32 s%d, 0x00020000' % (sKV + 3))
        mk_srd(a, sCT, 88, 16 << 20, WS_CTX)
        a('s_lshl_b32 s32, s30, 12')
        for s in (sCtA, sCtB):
            a('s_add_u32 s%d, s%d, s32' % (s, s)); a('s_add_u32 s%d, s%d, 0x20000' % (s + 1, s))
        a('s_lshr_b32 s32, s3, 1'); a('s_lshl_b32 s32, s32, 14'); a('s_and_b32 s33, s3, 1'); a('s_lshl_b32 s33, s33, 12'); a('s_add_u32 s32, s32, s33')
        a('v_add_u32 v%d, s32, v%d' % (vKS0, vL16))
        a('s_lshr_b32 s32, s3, 2'); a('s_lshl_b32 s32, s32, 14'); a('s_and_b32 s33, s3, 3'); a('s_lshl_b32 s33, s33, 11'); a('s_add_u32 s32, s32, s33')
        a('v_add_u32 v%d, s32, v%d' % (vKS, vL16))
        a('s_mov_b32 s%d, s%d' % (sKm0, sWl)); a('s_add_u32 s%d, s%d, 0x8000' % (sVm0, sWl))
        a('s_mov_b32 s%d, 0x20000' % sKsrc); a('s_mov_b32 s%d, 0x12000' % sVsrc)
        a('s_lshl_b32 s32, s31, 1'); a('s_add_u32 s%d, s32, 2' % sJ1)
        a('s_mov_b32 s%d, 0' % sJ); a('s_mov_b32 s%d, 0' % sN)
        a('v_and_b32 v39, 15, v1'); a('v_lshrrev_b32 v40, 1, v39'); a('v_xor_b32 v40, v40, v34')
        a('v_lshlrev_b32 v39, 7, v39'); a('v_add_u32 v39, s%d, v39' % sXl)
        a('v_lshl_add_u32 v%d, v40, 4, v39' % vAr); a('v_xor_b32 v%d, 64, v%d' % (vAr + 1, vAr))
        a('v_add_u32 v%d, 0x10000, v%d' % (vAr + 2, vAr)); a('v_add_u32 v%d, 0x10000, v%d' % (vAr + 3, vAr + 1))
        a('s_mov_b32 s%d, %s' % (sThr, f32(2.0 ** 30)))
        a('v_and_b32 v32, 15, v1'); a('v_lshlrev_b32 v33, 2, v34')
        for r in range(4):
            a('v_add_u32 v35, %d, v33' % r); a('v_cmp_gt_u32 %s, v35, v32' % sr(sMsk + 2 * r, 2))
        a('s_and_b32 s32, s3, 3'); a('s_lshl_b32 s32, s32, 9'); a('s_add_u32 s32, s32, 0x%x' % PUB)
        a('v_lshl_add_u32 v%d, v1, 3, s32' % vPub)

    def tile(qt, dt): return ACC + (dt * 2 + qt) * 4
    def qf(s, qt): return Q + (s * 2 + qt) * 4

    def qproj(a, scan):
        vm = VM(); lg = LG()
        tagW = {}; tagX = {}; tagRW = {}
        def slot(s): return ((s + 2) % 4) * 16384
        def dmaW(s):
            def f(a):
                for i in range(2):
                    a('s_add_u32 m0, s%d, 0x%x' % (sWl, WR + slot(s) + i * 1024))
                    a('s_mov_b32 s32, 0x%x' % (s * 524288 + i * 32768))
                    a('buffer_load_dwordx4 v%d, %s, s32 offen lds' % (vW, sr(sW, 4)))
                    tagW[s] = vm.issue()
            return f
        def xf(s, ks, qt): return XF + (((s & 1) * 2 + ks) * 2 + qt) * 4
        def reg(s): return (0, 2, 1)[(s - 7) % 3]
        def dmaA(s, i):
            def f(a):
                if s < 10:
                    a('s_add_u32 m0, s%d, 0x%x' % (sXl, reg(s) * 32768 + i * 1024))
                    a('s_movk_i32 s33, 0x%x' % (s * 128 + (i >> 1) * 20480))
                    a('buffer_load_dwordx4 v%d, %s, s33 offen lds' % (vX + (i & 1), sr(sX, 4)))
                else:
                    a('s_add_u32 m0, s%d, 0x%x' % (sXl, reg(s) * 32768))
                    a('s_mov_b32 s33, 0x%x' % (0, 0x2000, 0x10000)[s - 10])
                    a('buffer_load_dwordx4 v%d, %s, s33 offen offset:%d lds' % (vKS0, sr(sKV, 4), i * 1024))
                tagX[s] = vm.issue()
            return f
        tagRA = {}
        def rdA(s, ks, qt):
            def f(a):
                a('ds_read_b128 %s, v%d offset:%d' % (vr(xf(s, ks, qt), 4), vAr + ks + (2 if reg(s) == 2 else 0), (reg(s) & 1) * 32768 + qt * 2048))
                tagRA[(s, ks, qt)] = lg.issue()
            return f
        U = 208; HX = 240; LR, LI, NLI, PA, PB, TR, A_, TH, W16, W32 = 248, 249, 250, 6, 8, 10, 251, 252, 12, 254
        sM = 90
        tagS = {}
        for s in range(4):
            dmaW(s)(a)
            if s < 3:
                for i in range(4): dmaA(s, i)(a)
            if s == 0 and scan:
                a('s_lshl_b32 s32, s%d, 1' % sCh); a('v_mov_b32 v%d, s32' % TR)
                for p, sp in enumerate((66, 68, 78)):
                    a('global_load_ushort v%d, v%d, %s' % (LR + p, TR, sr(sp, 2))); tagS['p'] = vm.issue()
            if s == 3 and scan:
                mk_srd(a, sUT, 88, 640 * 8192, WS_UT)
                a('v_lshlrev_b32 v%d, 7, v1' % PA); a('s_lshl_b32 s33, s%d, 13' % sCh)
                for k in range(8):
                    a('buffer_load_dwordx4 %s, v%d, %s, s33 offen offset:%d' % (vr(U + 4 * k, 4), PA, sr(sUT, 4), 16 * k)); tagS[k] = vm.issue()
        setup2(a)
        SC = []
        if scan:
            x = SC.append
            x(lambda a: vm.wait_for(a, tagS['p']))
            for p in range(3): x('v_lshlrev_b32 v%d, 16, v%d' % (LR + p, LR + p))
            t = Asm(); lam_params(t, A_, LR, LI, NLI); SC += t.lines
            def cis(mag, ang, re, im, tmp):
                return ['v_fract_f32 v%d, v%d' % (im, ang), 'v_exp_f32 v%d, v%d' % (tmp, mag), 'v_cos_f32 v%d, v%d' % (re, im), 'v_sin_f32 v%d, v%d' % (im, im),
                        'v_mul_f32 v%d, v%d, v%d' % (re, re, tmp), 'v_mul_f32 v%d, v%d, v%d' % (im, im, tmp)]
            SC += cis(A_, TH, LR, LI, TR)
            x('v_xor_b32 v%d, 0x80000000, v%d' % (NLI, LI))
            for W, m in ((W16, 15), (W32, 31)):
                x('v_and_b32 v%d, %d, v1' % (TR, m)); x('v_add_u32 v%d, 1, v%d' % (TR, TR)); x('v_lshlrev_b32 v%d, 5, v%d' % (TR, TR)); x('v_cvt_f32_u32 v%d, v%d' % (TR, TR))
                x('v_mul_f32 v%d, v%d, v%d' % (W + 1, TH, TR)); x('v_mul_f32 v%d, v%d, v%d' % (TR, A_, TR))
                SC += cis(TR, W + 1, W, W + 1, TR)
            for n in range(4):
                x('v_readlane_b32 s%d, v%d, %d' % (sM + 2 * n, W16, (1 << n) - 1)); x('v_readlane_b32 s%d, v%d, %d' % (sM + 2 * n + 1, W16 + 1, (1 << n) - 1))
            def step(k, first=False):
                d, e = (PA, PB) if k % 2 == 0 else (PB, PA)
                o = ['v_lshlrev_b32 v%d, 16, v%d' % (d, U + k), 'v_and_b32 v%d, 0xffff0000, v%d' % (d + 1, U + k)]
                if not first:
                    o += ['v_fmac_f32 v%d, v%d, v%d' % (d, LR, e), 'v_fmac_f32 v%d, v%d, v%d' % (d + 1, LR, e + 1),
                          'v_fmac_f32 v%d, v%d, v%d' % (d, NLI, e + 1), 'v_fmac_f32 v%d, v%d, v%d' % (d + 1, LI, e)]
                return o
            for k in range(32):
                if k % 4 == 0: x(lambda a, k=k: vm.wait_for(a, tagS[k // 4]))
                SC += step(k, k == 0)
            X = PA
            for c in range(2): x('v_mov_b32_dpp v%d, v%d wave_shr:1 row_mask:0xf bank_mask:0xf bound_ctrl:0' % (X + c, PB + c))
            def cma(mr, mi):
                return ['v_fmac_f32 v%d, %s, v%d' % (X, mr, TR), 'v_fmac_f32 v%d, %s, v%d' % (X + 1, mr, TR + 1),
                        'v_fma_f32 v%d, -%s, v%d, v%d' % (X, mi, TR + 1, X), 'v_fmac_f32 v%d, %s, v%d' % (X + 1, mi, TR)]
            for n in range(4):
                for c in range(2): x('v_mov_b32_dpp v%d, v%d row_shr:%d row_mask:0xf bank_mask:0xf bound_ctrl:0' % (TR + c, X + c, 1 << n))
                SC += cma('s%d' % (sM + 2 * n), 's%d' % (sM + 2 * n + 1))
            for W, b, m in ((W16, 15, '0xa'), (W32, 31, '0xc')):
                for c in range(2): x('v_mov_b32 v%d, 0' % (TR + c))
                for c in range(2): x('v_mov_b32_dpp v%d, v%d row_bcast:%d row_mask:%s bank_mask:0xf' % (TR + c, X + c, b, m))
                SC += cma('v%d' % W, 'v%d' % (W + 1))
            for c in range(2): x('v_mov_b32 v%d, v%d' % (PB + c, X + c))
            t = Asm(); mk_srd(t, sHT, 88, 1280 * 4096, WS_HT); x('\n'.join(t.lines))
            SC += ['s_lshr_b32 s98, s%d, 6' % sCh, 's_lshl_b32 s98, s98, 7', 's_bfe_u32 s99, s%d, 0x20002' % sCh, 's_lshl_b32 s99, s99, 5', 's_add_u32 s98, s98, s99',
                   's_bfe_u32 s99, s%d, 0x10001' % sCh, 's_lshl_b32 s99, s99, 4', 's_add_u32 s98, s98, s99',
                   's_bfe_u32 s99, s%d, 0x20004' % sCh, 's_lshl_b32 s99, s99, 2', 's_add_u32 s98, s98, s99',
                   's_and_b32 s99, s%d, 1' % sCh, 's_lshl_b32 s99, s99, 1', 's_add_u32 s98, s98, s99',
                   's_lshl_b32 s98, s98, 12', 's_add_u32 s99, s98, 0x1000', 'v_lshlrev_b32 v%d, 6, v1' % W16]
            def hst(reg, so, off):
                def f(a):
                    a('buffer_store_dwordx4 %s, v%d, %s, s%d offen offset:%d sc1' % (vr(reg, 4), W16, sr(sHT, 4), so, off)); vm.issue()
                return f
            for k in range(16):
                SC += step(2 * k) + step(2 * k + 1)
                hi = HX + k if k < 8 else U + 8 + k
                x('v_cvt_pk_bf16_f32 v%d, v%d, v%d' % (U + k, PA, PB)); x('v_cvt_pk_bf16_f32 v%d, v%d, v%d' % (hi, PA + 1, PB + 1))
                if k % 4 == 3:
                    x(hst(U + k - 3, 98, (k >> 2) * 16)); x(hst(hi - 3, 99, (k >> 2) * 16))
        S = Sched()
        def rdW(s, g, q, half):
            def f(a):
                dst = FR + (g & 1) * 16 + q * 4 + half * 2
                a('ds_read_b64_tr_b16 %s, v%d offset:%d' % (vr(dst, 2), vT + 2 * g + (q >> 1), slot(s) + (q & 1) * 8192 + half * 1024))
                tagRW[(s, g, q)] = lg.issue()
            return f
        for s in range(10):
            for g in range(4):
                for q in range(4):
                    for qt in range(2):
                        d = vr(tile(qt, 2 * g + (q >> 1)), 4)
                        i = S.mfma(MF % (d, vr(FR + (g & 1) * 16 + q * 4, 4), vr(xf(s, q & 1, qt), 4), '0' if (s == 0 and (q & 1) == 0) else d))
                        if qt == 0: S.add_pre(i, lambda a, s=s, g=g, q=q: lg.wait_for(a, tagRW[(s, g, q)]))
                        if g == 0 and q < 2: S.add_pre(i, lambda a, s=s, q=q, qt=qt: lg.wait_for(a, tagRA[(s, q, qt)]))
        for s in range(10):
            b = 32 * s
            for g in range(3):
                S.spread([rdW(s, g + 1, q, hf) for q in range(4) for hf in range(2)], b + 8 * g, b + 8 * g + 6)
            S.spread([dmaA(s + 3, i) for i in range(4)], b + 8, b + 24)
            if s == 9: break
            def bar(a, s=s):
                a('s_waitcnt lgkmcnt(0)'); lg.done = lg.n
                vm.wait_for(a, max(tagW[s + 1], tagX[s + 1])); a('s_barrier')
                if dbg > 1: ts(a, 2 + s)
            S.add_post(b + 25, bar)
            Lr = [rdW(s + 1, 0, q, hf) for q in range(4) for hf in range(2)]
            Lr = Lr[:2] + [rdA(s + 1, 0, 0), rdA(s + 1, 0, 1)] + Lr[2:4] + [rdA(s + 1, 1, 0), rdA(s + 1, 1, 1)] + Lr[4:]
            if s + 4 < 10: Lr.append(dmaW(s + 4))
            S.spread(Lr, b + 25, b + 31)
        if scan: S.spread(SC, 20, 32 * 9 + 4)
        def fin(g):
            o = []
            for qt in range(2):
                for h2 in range(2):
                    t = tile(qt, 2 * g + h2)
                    o += ['v_mul_f32 v%d, %s, v%d' % (t + r, f32(QSCALE), t + r) for r in range(4)]
                    o += ['v_cvt_pk_bf16_f32 v%d, v%d, v%d' % (qf(g, qt) + 2 * h2 + r, t + 2 * r, t + 2 * r + 1) for r in range(2)]
            return o
        for g in range(2): S.spread(fin(g), 288 + 8 * g + 11, 288 + 8 * g + 19)
        S.spread(fin(2)[:12], 288 + 27, 288 + 32)
        vm.wait_for(a, tagX[0]); a('s_barrier')
        if dbg: ts(a, 1)
        for q in range(4):
            rdW(0, 0, q, 0)(a); rdW(0, 0, q, 1)(a)
            if q < 2: rdA(0, q, 0)(a); rdA(0, q, 1)(a)
        S.emit(a, 0, 320)
        a.extend(fin(2)[12:]); a.extend(fin(3))
        vm.wait_for(a, tagX[10])

    a('s_cmp_lt_u32 s%d, 640' % sCh); a('s_cbranch_scc1 k2_qscan')
    qproj(a, False)
    a('s_branch k2_qdone')
    a.label('k2_qscan')
    qproj(a, True)
    a.label('k2_qdone')
    a('s_and_b32 s32, s3, 3'); a('s_lshl_b32 s32, s32, 13'); a('s_add_u32 s32, s32, 0x%x' % WR); a('v_add_u32 v%d, s32, v%d' % (T0, vL16))
    a('s_cmp_ge_u32 s3, 4'); a('s_cbranch_scc1 k2_nopub')
    for f in range(8): a('ds_write_b128 v%d, %s offset:%d' % (T0, vr(Q + 4 * f, 4), f * 1024))
    a.label('k2_nopub')
    for r in range(64): a('v_mov_b32 v%d, 0' % (ACC + r))
    for r in range(16): a('v_mov_b32 v%d, 0' % (C + r))
    a('v_mov_b32 v%d, 0' % L); a('v_mov_b32 v%d, 0' % (L + 1)); a('v_mov_b32 v%d, v%d' % (vK, vL16))
    a('s_waitcnt lgkmcnt(0)'); a('s_barrier')
    if dbg: ts(a, 12)

    def st(b, kt, qt): return SS + b * 16 + (kt * 2 + qt) * 4
    def ct(kt, qt): return C + (kt * 2 + qt) * 4
    def pf(b, qt): return P + b * 8 + qt * 4
    def sm_items(b):
        o = []
        for p in range(8):
            kt, qt, hf = p >> 2, (p >> 1) & 1, p & 1
            sreg = st(b, kt, qt) + 2 * hf; e = ET + 2 * (p & 3); G = 10 - PD + 4 * p; bs = BS + 2 * b + qt
            o += [(G, 'v_exp_f32 v%d, v%d' % (e, sreg)), (G + 2, 'v_exp_f32 v%d, v%d' % (e + 1, sreg + 1)),
                  (G + 3 + PD, 'v_cvt_pk_bf16_f32 v%d, v%d, v%d' % (pf(b, qt) + 2 * kt + hf, e, e + 1))]
            if p in (0, 2): o += [(G + 4 + PD, 'v_add_f32 v%d, v%d, v%d' % (bs, e, e + 1))]
            else: o += [(G + 4 + PD, 'v_add_f32 v%d, v%d, v%d' % (e, e, e + 1)), (G + 5 + PD, 'v_add_f32 v%d, v%d, v%d' % (bs, bs, e))]
        o.sort(key=lambda x: x[0])
        return o
    def sm(b, lo, hi): return [t for g, t in sm_items(b) if lo <= g < hi]
    def xg(op, x, t):
        return ['v_mov_b32 v%d, v%d' % (t, x), 'v_permlane16_swap_b32 v%d, v%d' % (x, t), '%s v%d, v%d, v%d' % (op, x, x, t),
                'v_mov_b32 v%d, v%d' % (t, x), 'v_permlane32_swap_b32 v%d, v%d' % (x, t), '%s v%d, v%d, v%d' % (op, x, x, t)]
    def blockmax(b, qt, x, t):
        s0, s1 = st(b, 0, qt), st(b, 1, qt)
        return ['v_max3_f32 v%d, v%d, v%d, v%d' % (x, s0, s0 + 1, s0 + 2), 'v_max3_f32 v%d, v%d, v%d, v%d' % (t, s0 + 3, s1, s1 + 1),
                'v_max3_f32 v%d, v%d, v%d, v%d' % (x, x, s1 + 2, s1 + 3), 'v_max_f32 v%d, v%d, v%d' % (x, x, t)] + xg('v_max_f32', x, t)
    tail = Asm()
    def patch(name, sreg):
        t = tail
        t.label(name)
        t('s_cmp_eq_u32 %s, s%d' % (sreg, sD)); t('s_cbranch_scc1 %s_tri' % name)
        for r in range(16): t('v_mov_b32 v%d, %s' % (C + r, NINF))
        t('s_branch %s_ret' % name)
        t.label(name + '_tri')
        t('v_mov_b32 v%d, %s' % (T0, NINF))
        for r in range(4):
            t('v_mov_b32 v%d, %s' % (ct(1, 0) + r, NINF))
            for k in range(2): t('v_cndmask_b32 v%d, v%d, v%d, %s' % (ct(k, k) + r, ct(k, k) + r, T0, sr(sMsk + 2 * r, 2)))
        t('s_branch %s_ret' % name)
        return ['s_cmp_ge_u32 %s, s%d' % (sreg, sD), 's_cbranch_scc1 %s\n%s_ret:' % (name, name)]
    def slow(name, b, bnd=False):
        t = tail
        t.label(name)
        ND = TMP; F = TMP + 2
        for qt in range(2):
            t.extend(blockmax(b, qt, ND + qt, TMP + 4 + qt))
            t('v_max_f32 v%d, 0, v%d' % (ND + qt, ND + qt)); t('v_xor_b32 v%d, 0x80000000, v%d' % (ND + qt, ND + qt))
            t('v_exp_f32 v%d, v%d' % (F + qt, ND + qt))
        for kt in range(2):
            for qt in range(2):
                for r in range(4): t('v_add_f32 v%d, v%d, v%d' % (st(b, kt, qt) + r, st(b, kt, qt) + r, ND + qt))
        for dt in range(8):
            for qt in range(2):
                for r in range(4): t('v_mul_f32 v%d, v%d, v%d' % (tile(qt, dt) + r, tile(qt, dt) + r, F + qt))
        for qt in range(2):
            t('v_mul_f32 v%d, v%d, v%d' % (L + qt, L + qt, F + qt))
        t.extend(sm(b, 0, 99))
        if bnd: t('s_cmp_ge_u32 s3, 4'); t('s_cbranch_scc1 %s_r2' % name)
        for kt in range(2):
            for qt in range(2):
                for r in range(4):
                    t('v_add_f32 v%d, v%d, v%d' % (st(1 - b, kt, qt) + r, st(1 - b, kt, qt) + r, ND + qt))
                    t('v_add_f32 v%d, v%d, v%d' % (ct(kt, qt) + r, ct(kt, qt) + r, ND + qt))
        for qt in range(2): t('v_add_f32 v%d, v%d, v%d' % (NM + qt, NM + qt, ND + qt))
        t.label(name + '_r2')
        t.extend(sm(1 - b, 0, 16))
        t('s_branch %s_ret' % name)
        return (['v_add_f32 v%d, v%d, v%d' % (T1, BS + 2 * b, BS + 2 * b + 1), 'v_cmp_nge_f32 vcc, s%d, v%d' % (sThr, T1)], 's_cbranch_vccnz %s\n%s_ret:' % (name, name))
    def ladd(b): return ['v_add_f32 v%d, v%d, v%d' % (L + qt, L + qt, BS + 2 * b + qt) for qt in range(2)]
    def qk(b, s, kt, qt):
        d = vr(st(b, kt, qt), 4)
        return MF % (d, vr(FR + (kt * 4 + s) * 4, 4), vr(qf(s, qt), 4), vr(ct(kt, qt), 4) if s == 0 else d)
    def pv(b, dt, qt):
        d = vr(tile(qt, dt), 4)
        return MF % (d, vr(FR + dt * 4, 4), vr(pf(b, qt), 4), d)
    def rdtxt(isK, b, f):
        idx = f
        return 'ds_read_b128 %s, v%d offset:%d' % (vr(FR + 4 * f, 4), vK if isK else vV, b * 8192 + idx * 1024)

    for f in range(8): a(rdtxt(True, 0, f))
    a('s_cmp_lt_u32 s3, 4'); a('s_cbranch_scc1 k2_noqb')
    for f in range(8): a('ds_read_b128 %s, v%d offset:%d' % (vr(QB + 4 * f, 4), T0, f * 1024))
    a.label('k2_noqb')
    a.extend(patch('k2_p0', 's%d' % sN))
    a('s_waitcnt lgkmcnt(0)')
    for kt in range(2):
        for s in range(4):
            for qt in range(2): a(qk(0, s, kt, qt))
            a(rdtxt(True, 1, kt * 4 + s))
    for qt in range(2):
        a.extend(blockmax(0, qt, NM + qt, TMP + qt)); a('v_xor_b32 v%d, 0x80000000, v%d' % (NM + qt, NM + qt))
    a('s_cmp_ge_u32 s3, 4'); a('s_cbranch_scc1 k2_nopub2')
    a('ds_write_b64 v%d, %s' % (vPub, vr(NM, 2)))
    a.label('k2_nopub2')
    for qt in range(2):
        for kt in range(2):
            for r in range(4): a('v_add_f32 v%d, v%d, v%d' % (st(0, kt, qt) + r, st(0, kt, qt) + r, NM + qt))
    a.extend(sm(0, 0, 32))
    for qt in range(2):
        for kt in range(2):
            for r in range(4): a('v_add_f32 v%d, v%d, v%d' % (ct(kt, qt) + r, ct(kt, qt) + r, NM + qt))
    a('s_mov_b32 s33, 1')
    a.extend(patch('k2_p1', 's33'))
    a('s_waitcnt lgkmcnt(0)')
    a('s_branch k2_h3_1')

    lg = LG(); tagF = {}
    def x2(t):
        for qt in range(2):
            t.extend(xg('v_add_f32', L + qt, TMP + qt)); t('v_rcp_f32 v%d, v%d' % (TMP + 2 + qt, L + qt))
        for qt in range(2): t('v_mov_b32 v%d, 0' % (L + qt))
        for s in range(4):
            for qt in range(2):
                o = QB + (s * 2 + qt) * 4
                for h2 in range(2):
                    d = tile(qt, 2 * s + h2)
                    for r in range(4): t('v_mul_f32 v%d, v%d, v%d' % (d + r, d + r, TMP + 2 + qt))
                    for r in range(2): t('v_cvt_pk_bf16_f32 v%d, v%d, v%d' % (o + 2 * h2 + r, d + 2 * r, d + 2 * r + 1))
                    for r in range(4): t('v_mov_b32 v%d, 0' % (d + r))
                t('buffer_store_dwordx4 %s, v%d, %s, s%d offen offset:%d sc1' % (vr(o, 4), vL16, sr(sCT, 4), sCtA + qt, s * 1024))
    def unit(isV):
        m0, src = (sVm0, sVsrc) if isV else (sKm0, sKsrc)
        ld = lambda i: 'buffer_load_dwordx4 v%d, %s, s%d offen offset:%d lds' % (vKS, sr(sKV, 4), src, i * 1024)
        pre = ['s_and_b32 m0, s%d, 0xffff' % m0] + (['s_bitset1_b32 m0, 16'] if isV else [])
        return ['\n'.join(pre + ['s_add_u32 s%d, s%d, 0x4000' % (m0, m0), ld(0)]), ld(1) + '\ns_add_u32 s%d, s%d, 0x8000' % (src, src)]
    def body(a, kind):
        S = Sched()
        def rd(isK, b, f):
            def g(a):
                if 'nord' in X: return
                a(rdtxt(isK, b, f)); tagF[f] = lg.issue()
            return g
        for H in range(4):
            for f in range(8):
                for qt in range(2):
                    i = S.mfma(qk(H >> 1, f & 3, f >> 2, qt) if H % 2 == 0 else pv(1 if H == 1 else 0, f, qt))
                    if qt == 0 and f % 4 == 0: S.add_pre(i, lambda a, f=f: lg.wait_for(a, tagF[f + 3]) if f + 3 in tagF else None)
        S.add_pre(32, 'k2_h3_%s:' % kind)
        def bar(a):
            a('s_waitcnt vmcnt(0) lgkmcnt(0)'); lg.done = lg.n
            a('s_barrier'); a('s_setprio 3')
        S.add_post(35, bar)
        for q, g in enumerate((61, 17, 29)): S.add_post(g, 's_setprio %d' % (2 - q))
        for f in range(8):
            o = 2 * f + 1
            S.add_post(o, rd(False, 1, f)); S.add_post(16 + o, rd(True, 1, f))
            S.add_post(max(35, 32 + o), rd(False, 0, f)); S.add_post(48 + o, rd(True, 0, f) if kind != 'e' else rd(False, 1, f))
        if 'nosm' not in X:
            for b in range(2):
                for g, t in sm_items(b): S.add_post((32 * b + g) % 64, t)
        S.add_post(52, ladd(0)[0]); S.add_post(52, ladd(0)[1])
        if kind == 'e':
            S.emit(a, 48, 64); return
        if kind == 'w':
            S.emit(a, 48, 64); S.emit(a, 0, 48); return
        pa = patch('k2_pa' + kind, 's%d' % sN); pb = patch('k2_pb' + kind, 's33')
        ca, bra = slow('k2_sa' + kind, 0); cb, brb = slow('k2_sb' + kind, 1, kind == '2f')
        S.add_post(48, 's_and_b32 s32, s%d, 7\ns_lshl_b32 s32, s32, 13\nv_add_u32 v%d, s32, v%d' % (sN, vK, vL16))
        S.add_post(56, pa[0]); S.add_post(56, pa[1])
        S.add_post(12, cb[0]); S.add_post(13, cb[1]); S.add_post(15, brb)
        S.add_post(16, ladd(1)[0]); S.add_post(16, ladd(1)[1])
        S.add_post(20, 's_add_u32 s33, s%d, 1' % sN); S.add_post(20, pb[0]); S.add_post(20, pb[1])
        S.add_post(33, 'v_add_u32 v%d, 0x10000, v%d' % (vV, vK))
        if kind == '2f':
            S.add_post(36, 's_cmp_lt_u32 s3, 4\ns_cbranch_scc1 k2_x2_skip'); S.add_post(36, x2); S.add_post(36, 'k2_x2_skip:')
        early = unit(True) + unit(False) + (unit(False) if kind == '2' else [])
        pos = (48, 54, 60, 0, 6, 12) if kind == '2' else (50, 58, 2, 10)
        if 'nodma' not in X:
            for g, t in zip(pos, early): S.add_post(g, t)
            if kind != '1':
                for g, t in zip((37, 42), unit(True)): S.add_post(g, t)
        S.add_post(44, ca[0]); S.add_post(45, ca[1])
        S.add_post(46, 's_add_u32 s%d, s%d, %d' % (sN, sN, 2 if kind == '1' else 4)); S.add_post(46, 's_add_u32 s%d, s%d, 1' % (sJ, sJ))
        S.add_post(47, bra)
        S.emit(a, 48, 64); S.emit(a, 0, 48)
    body(Asm(), 'w')
    a.label('k2_loop1')
    body(a, '1')
    a('s_cmp_lt_u32 s%d, s%d' % (sJ, sJ1)); a('s_cbranch_scc1 k2_loop1')
    a('s_cmp_lt_u32 s3, 4'); a('s_cbranch_scc1 k2_x1_skip')
    a('ds_read_b64 %s, v%d' % (vr(NM, 2), vPub))
    a('s_add_u32 s%d, s%d, 2' % (sN, sN)); a('s_mov_b32 s%d, s%d' % (sD, sDB))
    for r in range(32): a('v_mov_b32 v%d, v%d' % (Q + r, QB + r))
    a('s_waitcnt lgkmcnt(0)')
    for kt in range(2):
        for qt in range(2):
            for r in range(4): a('v_mov_b32 v%d, v%d' % (ct(kt, qt) + r, NM + qt))
    a.label('k2_x1_skip')
    body(a, '2f')
    a('s_cmp_ge_u32 s%d, 17' % sJ); a('s_cbranch_scc1 k2_done')
    a.label('k2_loop2')
    body(a, '2')
    a('s_cmp_lt_u32 s%d, 17' % sJ); a('s_cbranch_scc1 k2_loop2')
    a.label('k2_done')
    body(a, 'e')
    if dbg: ts(a, 13)
    a.extend(sm(1, 32, 99))
    ce, bre = slow('k2_se', 1)
    a.extend(ce); a(bre)
    a('s_waitcnt lgkmcnt(0)')
    for dt in range(8):
        for qt in range(2): a(pv(1, dt, qt))
        if dt == 0: a.extend(ladd(1))
        if dt in (1, 2): a.extend(xg('v_add_f32', L + dt - 1, TMP + dt))
    a('s_lshl_b32 s32, s3, 13'); a('v_add_u32 v%d, s32, v%d' % (T0, vL16)); a('v_xor_b32 v%d, 0x8000, v%d' % (T1, T0))
    a('s_lshl_b32 s32, s3, 10'); a('s_add_u32 s32, s32, 0x%x' % (PUB + 8192)); a('v_add_u32 v%d, s32, v%d' % (vK, vL16)); a('v_xor_b32 v%d, 0x1000, v%d' % (vV, vK))
    a('ds_write_b128 v%d, %s' % (vK, vr(L, 4)))
    a('s_cmp_ge_u32 s3, 4'); a('s_cbranch_scc1 k2_mh')
    def merge(a, hw):
        keep = ACC + 32 * hw; send = ACC + 32 * (1 - hw)
        for f in range(8): a('ds_write_b128 v%d, %s offset:%d' % (T0, vr(send + 4 * f, 4), f * 1024))
        a('s_waitcnt lgkmcnt(0)'); a('s_barrier')
        O = TMP
        a('ds_read_b128 %s, v%d' % (vr(O, 4), vV))
        for f in range(8): a('ds_read_b128 %s, v%d offset:%d' % (vr(send + 4 * f, 4), T1, f * 1024))
        a('s_waitcnt lgkmcnt(8)')
        FA = ET; FB = ET + 2
        for qt in range(2):
            m = ET + 4 + qt
            a('v_min_f32 v%d, v%d, v%d' % (m, NM + qt, O + 2 + qt))
            a('v_sub_f32 v%d, v%d, v%d' % (FA + qt, m, NM + qt)); a('v_sub_f32 v%d, v%d, v%d' % (FB + qt, m, O + 2 + qt))
            a('v_exp_f32 v%d, v%d' % (FA + qt, FA + qt)); a('v_exp_f32 v%d, v%d' % (FB + qt, FB + qt))
            a('v_mul_f32 v%d, v%d, v%d' % (m, L + qt, FA + qt)); a('v_fmac_f32 v%d, v%d, v%d' % (m, O + qt, FB + qt))
            a('v_rcp_f32 v%d, v%d' % (m, m))
            a('v_mul_f32 v%d, v%d, v%d' % (FA + qt, FA + qt, m)); a('v_mul_f32 v%d, v%d, v%d' % (FB + qt, FB + qt, m))
        for f in range(8):
            for r in range(4): a('v_mul_f32 v%d, v%d, v%d' % (keep + 4 * f + r, keep + 4 * f + r, FA + (f & 1)))
        for s2 in range(2):
            for qt in range(2):
                o = FR + (s2 * 2 + qt) * 4
                for h2 in range(2):
                    f = (2 * s2 + h2) * 2 + qt
                    a('s_waitcnt lgkmcnt(%d)' % max(0, 7 - f))
                    for r in range(4): a('v_fmac_f32 v%d, v%d, v%d' % (keep + 4 * f + r, send + 4 * f + r, FB + qt))
                    for r in range(2): a('v_cvt_pk_bf16_f32 v%d, v%d, v%d' % (o + 2 * h2 + r, keep + 4 * f + 2 * r, keep + 4 * f + 2 * r + 1))
                a('buffer_store_dwordx4 %s, v%d, %s, s%d offen offset:%d sc1' % (vr(o, 4), vL16, sr(sCT, 4), sCtB + qt, (2 * hw + s2) * 1024))
    merge(a, 0)
    a('s_branch k2_fin')
    a.label('k2_mh')
    merge(a, 1)
    a.label('k2_fin')
    if dbg:
        ts(a, 62); a('s_waitcnt vmcnt(0)'); ts(a, 63); tsr(a, 61)
        ts_store(a, 1, 3, 64, 32, 'k2_ts')
    a.label('k2_end')
    a('s_endpgm')
    a.extend(tail.lines)
    return dict(name=N, grid=256, block=512, lds=163840, asm=a, nvgpr=256, accum=256)

if __name__ == '__main__':
    import sys
    from k1 import gen_k1
    d = int(sys.argv[1]) if len(sys.argv) > 1 else 1
    X = sys.argv[2].split(',') if len(sys.argv) > 2 else []
    open('k2%s.s' % ''.join('_' + x for x in X), 'w').write(build_file([delay_kernel(), gen_k1(1), gen_k2(d, X)]))
```

```python
from common import *
from k1 import MF

def gen_k3(dbg=0, X=()):
    a = Asm(); N = 'k3_kernel'
    SP = 36864
    vD0, vD1, vD2, vD3 = 2, 3, 4, 5
    vT = 8; vG2 = 12; vF = 13; vO = 15
    FS = (16, 52); ACC = 88; TMP = 168
    sT, sF, sOut, sP, sXa, sDs = 4, 8, 12, 16, 20, 24
    sKind, sRb, sCb, sGrp, sRh, sCh = 28, 29, 30, 31, 34, 35
    sTo, sFo, sM0, sM1, sM2, sDl, sCnt, sO, sPo, sXo = 36, 37, 38, 39, 40, 41, 42, 44, 48, 50
    a('s_cmp_ge_u32 s2, 256'); a('s_cbranch_scc1 k3_end')
    a('s_load_dwordx8 s[64:71], s[0:1], 112')
    a('s_load_dwordx2 s[72:73], s[0:1], 0')
    a('s_load_dwordx2 s[74:75], s[0:1], 64')
    a('v_lshrrev_b32 v2, 6, v0'); a('v_readfirstlane_b32 s3, v2')
    a('v_and_b32 v1, 63, v0')
    a('s_bfe_u32 s%d, s2, 0x20001' % sKind)
    a('s_and_b32 s32, s2, 1'); a('s_lshl_b32 s32, s32, 3'); a('s_lshr_b32 s33, s2, 5'); a('s_add_u32 s%d, s32, s33' % sRb)
    a('s_bfe_u32 s%d, s2, 0x20003' % sCb)
    a('s_lshr_b32 s%d, s3, 2' % sGrp); a('s_bfe_u32 s%d, s3, 0x10001' % sRh); a('s_and_b32 s%d, s3, 1' % sCh)
    a('v_lshrrev_b32 v32, 3, v1'); a('s_lshl_b32 s32, s3, 3'); a('v_add_u32 v32, s32, v32')
    a('v_lshrrev_b32 v34, 4, v1')
    a('v_and_b32 v33, 7, v1'); a('v_lshlrev_b32 v35, 1, v34'); a('v_xor_b32 v33, v33, v35'); a('v_lshlrev_b32 v33, 4, v33')
    a('s_lshl_b32 s%d, s3, 10' % sM0)
    a('s_mov_b32 s%d, 0x%x' % (sDl, 2 * SP))
    a('s_cmp_eq_u32 s%d, 3' % sKind); a('s_cbranch_scc1 k3_y')

    def acc(c, q): return ACC + (q * 5 + c) * 4

    def path(a, isy):
        P = 'k3y' if isy else 'k3o'
        vm = VM()
        if not isy:
            a('s_mul_i32 s32, s%d, 320' % sCb); a('s_and_b32 s33, s%d, 1' % sCb); a('s_lshl_b32 s52, s33, 6'); a('s_add_u32 s52, s52, s32')
            a('s_xor_b32 s33, s33, 1'); a('s_lshl_b32 s53, s33, 8'); a('s_add_u32 s53, s53, s32')
            a('v_mul_u32_u24 v32, 1280, v32'); a('v_add3_u32 v%d, v32, v33, s52' % vD0)
            a('v_lshrrev_b32 v32, 2, v1'); a('s_lshl_b32 s32, s3, 3'); a('v_add_u32 v32, s32, v32'); a('v_mul_u32_u24 v32, 1280, v32')
            a('v_and_b32 v33, 3, v1'); a('v_and_b32 v35, 2, v35'); a('v_xor_b32 v33, v33, v35'); a('v_lshlrev_b32 v33, 4, v33')
            a('v_add3_u32 v%d, v32, v33, s53' % vD2)
            a('v_lshlrev_b32 v%d, 4, v1' % vD1)
            a('s_mul_i32 s32, s%d, 44' % sKind)
            a('s_mul_i32 s%d, s32, 40960' % sTo)
            a('s_lshl_b32 s33, s%d, 3' % sRb); a('s_add_u32 s33, s33, s3'); a('s_lshl_b32 s33, s33, 7'); a('s_add_u32 s33, s33, s32'); a('s_lshl_b32 s%d, s33, 10' % sFo)
            a('s_lshl_b32 s%d, s3, 11' % sM1); a('s_add_u32 s%d, s%d, 16384' % (sM1, sM1))
            a('s_lshl_b32 s%d, s3, 9' % sM2); a('s_add_u32 s%d, s%d, 32768' % (sM2, sM2))
            a('s_cmp_eq_u32 s%d, 2' % sKind); a('s_cselect_b32 s%d, 8, 9' % sCnt)
            a('s_waitcnt lgkmcnt(0)')
            if dbg: ts(a, 0); tsr(a, 60)
            mk_srd(a, sT, 64, 4096 * 1280); mk_srd(a, sF, 70, 16 << 20, WS_CTX)
        else:
            a('v_lshlrev_b32 v32, 12, v32'); a('s_lshl_b32 s32, s%d, 8' % sRb); a('v_add3_u32 v%d, v32, v33, s32' % vD0)
            a('s_mul_i32 s32, s3, 160'); a('s_mul_i32 s33, s%d, 10' % sCb)
            for n in range(3):
                a('v_add_u32 v32, %s, v1' % ('s32' if n == 0 else '64')) if n == 0 else a('v_add_u32 v32, 64, v32')
                a('v_lshrrev_b32 v33, 7, v32'); a('v_add_u32 v33, s33, v33')
                a('v_lshrrev_b32 v35, 3, v33'); a('v_mul_u32_u24 v35, 0x%x, v35' % 327680)
                a('v_and_b32 v33, 7, v33'); a('v_lshl_add_u32 v35, v33, 12, v35')
                a('v_and_b32 v33, 127, v32'); a('v_lshl_add_u32 v35, v33, 4, v35')
                a('v_subrev_u32 v%d, %d, v35' % (vD1 + n, 1024 * n)) if n else a('v_mov_b32 v%d, v35' % vD1)
            a('s_mov_b32 s%d, 0' % sTo); a('s_mov_b32 s%d, 0' % sFo)
            a('s_mul_i32 s%d, s3, 2560' % sM1); a('s_add_u32 s%d, s%d, 16384' % (sM1, sM1))
            a('s_mov_b32 s%d, 8' % sCnt)
            a('s_waitcnt lgkmcnt(0)')
            if dbg: ts(a, 0); tsr(a, 60)
            mk_srd(a, sT, 70, 1280 * 4096, WS_HT); mk_srd(a, sF, 70, 1600 * 1024, WS_CC)
        def dma(e):
            o = e * SP
            ld = lambda v, srd, so, off: 'buffer_load_dwordx4 v%d, %s, s%d offen offset:%d lds' % (v, sr(srd, 4), so, off)
            L = ['s_add_u32 m0, s%d, 0x%x\n' % (sM0, o) + ld(vD0, sT, sTo, 0),
                 's_add_u32 m0, s%d, 0x%x\n' % (sM0, o + 8192 - 128) + ld(vD0, sT, sTo, 128)]
            if not isy:
                L += ['s_add_u32 m0, s%d, 0x%x\n' % (sM1, o) + ld(vD1, sF, sFo, 0),
                      ld(vD1, sF, sFo, 1024) + '\ns_add_u32 s%d, s%d, 2048' % (sFo, sFo),
                      's_add_u32 m0, s%d, 0x%x\ns_mov_b32 exec_hi, 0\n' % (sM2, o) + ld(vD2, sT, sTo, 0) + '\ns_mov_b32 exec_hi, -1\ns_add_u32 s%d, s%d, 81920' % (sTo, sTo)]
            else:
                L[1] += '\ns_add_u32 s%d, s%d, 0x40000' % (sTo, sTo)
                L += ['s_add_u32 m0, s%d, 0x%x\n' % (sM1, o) + ld(vD1, sF, sFo, 0),
                      ld(vD2, sF, sFo, 1024),
                      's_mov_b32 exec_hi, 0\n' + ld(vD3, sF, sFo, 2048) + '\ns_mov_b32 exec_hi, -1\ns_add_u32 s%d, s%d, %d' % (sFo, sFo, 30720 if e else 2048)]
            return L
        mtog = ['s_add_u32 s%d, s%d, s%d' % (s, s, sDl) for s in ((sM0, sM1) if isy else (sM0, sM1, sM2))] + ['s_sub_u32 s%d, 0, s%d' % (sDl, sDl)]
        for s in range(4):
            a.extend(dma(s & 1))
            if s & 1: a.extend(mtog)
        sG = sRh if isy else sCh
        a('v_lshrrev_b32 v32, 2, v1'); a('v_and_b32 v33, 3, v1'); a('v_lshlrev_b32 v33, 3, v33')
        a('s_lshl_b32 s32, s%d, 13' % sG); a('s_lshl_b32 s33, s%d, 12' % sGrp); a('s_add_u32 s32, s32, s33')
        a('v_lshl_add_u32 v35, v32, 7, v33'); a('v_add_u32 v35, s32, v35')
        a('v_bfe_u32 v36, v1, 3, 2')
        if isy: a('s_lshl_b32 s33, s%d, 1' % sGrp); a('v_xor_b32 v36, s33, v36')
        for c in range(4):
            a('v_xor_b32 v37, %d, v36' % c); a('v_lshl_add_u32 v%d, v37, 5, v35' % (vT + c))
        a('v_lshlrev_b32 v37, 4, v1')
        if not isy:
            a('v_lshl_add_u32 v35, v32, 6, v33'); a('v_and_b32 v36, 1, v34'); a('v_xor_b32 v36, s%d, v36' % sCh); a('v_lshl_add_u32 v35, v36, 5, v35')
            a('s_lshl_b32 s32, s%d, 11' % sGrp); a('s_add_u32 s32, s32, 32768'); a('v_add_u32 v%d, s32, v35' % vG2)
            a('s_lshl_b32 s32, s%d, 13' % sRh); a('s_mul_i32 s33, s%d, 5120' % sGrp); a('s_add_u32 s32, s32, s33'); a('s_add_u32 s32, s32, 16384')
            a('v_add_u32 v%d, s32, v37' % vF); a('v_xor_b32 v%d, 0x1000, v%d' % (vF + 1, vF))
            AR = [vT, vT + 1, vT + 2, vT + 3, vG2, vF, vF + 1]
        else:
            a('s_mul_i32 s32, s%d, 10240' % sCh); a('s_lshl_b32 s33, s%d, 10' % sGrp); a('s_add_u32 s32, s32, s33'); a('s_add_u32 s32, s32, 16384')
            a('v_add_u32 v%d, s32, v37' % vF)
            AR = [vT, vT + 1, vT + 2, vT + 3, vF]
        a('v_and_b32 v36, 15, v1'); a('v_mul_u32_u24 v35, 5120, v36'); a('v_lshl_add_u32 v%d, v34, 4, v35' % vO)
        a('s_lshl_b32 s32, s%d, 2' % sRb); a('s_lshl_b32 s33, s%d, 1' % sRh); a('s_add_u32 s32, s32, s33'); a('s_add_u32 s32, s32, s%d' % sGrp)
        a('s_mul_i32 s54, s32, 0x%x' % (32 * 5120))
        if not isy:
            a('s_lshl_b32 s33, s%d, 7' % sCh); a('s_add_u32 s33, s33, s52'); a('s_lshl_b32 s33, s33, 1'); a('s_add_u32 s%d, s54, s33' % sO)
            a('s_lshl_b32 s33, s%d, 5' % sCh); a('s_add_u32 s33, s33, s53'); a('s_lshl_b32 s33, s33, 1'); a('s_add_u32 s%d, s54, s33' % (sO + 1))
            for k in range(2): a('s_add_u32 s%d, s%d, 2560' % (sO + k, sO + k))
            mk_srd(a, sP, 70, (8 << 20) + 8192, WS_PART)
            a('s_lshl_b32 s32, s%d, 2' % sRb); a('s_add_u32 s32, s32, s%d' % sCb); a('s_lshl_b32 s32, s32, 3'); a('s_add_u32 s32, s32, s3')
            a('s_mul_i32 s%d, s32, 15360' % sPo); a('s_lshl_b32 s32, s32, 4'); a('s_add_u32 s%d, s32, 0x%x' % (sPo + 1, 8 << 20))
        else:
            a('s_lshl_b32 s33, s%d, 1' % sCb); a('s_add_u32 s33, s33, s%d' % sCh); a('s_mul_i32 s55, s33, 160')
            a('s_lshl_b32 s33, s55, 1'); a('s_add_u32 s%d, s54, s33' % sO); a('s_add_u32 s%d, s%d, 256' % (sO + 1, sO))
            a('s_mul_i32 s32, s32, 0x%x' % (32 * 1280)); a('s_add_u32 s%d, s32, s55' % sXo); a('s_add_u32 s%d, s%d, 20480' % (sXo + 1, sXo))
            mk_srd(a, sXa, 72, 2048 * 1280); mk_srd(a, sDs, 74, 1280)
            a('v_mul_u32_u24 v35, 1280, v36'); a('v_lshl_add_u32 v6, v34, 3, v35'); a('v_lshlrev_b32 v7, 3, v34')
        for k in range(2): a('s_add_u32 s%d, s%d, 81920' % (sO + 2 + k, sO + k))
        mk_srd(a, sOut, 66, 2048 * 5120)
        for r in range(80): a('v_mov_b32 v%d, 0' % (ACC + r))
        def reads(e, fs):
            o = e * SP
            F = FS[fs]
            tr = lambda d, ad, off: 'ds_read_b64_tr_b16 %s, v%d offset:%d' % (vr(d, 2), ad, off)
            if not isy:
                L = ['ds_read_b128 %s, v%d offset:%d' % (vr(F + 4 * q, 4), vF + (q >> 1), o + (q & 1) * 2048) for q in range(4)]
                for c in range(5):
                    for hf in range(2):
                        L.append(tr(F + 16 + 4 * c + 2 * hf, vT + c if c < 4 else vG2, o + hf * (2048 if c < 4 else 1024)))
            else:
                L = ['ds_read_b128 %s, v%d offset:%d' % (vr(F + 16 + 4 * c, 4), vF, o + c * 2048) for c in range(5)]
                for q in range(4):
                    for hf in range(2):
                        L.append(tr(F + 4 * q + 2 * hf, vT + q, o + hf * 2048))
            return L
        XR = TMP; DR = TMP + 20
        def stage(a, e, dodma, vmc, last=False, extra=None):
            S = Sched()
            F = FS[e]
            order = [(c, q) for q in range(4) for c in range(5)] if isy else [(c, q) for c in range(5) for q in range(4)]
            for c, q in order:
                d = vr(acc(c, q), 4)
                S.mfma(MF % (d, vr(F + 16 + 4 * c, 4), vr(F + 4 * q, 4), d))
            S.add_pre(0, 's_waitcnt lgkmcnt(%d)' % (6 if isy else 8))
            if last:
                S.add_pre(4, 's_waitcnt lgkmcnt(0)')
            else:
                if e == 1: S.spread(['v_add_u32 v%d, s%d, v%d' % (r, sDl, r) for r in AR], 0, 4)
                S.add_pre(4, 's_waitcnt vmcnt(%d) lgkmcnt(0)\ns_barrier' % vmc)
                S.spread(reads(1 - e, 1 - e), 4, 19)
                if dodma:
                    for g, t in zip((5, 8, 11, 14, 17), dma(e)): S.add_post(g, t)
                if e == 1: S.spread(mtog, 18, 20)
            if extra: S.spread(extra, 6, 18)
            S.emit(a, 0, 20)
        a('s_waitcnt vmcnt(15)'); a('s_barrier')
        if dbg: ts(a, 1)
        a.extend(reads(0, 0))
        a.label(P + '_loop')
        stage(a, 0, True, 10); stage(a, 1, True, 10)
        a('s_sub_u32 s%d, s%d, 1' % (sCnt, sCnt)); a('s_cmp_lg_u32 s%d, 0' % sCnt); a('s_cbranch_scc1 %s_loop' % P)
        ex = None
        if isy:
            ex = ['buffer_load_dwordx2 %s, v7, %s, s55 offen offset:%d' % (vr(DR + 2 * c, 2), sr(sDs, 4), 32 * c) for c in range(5)]
            ex += ['buffer_load_dwordx2 %s, v6, %s, s%d offen offset:%d' % (vr(XR + (q * 5 + c) * 2, 2), sr(sXa, 4), sXo + q, 32 * c) for q in range(2) for c in range(5)]
        stage(a, 0, False, 10); stage(a, 1, False, 5); stage(a, 0, False, 0, extra=ex); stage(a, 1, False, 0, last=True)
        if dbg: ts(a, 2)
        a('s_mul_i32 s32, s3, 10240'); a('v_lshlrev_b32 v%d, 4, v1' % vD1); a('v_add_u32 v2, s32, v%d' % vD1)
        a('s_xor_b32 s33, s3, 4'); a('s_mul_i32 s33, s33, 10240'); a('v_add_u32 v4, s33, v%d' % vD1)
        a('s_barrier')
        for f in range(10): a('ds_write_b128 v2, %s offset:%d' % (vr(ACC + 40 + 4 * f, 4), f * 1024))
        a('s_waitcnt lgkmcnt(0)'); a('s_barrier')
        for f in range(10): a('ds_read_b128 %s, v4 offset:%d' % (vr(ACC + 40 + 4 * f, 4), f * 1024))
        def ost(c, q):
            return 'buffer_store_dwordx4 %s, v%d, %s, s%d offen offset:%d' % (vr(acc(c, q), 4), vO, sr(sOut, 4), sO + 2 * q + (c >> 2), 64 * (c & 3))
        if isy:
            a('s_waitcnt vmcnt(0)')
            E = FS[0]
            for c in range(5):
                for k in range(2):
                    a('v_lshlrev_b32 v%d, 16, v%d' % (E + 4 * c + 2 * k, DR + 2 * c + k)); a('v_and_b32 v%d, 0xffff0000, v%d' % (E + 4 * c + 2 * k + 1, DR + 2 * c + k))
            for f in range(10):
                q, c = f // 5, f % 5
                t = E + 24 + 4 * (f & 1)
                for k in range(2):
                    a('v_lshlrev_b32 v%d, 16, v%d' % (t + 2 * k, XR + 2 * f + k)); a('v_and_b32 v%d, 0xffff0000, v%d' % (t + 2 * k + 1, XR + 2 * f + k))
                for r in range(4): a('v_mul_f32 v%d, v%d, v%d' % (t + r, t + r, E + 4 * c + r))
                for k in range(2): a('v_cvt_pk_bf16_f32 v%d, v%d, v%d' % (t + 2 * k + 1, t + 2 * k, t + 2 * k + 1))
                for k in range(2):
                    a('v_lshlrev_b32 v%d, 16, v%d' % (t + 2 * k, t + 2 * k + 1)); a('v_and_b32 v%d, 0xffff0000, v%d' % (t + 2 * k + 1, t + 2 * k + 1))
                a('s_waitcnt lgkmcnt(%d)' % (9 - f))
                for r in range(4): a('v_add_f32 v%d, v%d, v%d' % (ACC + 4 * f + r, ACC + 4 * f + r, ACC + 40 + 4 * f + r))
                for r in range(4): a('v_add_f32 v%d, v%d, v%d' % (ACC + 4 * f + r, ACC + 4 * f + r, t + r))
                a(ost(c, q))
            return
        for f in range(10):
            a('s_waitcnt lgkmcnt(%d)' % (9 - f))
            for r in range(4): a('v_add_f32 v%d, v%d, v%d' % (ACC + 4 * f + r, ACC + 4 * f + r, ACC + 40 + 4 * f + r))
        own = ((0, 1), (2, 3), (4,))
        a('v_mov_b32 v4, 0'); a('v_mov_b32 v5, 1')
        a('s_cmp_eq_u32 s%d, 1' % sKind); a('s_cbranch_scc1 k3_r1')
        a('s_cmp_eq_u32 s%d, 2' % sKind); a('s_cbranch_scc1 k3_r2')
        for role in range(3):
            a.label('k3_r%d' % role)
            E = FS[0]
            a('s_add_u32 s32, s%d, %d' % (sPo, role * 5120))
            a('s_add_u32 s33, s32, 4096')
            for c in range(5):
                if c in own[role]: continue
                o = E + 4 * c
                for q in range(2):
                    for k in range(2): a('v_cvt_pk_bf16_f32 v%d, v%d, v%d' % (o + 2 * q + k, acc(c, q) + 2 * k, acc(c, q) + 2 * k + 1))
                a('buffer_store_dwordx4 %s, v%d, %s, s%d offen offset:%d sc1' % (vr(o, 4), vD1, sr(sP, 4), 32 + (c >> 2), (c & 3) * 1024))
            a('s_waitcnt vmcnt(0)')
            a('s_mov_b64 exec, 1')
            a('buffer_store_dword v5, v4, %s, s%d offen offset:%d sc1' % (sr(sP, 4), sPo + 1, role * 4))
            if dbg: ts(a, 3)
            a.label('k3_poll%d' % role)
            a('buffer_load_dwordx4 %s, v4, %s, s%d offen sc1' % (vr(8, 4), sr(sP, 4), sPo + 1))
            a('s_waitcnt vmcnt(0)')
            o1, o2 = [r for r in range(3) if r != role]
            a('v_and_b32 v8, v%d, v%d' % (8 + o1, 8 + o2)); a('v_readfirstlane_b32 s32, v8')
            a('s_cmp_eq_u32 s32, 1'); a('s_cbranch_scc0 k3_poll%d' % role)
            a('s_mov_b64 exec, -1')
            if dbg: ts(a, 4)
            n = 0
            for c in own[role]:
                for sr_ in (o1, o2):
                    a('s_add_u32 s32, s%d, %d' % (sPo, sr_ * 5120 + c * 1024))
                    a('buffer_load_dwordx4 %s, v%d, %s, s32 offen sc1' % (vr(E + 4 * n, 4), vD1, sr(sP, 4))); n += 1
            tot = n; n = 0
            for c in own[role]:
                for sr_ in (o1, o2):
                    a('s_waitcnt vmcnt(%d)' % (tot - 1 - n + 2 * (n >> 1)))
                    t = E + 20
                    for q in range(2):
                        for k in range(2):
                            a('v_lshlrev_b32 v%d, 16, v%d' % (t + 4 * q + 2 * k, E + 4 * n + 2 * q + k)); a('v_and_b32 v%d, 0xffff0000, v%d' % (t + 4 * q + 2 * k + 1, E + 4 * n + 2 * q + k))
                    for q in range(2):
                        for r in range(4): a('v_add_f32 v%d, v%d, v%d' % (acc(c, q) + r, acc(c, q) + r, t + 4 * q + r))
                    n += 1
                for q in range(2): a(ost(c, q))
            a('s_branch k3_fin')

    path(a, False)
    a.label('k3_y')
    path(a, True)
    a.label('k3_fin')
    if dbg:
        ts(a, 62); a('s_waitcnt vmcnt(0)'); ts(a, 63); tsr(a, 61)
        ts_store(a, 2, 3, 64, 32, 'k3_ts')
    a.label('k3_end')
    a('s_endpgm')
    return dict(name=N, grid=256, block=512, lds=4 * SP, asm=a, nvgpr=200, accum=200)

if __name__ == '__main__':
    import sys
    from k1 import gen_k1
    from k2 import gen_k2
    d = int(sys.argv[1]) if len(sys.argv) > 1 else 1
    if d:
        open('k3.s', 'w').write(build_file([delay_kernel(), gen_k1(1), gen_k2(1), gen_k3(d)]))
    else:
        open('concat_heads__ssm_conv_s5__compressed_kv_cla__prompt.s', 'w').write(build_file([gen_k1(0), gen_k2(0), gen_k3(0)]))
```

```python
from f_front import *
PUB = 131072; XL = 159744
vK, vV, T0, T1, L, NM, BS = 3, 4, 6, 7, 8, 10, 12
ET = 16; TMP = 24; SS = 160; PP = 192; C = 208; QB = 224
sCT = 4
NINF = '0xff800000'
def tile(qt, dt): return ACC + (dt * 2 + qt) * 4
def qf(s, qt): return Q + (s * 2 + qt) * 4
def pub_w0(t, val, lbl, va=T0, vb=T1):
    t('s_cmp_lg_u32 s3, 0'); t('s_cbranch_scc1 %s' % lbl)
    t('s_lshl_b32 s32, s%d, 3' % sH); t('s_add_u32 s32, s32, s%d' % sI)
    t('v_lshl_add_u32 v%d, v%d, 4, s32' % (vb, vL16)); t('v_mov_b32 v%d, %s' % (va, val))
    t('buffer_store_byte v%d, v%d, %s, 0 offen sc1' % (va, vb, sr(sDB, 4)))
    t.label(lbl)

def attention(a, tail, dbg, hook15=None, hook16=None, post_bar=None, post16=None):
    a('s_and_b32 s32, s3, 3'); a('s_lshl_b32 s32, s32, 13'); a('s_add_u32 s32, s32, 0x%x' % WR); a('v_add_u32 v%d, s32, v%d' % (T0, vL16))
    a('s_cmp_ge_u32 s3, 4'); a('s_cbranch_scc1 k2_nopub')
    for f in range(8): a('ds_write_b128 v%d, %s offset:%d' % (T0, vr(Q + 4 * f, 4), f * 1024))
    a.label('k2_nopub')
    for r in range(64): a('v_mov_b32 v%d, 0' % (ACC + r))
    for r in range(16): a('v_mov_b32 v%d, 0' % (C + r))
    a('v_mov_b32 v%d, 0' % L); a('v_mov_b32 v%d, 0' % (L + 1)); a('v_mov_b32 v%d, v%d' % (vK, vL16))
    a('v_and_b32 v32, 15, v1'); a('v_lshrrev_b32 v33, 4, v1'); a('v_lshlrev_b32 v33, 2, v33')
    for r in range(4):
        a('v_add_u32 v35, %d, v33' % r); a('v_cmp_gt_u32 %s, v35, v32' % sr(sMsk + 2 * r, 2))
    a('s_and_b32 s32, s3, 3'); a('s_lshl_b32 s32, s32, 9'); a('s_add_u32 s32, s32, 0x%x' % PUB)
    a('v_lshl_add_u32 v%d, v1, 3, s32' % vPub)
    mk_srd(a, sCT, P['ws'], 16 << 20, WS_CTX)
    a('s_waitcnt lgkmcnt(0)'); a('s_barrier')
    pub_w0(a, 3, 'f_pub3', 32, 33)
    if dbg: ts(a, 42)

    def st(b, kt, qt): return SS + b * 16 + (kt * 2 + qt) * 4
    def ct(kt, qt): return C + (kt * 2 + qt) * 4
    def pf(b, qt): return PP + b * 8 + qt * 4
    def sm_items(b):
        o = []
        for p in range(8):
            kt, qt, hf = p >> 2, (p >> 1) & 1, p & 1
            sreg = st(b, kt, qt) + 2 * hf; e = ET + 2 * (p & 3); G = 10 + 4 * p; bs = BS + 2 * b + qt
            o += [(G, 'v_exp_f32 v%d, v%d' % (e, sreg)), (G + 2, 'v_exp_f32 v%d, v%d' % (e + 1, sreg + 1)),
                  (G + 3, cvt(pf(b, qt) + 2 * kt + hf, e, e + 1))]
            if p in (0, 2): o += [(G + 4, 'v_add_f32 v%d, v%d, v%d' % (bs, e, e + 1))]
            else: o += [(G + 4, 'v_add_f32 v%d, v%d, v%d' % (e, e, e + 1)), (G + 5, 'v_add_f32 v%d, v%d, v%d' % (bs, bs, e))]
        o.sort(key=lambda x: x[0])
        return o
    def sm(b, lo, hi): return [t for g, t in sm_items(b) if lo <= g < hi]
    def xg(op, x, t):
        return ['v_mov_b32 v%d, v%d' % (t, x), 'v_permlane16_swap_b32 v%d, v%d' % (x, t), '%s v%d, v%d, v%d' % (op, x, x, t),
                'v_mov_b32 v%d, v%d' % (t, x), 'v_permlane32_swap_b32 v%d, v%d' % (x, t), '%s v%d, v%d, v%d' % (op, x, x, t)]
    def blockmax(b, qt, x, t):
        s0, s1 = st(b, 0, qt), st(b, 1, qt)
        return ['v_max3_f32 v%d, v%d, v%d, v%d' % (x, s0, s0 + 1, s0 + 2), 'v_max3_f32 v%d, v%d, v%d, v%d' % (t, s0 + 3, s1, s1 + 1),
                'v_max3_f32 v%d, v%d, v%d, v%d' % (x, x, s1 + 2, s1 + 3), 'v_max_f32 v%d, v%d, v%d' % (x, x, t)] + xg('v_max_f32', x, t)
    def patch(name, sreg):
        t = tail
        t.label(name)
        t('s_cmp_eq_u32 %s, s%d' % (sreg, sD)); t('s_cbranch_scc1 %s_tri' % name)
        for r in range(16): t('v_mov_b32 v%d, %s' % (C + r, NINF))
        t('s_branch %s_ret' % name)
        t.label(name + '_tri')
        t('v_mov_b32 v%d, %s' % (T0, NINF))
        for r in range(4):
            t('v_mov_b32 v%d, %s' % (ct(1, 0) + r, NINF))
            for k in range(2): t('v_cndmask_b32 v%d, v%d, v%d, %s' % (ct(k, k) + r, ct(k, k) + r, T0, sr(sMsk + 2 * r, 2)))
        t('s_branch %s_ret' % name)
        return ['s_cmp_ge_u32 %s, s%d' % (sreg, sD), 's_cbranch_scc1 %s\n%s_ret:' % (name, name)]
    def slow(name, b, bnd=False):
        t = tail
        t.label(name)
        ND = TMP; F = TMP + 2
        for qt in range(2):
            t.extend(blockmax(b, qt, ND + qt, TMP + 4 + qt))
            t('v_max_f32 v%d, 0, v%d' % (ND + qt, ND + qt)); t('v_xor_b32 v%d, 0x80000000, v%d' % (ND + qt, ND + qt))
            t('v_exp_f32 v%d, v%d' % (F + qt, ND + qt))
        for kt in range(2):
            for qt in range(2):
                for r in range(4): t('v_add_f32 v%d, v%d, v%d' % (st(b, kt, qt) + r, st(b, kt, qt) + r, ND + qt))
        for dt in range(8):
            for qt in range(2):
                for r in range(4): t('v_mul_f32 v%d, v%d, v%d' % (tile(qt, dt) + r, tile(qt, dt) + r, F + qt))
        for qt in range(2):
            t('v_mul_f32 v%d, v%d, v%d' % (L + qt, L + qt, F + qt))
        t.extend(sm(b, 0, 99))
        if bnd: t('s_cmp_ge_u32 s3, 4'); t('s_cbranch_scc1 %s_r2' % name)
        for kt in range(2):
            for qt in range(2):
                for r in range(4):
                    t('v_add_f32 v%d, v%d, v%d' % (st(1 - b, kt, qt) + r, st(1 - b, kt, qt) + r, ND + qt))
                    t('v_add_f32 v%d, v%d, v%d' % (ct(kt, qt) + r, ct(kt, qt) + r, ND + qt))
        for qt in range(2): t('v_add_f32 v%d, v%d, v%d' % (NM + qt, NM + qt, ND + qt))
        t.label(name + '_r2')
        t.extend(sm(1 - b, 0, 16))
        t('s_branch %s_ret' % name)
        return (['v_add_f32 v%d, v%d, v%d' % (T1, BS + 2 * b, BS + 2 * b + 1), 'v_cmp_nge_f32 vcc, s%d, v%d' % (sThr, T1)], 's_cbranch_vccnz %s\n%s_ret:' % (name, name))
    def ladd(b): return ['v_add_f32 v%d, v%d, v%d' % (L + qt, L + qt, BS + 2 * b + qt) for qt in range(2)]
    def qk(b, s, kt, qt):
        d = vr(st(b, kt, qt), 4)
        return MF % (d, vr(FR + (kt * 4 + s) * 4, 4), vr(qf(s, qt), 4), vr(ct(kt, qt), 4) if s == 0 else d)
    def pv(b, dt, qt):
        d = vr(tile(qt, dt), 4)
        return MF % (d, vr(FR + dt * 4, 4), vr(pf(b, qt), 4), d)
    def rdtxt(isK, b, f):
        return 'ds_read_b128 %s, v%d offset:%d' % (vr(FR + 4 * f, 4), vK if isK else vV, b * 8192 + f * 1024)

    t = tail
    t.label('f_hook')
    t('s_cmp_ge_u32 s%d, s%d' % (sRdy, sLim)); t('s_cbranch_scc1 f_hk_kv')
    t.extend(rdy_calc(vFl))
    t('s_add_u32 s%d, s%d, 0x10000' % (sPub, sKsrc)); t('s_min_u32 s%d, s%d, s%d' % (sPub, sPub, sLim))
    t('s_cmp_ge_u32 s%d, s%d' % (sRdy, sPub)); t('s_cbranch_scc1 f_hk_ok')
    t('s_mov_b32 vcc_lo, %d' % SPIN)
    t.label('f_hk_l')
    t('s_sleep 8'); t(rdy_load(vFl, T0)); t('s_waitcnt vmcnt(0)'); t.extend(rdy_calc(vFl))
    t('s_cmp_ge_u32 s%d, s%d' % (sRdy, sPub)); t('s_cbranch_scc1 f_hk_ok')
    t('s_sub_u32 vcc_lo, vcc_lo, 1'); t('s_cmp_lg_u32 vcc_lo, 0'); t('s_cbranch_scc1 f_hk_l')
    t.label('f_hk_ok')
    t('s_cmp_ge_u32 s%d, s%d' % (sRdy, sLim)); t('s_cbranch_scc1 f_hk_kv')
    t('s_sub_u32 s32, s%d, s%d' % (sRdy, sKsrc)); t('s_lshr_b32 s32, s32, 16'); t('s_sub_u32 s32, s32, 2'); t('s_max_i32 s32, s32, 1')
    t('s_add_u32 s33, s%d, s32' % sJ); t('s_bitset1_b32 s%d, s33' % sHook)
    t('s_cmp_gt_u32 s32, 1'); t('s_cbranch_scc1 f_hk_kv')
    t(rdy_load(vFl, T0))
    t.label('f_hk_kv')
    if hook15:
        t('s_cmp_lg_u32 s%d, 15' % sJ); t('s_cbranch_scc1 f_hk_15'); hook15(t); t.label('f_hk_15')
    if hook16:
        t('s_cmp_lg_u32 s%d, 16' % sJ); t('s_cbranch_scc1 f_hk_16'); hook16(t); t.label('f_hk_16')
    t('s_nop 4')
    t('s_setpc_b64 s[100:101]')

    for f in range(8): a(rdtxt(True, 0, f))
    a('s_cmp_lt_u32 s3, 4'); a('s_cbranch_scc1 k2_noqb')
    for f in range(8): a('ds_read_b128 %s, v%d offset:%d' % (vr(QB + 4 * f, 4), T0, f * 1024))
    a.label('k2_noqb')
    a.extend(patch('k2_p0', 's%d' % sN))
    a('s_waitcnt lgkmcnt(0)')
    for kt in range(2):
        for s in range(4):
            for qt in range(2): a(qk(0, s, kt, qt))
            a(rdtxt(True, 1, kt * 4 + s))
    for qt in range(2):
        a.extend(blockmax(0, qt, NM + qt, TMP + qt)); a('v_xor_b32 v%d, 0x80000000, v%d' % (NM + qt, NM + qt))
    a('s_cmp_ge_u32 s3, 4'); a('s_cbranch_scc1 k2_nopub2')
    a('ds_write_b64 v%d, %s' % (vPub, vr(NM, 2)))
    a.label('k2_nopub2')
    for qt in range(2):
        for kt in range(2):
            for r in range(4): a('v_add_f32 v%d, v%d, v%d' % (st(0, kt, qt) + r, st(0, kt, qt) + r, NM + qt))
    a.extend(sm(0, 0, 32))
    for qt in range(2):
        for kt in range(2):
            for r in range(4): a('v_add_f32 v%d, v%d, v%d' % (ct(kt, qt) + r, ct(kt, qt) + r, NM + qt))
    a('s_mov_b32 s33, 1')
    a.extend(patch('k2_p1', 's33'))
    a('s_waitcnt lgkmcnt(0)')
    a('s_branch k2_h3_1')

    lg = LG(); tagF = {}
    def x2(t):
        for qt in range(2):
            t.extend(xg('v_add_f32', L + qt, TMP + qt)); t('v_rcp_f32 v%d, v%d' % (TMP + 2 + qt, L + qt))
        for qt in range(2): t('v_mov_b32 v%d, 0' % (L + qt))
        t('s_add_u32 s32, s%d, 0x1000' % sCtA)
        for s in range(4):
            for qt in range(2):
                o = QB + (s * 2 + qt) * 4
                for h2 in range(2):
                    d = tile(qt, 2 * s + h2)
                    for r in range(4): t('v_mul_f32 v%d, v%d, v%d' % (d + r, d + r, TMP + 2 + qt))
                    for r in range(2): t(cvt(o + 2 * h2 + r, d + 2 * r, d + 2 * r + 1))
                    for r in range(4): t('v_mov_b32 v%d, 0' % (d + r))
                t('buffer_store_dwordx4 %s, v%d, %s, s%d offen offset:%d sc1' % (vr(o, 4), vL16, sr(sCT, 4), 32 if s >= 2 else sCtA, ((s & 1) * 2 + qt) * 1024))
    gid = [0]
    def unit(isV):
        m0, src = (sVm0, sVsrc) if isV else (sKm0, sKsrc)
        ld = lambda i: 'buffer_load_dwordx4 v%d, %s, s%d offen offset:%d lds' % (vKS, sr(sKV, 4), src, i * 1024)
        pre = ['s_and_b32 m0, s%d, 0xffff' % m0] + (['s_bitset1_b32 m0, 16'] if isV else [])
        o = ['\n'.join(pre + ['s_add_u32 s%d, s%d, 0x4000' % (m0, m0), ld(0)]), ld(1) + '\ns_add_u32 s%d, s%d, 0x8000' % (src, src)]
        if not isV:
            for k in range(2):
                gid[0] += 1
                o[k] = 's_cmp_ge_u32 s%d, s%d\ns_cbranch_scc1 f_g%d\n%s\nf_g%d:' % (sKsrc, sLim, gid[0], o[k], gid[0])
        return o
    def body(a, kind):
        S = Sched()
        def rd(isK, b, f):
            def g(a):
                a(rdtxt(isK, b, f)); tagF[f] = lg.issue()
            return g
        for H in range(4):
            for f in range(8):
                for qt in range(2):
                    i = S.mfma(qk(H >> 1, f & 3, f >> 2, qt) if H % 2 == 0 else pv(1 if H == 1 else 0, f, qt))
                    if qt == 0 and f % 4 == 0: S.add_pre(i, lambda a, f=f: lg.wait_for(a, tagF[f + 3]) if f + 3 in tagF else None)
        S.add_pre(32, 'k2_h3_%s:' % kind)
        def bar(a):
            a('s_waitcnt vmcnt(0) lgkmcnt(0)'); lg.done = lg.n
            a('s_bitcmp0_b32 s%d, s%d' % (sHook, sJ)); a('s_cbranch_scc1 f_hr_%s' % kind)
            a('s_call_b64 s[100:101], f_hook')
            a('f_hr_%s:' % kind)
            a('s_barrier'); a('s_setprio 3')
            if kind == '2' and post16:
                a('s_cmp_eq_u32 s%d, s%d' % (sJ, sJ1)); a('s_cbranch_scc1 f_post16'); a('f_post16_ret:')
        S.add_post(35, bar)
        for q, g in enumerate((61, 17, 29)): S.add_post(g, 's_setprio %d' % (2 - q))
        for f in range(8):
            o = 2 * f + 1
            S.add_post(o, rd(False, 1, f)); S.add_post(16 + o, rd(True, 1, f))
            S.add_post(max(35, 32 + o), rd(False, 0, f)); S.add_post(48 + o, rd(True, 0, f) if kind != 'e' else rd(False, 1, f))
        for b in range(2):
            for g, t in sm_items(b): S.add_post((32 * b + g) % 64, t)
        S.add_post(52, ladd(0)[0]); S.add_post(52, ladd(0)[1])
        if kind == 'e':
            S.emit(a, 48, 64); return
        if kind == 'w':
            S.emit(a, 48, 64); S.emit(a, 0, 48); return
        pa = patch('k2_pa' + kind, 's%d' % sN); pb = patch('k2_pb' + kind, 's33')
        ca, bra = slow('k2_sa' + kind, 0); cb, brb = slow('k2_sb' + kind, 1, kind == '2f')
        S.add_post(48, 's_and_b32 s32, s%d, 7\ns_lshl_b32 s32, s32, 13\nv_add_u32 v%d, s32, v%d' % (sN, vK, vL16))
        S.add_post(56, pa[0]); S.add_post(56, pa[1])
        S.add_post(12, cb[0]); S.add_post(13, cb[1]); S.add_post(15, brb)
        S.add_post(16, ladd(1)[0]); S.add_post(16, ladd(1)[1])
        S.add_post(20, 's_add_u32 s33, s%d, 1' % sN); S.add_post(20, pb[0]); S.add_post(20, pb[1])
        S.add_post(33, 'v_add_u32 v%d, 0x10000, v%d' % (vV, vK))
        if kind == '2f':
            S.add_post(36, 's_cmp_lt_u32 s3, 4\ns_cbranch_scc1 k2_x2_skip'); S.add_post(36, x2); S.add_post(36, 'k2_x2_skip:')
        early = unit(True) + unit(False) + (unit(False) if kind == '2' else [])
        pos = (48, 54, 60, 0, 6, 12) if kind == '2' else (50, 58, 2, 10)
        for g, t in zip(pos, early): S.add_post(g, t)
        if kind != '1':
            for g, t in zip((37, 42), unit(True)): S.add_post(g, t)
        S.add_post(44, ca[0]); S.add_post(45, ca[1])
        S.add_post(46, 's_add_u32 s%d, s%d, %d' % (sN, sN, 2 if kind == '1' else 4)); S.add_post(46, 's_add_u32 s%d, s%d, 1' % (sJ, sJ))
        S.add_post(47, bra)
        S.emit(a, 48, 64); S.emit(a, 0, 48)
    body(Asm(), 'w')
    a.label('k2_loop1')
    body(a, '1')
    a('s_cmp_lt_u32 s%d, s%d' % (sJ, sJ1)); a('s_cbranch_scc1 k2_loop1')
    a('s_cmp_lt_u32 s3, 4'); a('s_cbranch_scc1 k2_x1_skip')
    a('ds_read_b64 %s, v%d' % (vr(NM, 2), vPub))
    a('s_add_u32 s%d, s%d, 2' % (sN, sN)); a('s_mov_b32 s%d, s%d' % (sD, sDq))
    for r in range(32): a('v_mov_b32 v%d, v%d' % (Q + r, QB + r))
    a('s_waitcnt lgkmcnt(0)')
    for kt in range(2):
        for qt in range(2):
            for r in range(4): a('v_mov_b32 v%d, v%d' % (ct(kt, qt) + r, NM + qt))
    a.label('k2_x1_skip')
    a('s_cmp_lt_u32 s2, 96'); a('s_cselect_b32 s%d, 16, 99' % sJ1)
    if post16:
        tail.label('f_post16'); post16(tail); tail('s_branch f_post16_ret')
    body(a, '2f')
    a('s_cmp_ge_u32 s%d, 17' % sJ); a('s_cbranch_scc1 k2_done')
    a.label('k2_loop2')
    body(a, '2')
    a('s_cmp_lt_u32 s%d, 17' % sJ); a('s_cbranch_scc1 k2_loop2')
    a.label('k2_done')
    body(a, 'e')
    if dbg: ts(a, 43)
    a.extend(sm(1, 32, 99))
    ce, bre = slow('k2_se', 1)
    a.extend(ce); a(bre)
    a('s_waitcnt lgkmcnt(0)')
    for dt in range(8):
        for qt in range(2): a(pv(1, dt, qt))
        if dt == 0: a.extend(ladd(1))
        if dt in (1, 2): a.extend(xg('v_add_f32', L + dt - 1, TMP + dt))
    a('s_lshl_b32 s32, s3, 13'); a('v_add_u32 v%d, s32, v%d' % (T0, vL16)); a('v_xor_b32 v%d, 0x8000, v%d' % (T1, T0))
    a('s_lshl_b32 s32, s3, 8'); a('s_add_u32 s32, s32, 0x%x' % XL); a('v_and_b32 v%d, 0xf0, v%d' % (vK, vL16)); a('v_add_u32 v%d, s32, v%d' % (vK, vK)); a('v_xor_b32 v%d, 0x400, v%d' % (vV, vK))
    a('ds_write_b128 v%d, %s' % (vK, vr(L, 4)))
    a('s_cmp_ge_u32 s3, 4'); a('s_cbranch_scc1 k2_mh')
    def merge(a, hw):
        keep = ACC + 32 * hw; send = ACC + 32 * (1 - hw)
        for f in range(8): a('ds_write_b128 v%d, %s offset:%d' % (T0, vr(send + 4 * f, 4), f * 1024))
        if hw: a('s_add_u32 s%d, s%d, 0x1000' % (sCtB, sCtB))
        a('s_waitcnt lgkmcnt(0)'); a('s_barrier')
        O = TMP
        a('ds_read_b128 %s, v%d' % (vr(O, 4), vV))
        for f in range(8): a('ds_read_b128 %s, v%d offset:%d' % (vr(send + 4 * f, 4), T1, f * 1024))
        if post_bar: post_bar(a, hw)
        a('s_waitcnt lgkmcnt(8)')
        FA = ET; FB = ET + 2
        for qt in range(2):
            m = ET + 4 + qt
            a('v_min_f32 v%d, v%d, v%d' % (m, NM + qt, O + 2 + qt))
            a('v_sub_f32 v%d, v%d, v%d' % (FA + qt, m, NM + qt)); a('v_sub_f32 v%d, v%d, v%d' % (FB + qt, m, O + 2 + qt))
            a('v_exp_f32 v%d, v%d' % (FA + qt, FA + qt)); a('v_exp_f32 v%d, v%d' % (FB + qt, FB + qt))
            a('v_mul_f32 v%d, v%d, v%d' % (m, L + qt, FA + qt)); a('v_fmac_f32 v%d, v%d, v%d' % (m, O + qt, FB + qt))
            a('v_rcp_f32 v%d, v%d' % (m, m))
            a('v_mul_f32 v%d, v%d, v%d' % (FA + qt, FA + qt, m)); a('v_mul_f32 v%d, v%d, v%d' % (FB + qt, FB + qt, m))
        for f in range(8):
            for r in range(4): a('v_mul_f32 v%d, v%d, v%d' % (keep + 4 * f + r, keep + 4 * f + r, FA + (f & 1)))
        for s2 in range(2):
            for qt in range(2):
                o = FR + (s2 * 2 + qt) * 4
                for h2 in range(2):
                    f = (2 * s2 + h2) * 2 + qt
                    a('s_waitcnt lgkmcnt(%d)' % max(0, 7 - f))
                    for r in range(4): a('v_fmac_f32 v%d, v%d, v%d' % (keep + 4 * f + r, send + 4 * f + r, FB + qt))
                    for r in range(2): a(cvt(o + 2 * h2 + r, keep + 4 * f + 2 * r, keep + 4 * f + 2 * r + 1))
                a('buffer_store_dwordx4 %s, v%d, %s, s%d offen offset:%d sc1' % (vr(o, 4), vL16, sr(sCT, 4), sCtB, (2 * s2 + qt) * 1024))
    merge(a, 0)
    a('s_branch k2_fin')
    a.label('k2_mh')
    merge(a, 1)
    a.label('k2_fin')
```

```python
from f_att import *
WS_PO = 64 << 20; WS_PY = 88 << 20
SL = 26624
sBA, sBB, sPO, sOUT, sXS = 8, 12, 16, 20, 28
sSt, sEv, sSlR, sSlW, sIdx, sIm, sAs, sBs, sO1, sO2, sT0, sT1 = 66, 67, 68, 69, 70, 71, 72, 73, 74, 75, 76, 77
vDA, vDB1, vDB2 = 244, 245, 246
vRB = 247; vRC = 16
YA = 64; OA = 144; BF = 224
def AF(e): return 32 + 16 * e
def srd_off(s, ptr, size, soff):
    return ['s_add_u32 s%d, s%d, %s' % (s, ptr, soff), 's_addc_u32 s%d, s%d, 0' % (s + 1, ptr + 1), 's_and_b32 s%d, s%d, 0xffff' % (s + 1, s + 1),
            's_mov_b32 s%d, 0x%x' % (s + 2, size), 's_mov_b32 s%d, 0x00020000' % (s + 3)]
def common_setup():
    return ['s_lshl_b32 s%d, s3, 10' % sO1, 's_add_u32 s%d, s%d, 0x4000' % (sO1, sO1), 's_lshl_b32 s%d, s3, 8' % sO2, 's_add_u32 s%d, s%d, 0x6000' % (sO2, sO2),
            's_mov_b32 s%d, 0x%x' % (sSlW, 5 * SL), 's_mov_b32 s%d, 0x%x' % (sSlR, 5 * SL)]
def y_setup():
    o = ['s_mul_i32 s32, s%d, %d' % (sX_, 40 * 16384), 's_add_u32 s32, s32, 0x%x' % WS_HT] + srd_off(sBA, P['ws'], 40 * 16384, 's32')
    o += ['s_mul_i32 s32, s%d, %d' % (sHL, 40 * 10240), 's_add_u32 s32, s32, 0x%x' % WS_CC] + srd_off(sBB, P['ws'], 40 * 10240, 's32')
    o += ['v_add_u32 v%d, s%d, v%d' % (vDA, sWl, vL16), 's_lshl_b32 s32, s3, 10', 'v_add_u32 v%d, s32, v%d' % (vDB1, vL16),
          's_lshl_b32 s32, s3, 8', 's_add_u32 s32, s32, 0x2000', 'v_lshl_add_u32 v%d, v1, 2, s32' % vDB2,
          's_mul_i32 s%d, s%d, 14' % (sIdx, sI), 's_mov_b32 s%d, -1' % sIm, 's_movk_i32 s%d, 0x4000' % sAs, 's_movk_i32 s%d, 10240' % sBs,
          's_and_b32 s%d, s%d, 2' % (sSt, sI), 's_add_u32 s32, s%d, 1' % sSt, 's_mov_b32 s%d, 0x%x' % (sEv, (1 << 5) | (1 << 7) | (1 << 19) | (1 << 23)), 's_bitset1_b32 s%d, s32' % sEv]
    return o
def out_setup(T):
    o = ['s_lshl_b32 s32, s%d, 15' % sX_, 's_add_u32 s32, s32, 0x%x' % WS_CTX] + srd_off(sBA, P['ws'], 16 << 20, 's32')
    o += ['s_mul_i32 s32, s%d, %d' % (sX_, 512 * 1280)] + srd_off(sBB, P['wo'], 512 * 1280, 's32')
    o += ['s_sub_u32 s32, 15, s%d' % sI, 's_cmp_lt_u32 s3, 4', 's_cselect_b32 s32, s%d, s32' % sI, 's_lshl_b32 s32, s32, 2', 's_and_b32 s33, s3, 3', 's_add_u32 s32, s32, s33', 's_lshl_b32 s32, s32, 18',
          'v_add_u32 v%d, s32, v%d' % (vDA, vL16),
          'v_lshrrev_b32 v%d, 4, v1' % T, 's_and_b32 s33, s3, 1', 's_lshl_b32 s33, s33, 3', 'v_lshl_add_u32 v%d, v%d, 1, s33' % (T + 1, T),
          'v_and_b32 v%d, 15, v1' % vDB2, 'v_xor_b32 v%d, v%d, v%d' % (vDB1, vDB2, T + 1), 'v_xor_b32 v%d, s33, v%d' % (vDB2, vDB2),
          's_lshl_b32 s32, s3, 2', 'v_add_u32 v%d, s32, v%d' % (T, T), 'v_mul_u32_u24 v%d, 1280, v%d' % (T, T),
          's_mul_i32 s32, s%d, 320' % sHL, 'v_add_u32 v%d, s32, v%d' % (T, T),
          'v_lshl_add_u32 v%d, v%d, 4, v%d' % (vDB1, vDB1, T), 'v_lshl_add_u32 v%d, v%d, 2, v%d' % (vDB2, vDB2, T),
          's_and_b32 s33, s%d, 1' % sHL, 's_lshl_b32 s32, s33, 6', 'v_add_u32 v%d, s32, v%d' % (vDB1, vDB1),
          's_xor_b32 s33, s33, 1', 's_lshl_b32 s32, s33, 8', 'v_add_u32 v%d, s32, v%d' % (vDB2, vDB2),
          's_lshl_b32 s%d, s%d, 2' % (sIdx, sHL), 's_mov_b32 s%d, 15' % sIm, 's_movk_i32 s%d, 0x800' % sAs, 's_mov_b32 s%d, 40960' % sBs]
    return o
def dmaA():
    return ['s_add_u32 m0, s%d, s%d\ns_mul_i32 s%d, s%d, s%d\nbuffer_load_dwordx4 v%d, %s, s%d offen lds' % (sSlW, sWl, sT0, sIdx, sAs, vDA, sr(sBA, 4), sT0),
            'buffer_load_dwordx4 v%d, %s, s%d offen offset:1024 lds' % (vDA, sr(sBA, 4), sT0)]
def dmaB():
    return ['s_add_u32 m0, s%d, s%d\ns_mul_i32 s%d, s%d, s%d\nbuffer_load_dwordx4 v%d, %s, s%d offen lds' % (sSlW, sO1, sT1, sIdx, sBs, vDB1, sr(sBB, 4), sT1),
            's_add_u32 m0, s%d, s%d\nbuffer_load_dword v%d, %s, s%d offen lds' % (sSlW, sO2, vDB2, sr(sBB, 4), sT1)]
def ring(s): return 's_sub_u32 s%d, s%d, 0x%x\ns_cselect_b32 s%d, 0x%x, s%d' % (s, s, SL, s, 5 * SL, s)
def adv(): return 's_add_u32 s%d, s%d, 1\ns_and_b32 s%d, s%d, s%d\n' % (sIdx, sIdx, sIdx, sIdx, sIm) + ring(sSlW)
def stage_dma(): return dmaA() + dmaB() + [adv()]
def flag_addr(vt, stride, n, base):
    return base + ['s_lshl_b32 s33, s3, 8', 's_add_u32 s32, s32, s33', 'v_mul_u32_u24 v%d, %d, v1' % (vt, stride), 'v_add_u32 v%d, s32, v%d' % (vt, vt),
                   'v_cmp_gt_u32 vcc, %d, v1' % n, 'v_cndmask_b32 v%d, -1, v%d, vcc' % (vt, vt)]
def flag_ld(vf, vt): return 'buffer_load_ubyte v%d, v%d, %s, 0 offen sc1' % (vf, vt, sr(sDB, 4))
def flag_wait(t, name, vf, vt, n, val, first_wait):
    t('s_cmp_lg_u32 s3, 0'); t('s_cbranch_scc1 %s_d' % name)
    t('s_mov_b32 s32, %d' % SPIN); t(first_wait)
    t.label(name + '_l')
    t('v_cmp_gt_u32 vcc, %d, v%d' % (val, vf)); t('s_and_b32 s33, vcc_lo, 0x%x' % ((1 << n) - 1)); t('s_cbranch_scc0 %s_d' % name)
    t('s_sleep 4'); t(flag_ld(vf, vt)); t('s_waitcnt vmcnt(0)')
    t('s_sub_u32 s32, s32, 1'); t('s_cmp_lg_u32 s32, 0'); t('s_cbranch_scc1 %s_l' % name)
    t.label(name + '_d')
F5B = ['s_lshl_b32 s32, s%d, 5' % sX_, 's_add_u32 s32, s32, s%d' % sI]

def hook15(t):
    t('v_lshlrev_b32 v%d, 2, v1' % T0); t('buffer_load_dword v%d, v%d, %s, 0 offen sc1' % (vPub, T0, sr(sDB, 4)))
def hook16(t):
    t('s_cmp_ge_u32 s2, 96'); t('s_cbranch_scc1 f_hk_16')
    t('s_mov_b32 s32, %d' % SPIN); t('v_lshlrev_b32 v%d, 2, v1' % T0)
    t.label('f_h16_l')
    t('v_or_b32 v%d, %s, v%d' % (vPub, H8, vPub)); t('v_subrev_u32 v%d, 0x03030303, v%d' % (vPub, vPub)); t('v_and_b32 v%d, %s, v%d' % (vPub, H8, vPub)); t('v_cmp_ne_u32 vcc, %s, v%d' % (H8, vPub))
    t('s_cbranch_vccz f_hk_16')
    t('s_sleep 8'); t('buffer_load_dword v%d, v%d, %s, 0 offen sc1' % (vPub, T0, sr(sDB, 4))); t('s_waitcnt vmcnt(0)')
    t('s_sub_u32 s32, s32, 1'); t('s_cmp_lg_u32 s32, 0'); t('s_cbranch_scc1 f_h16_l')
def post16(t):
    t.extend(common_setup()); t.extend(y_setup()); t.extend(stage_dma())
def post_bar(a, hw):
    a('s_cmp_ge_u32 s2, 96'); a('s_cbranch_scc1 f_pbU%d' % hw)
    for k in range(2): a.extend(stage_dma())
    a('s_branch f_pbE%d' % hw)
    a.label('f_pbU%d' % hw)
    a.extend(common_setup()); a.extend(out_setup(vRB))
    for k in range(3): a.extend(dmaB() + [adv()])
    a.label('f_pbE%d' % hw)

def back(a, tail, dbg):
    lgs = {}
    def rbase(out):
        o = ['s_lshr_b32 s32, s3, 1', 's_lshl_b32 s32, s32, 12', 's_and_b32 s33, s3, 1', 'v_and_b32 v8, 3, v1', 'v_lshrrev_b32 v9, 2, v1']
        if out:
            o += ['v_add_u32 v%d, s32, v%d' % (vRB, vL16), 'v_and_b32 v10, 7, v9', 's_lshl_b32 s32, s33, 2', 'v_xor_b32 v10, s32, v10',
                  'v_lshlrev_b32 v8, 3, v8', 'v_lshl_add_u32 v11, v9, 8, v8', 'v_add_u32 v11, 0x4000, v11']
            for c in range(4): o += ['v_xor_b32 v12, %d, v10' % c, 'v_lshl_add_u32 v%d, v12, 5, v11' % (vRB + 1 + c)]
            o += ['v_lshrrev_b32 v10, 2, v10', 'v_lshl_add_u32 v11, v9, 6, v8', 'v_lshl_add_u32 v11, v10, 5, v11', 'v_add_u32 v%d, 0x6000, v11' % (vRB + 5)]
        else:
            o += ['v_lshrrev_b32 v10, 1, v8', 'v_lshlrev_b32 v11, 3, v10', 'v_xor_b32 v9, v9, v11', 'v_lshlrev_b32 v9, 4, v9', 'v_lshl_add_u32 v9, v10, 10, v9',
                  'v_and_b32 v8, 1, v8', 'v_lshl_add_u32 v9, v8, 3, v9', 'v_add_u32 v%d, s32, v9' % vRB,
                  's_mul_i32 s33, s33, 5120', 's_add_u32 s33, s33, 0x4000', 'v_add_u32 v%d, s33, v%d' % (vRB + 1, vL16)]
        return o
    def radr(out): return ['v_add_u32 v%d, s%d, v%d' % (vRC + k, sSlR, vRB + k) for k in range(6 if out else 2)] + [ring(sSlR)]
    def rdA(out, e, q):
        if out: return ['ds_read_b128 %s, v%d offset:%d' % (vr(AF(e) + 4 * q, 4), vRC, q * 1024)]
        return ['ds_read_b64_tr_b16 %s, v%d offset:%d' % (vr(AF(e) + 4 * q + 2 * hf, 2), vRC, hf * 2048 + q * 256) for hf in range(2)]
    def rdB(out, c):
        if not out: return ['ds_read_b128 %s, v%d offset:%d' % (vr(BF + 4 * c, 4), vRC + 1, c * 1024)]
        return ['ds_read_b64_tr_b16 %s, v%d offset:%d' % (vr(BF + 4 * c + 2 * hf, 2), vRC + 1 + c, hf * (4096 if c < 4 else 1024)) for hf in range(2)]
    def acc(out, c, q): return (OA if out else YA) + (c * 4 + q) * 4
    def entry(a, out):
        a.extend(radr(out))
        for q in range(4):
            a.extend(rdA(out, 0, q))
            if q == 0: a.extend(rdB(out, 0))
        for c in range(1, 5): a.extend(rdB(out, c))
    def loop(a, out, name):
        lg = LG(); tag = {}
        def T(key, txt):
            def f(a):
                a(txt); tag[key] = lg.issue()
            return f
        def stage(a, e):
            S = Sched()
            for c in range(5):
                for q in range(4):
                    d = vr(acc(out, c, q), 4)
                    i = S.mfma(MF % (d, vr(AF(e) + 4 * q, 4), vr(BF + 4 * c, 4), d))
                    if c == 0: S.add_pre(i, lambda a, q=q: lg.wait_for(a, max(tag.get(('A', q), 0), tag.get(('B', 0), 0))))
            S.spread(radr(out), 0, 3)
            def bar(a):
                a('s_waitcnt vmcnt(16) lgkmcnt(0)'); lg.done = lg.n
                a('s_barrier'); a('s_setprio 3')
            S.add_post(3, bar)
            for k, p in enumerate((8, 13, 18)): S.add_post(p, 's_setprio %d' % (2 - k))
            R = [T(('B', 0), x) for x in rdB(out, 0)] + [T(('A', q), x) for q in range(4) for x in rdA(out, 1 - e, q)]
            S.spread(R, 3, 12)
            for c in range(1, 5): S.spread([T(('B', c), x) for x in rdB(out, c)], 4 * c + 3, min(20, 4 * c + 5))
            for p, x in zip((5, 8, 11, 14, 15), stage_dma()): S.add_post(p, x)
            if e: S.add_post(16, 's_bitcmp0_b32 s%d, s%d\ns_cbranch_scc1 %s_ev\ns_call_b64 s[100:101], f_event\n%s_ev:' % (sEv, sSt, name, name))
            S.add_post(17, 's_add_u32 s%d, s%d, 1' % (sSt, sSt))
            S.emit(a, 0, 20)
        stage(Asm(), 1)
        a.label(name)
        stage(a, 0); stage(a, 1)
        a('s_cmp_lt_u32 s%d, %d' % (sSt, 30 if out else 14)); a('s_cbranch_scc1 %s' % name)
    def pstore(a, base, soff):
        for p in range(10):
            s = base + 8 * p
            a.extend(pack8(s, s))
            if p % 4 == 0 and p: a('s_add_u32 s%d, s%d, 0x1000' % (soff, soff))
            a('buffer_store_dwordx4 %s, v%d, %s, s%d offen offset:%d sc1' % (vr(s, 4), vL16, sr(sPO, 4), soff, (p & 3) * 1024))
    t = tail
    t.label('f_event')
    t('s_cmp_lt_u32 s%d, 5' % sSt); t('s_cbranch_scc0 f_ev1')
    pub_w0(t, 5, 'f_ev_r1', 8, 9); t('s_branch f_ev_ret')
    t.label('f_ev1')
    t('s_cmp_eq_u32 s%d, 5' % sSt); t('s_cbranch_scc0 f_ev2')
    t.extend(flag_addr(vPub, 8, 4, F5B)); t(flag_ld(vFl, vPub)); t('s_branch f_ev_ret')
    t.label('f_ev2')
    t('s_cmp_eq_u32 s%d, 7' % sSt); t('s_cbranch_scc0 f_ev3')
    t.extend(out_setup(8))
    flag_wait(t, 'f_w5n', vFl, vPub, 4, 5, 's_waitcnt vmcnt(8)'); t('s_branch f_ev_ret')
    t.label('f_ev3')
    t('s_cmp_eq_u32 s%d, 19' % sSt); t('s_cbranch_scc0 f_ev4')
    pub_w0(t, 6, 'f_ev_r2', 8, 9); t('s_branch f_ev_ret')
    t.label('f_ev4')
    t('s_mov_b32 s%d, 0' % (sBA + 2)); t('s_mov_b32 s%d, 0' % (sBB + 2))
    t.label('f_ev_ret')
    t('s_nop 4'); t('s_setpc_b64 s[100:101]')
    for r in range(80): a('v_mov_b32 v%d, 0' % (OA + r))
    a('s_cmp_ge_u32 s2, 96'); a('s_cbranch_scc1 f_bU')
    for r in range(80): a('v_mov_b32 v%d, 0' % (YA + r))
    a.extend(rbase(False))
    a('s_waitcnt vmcnt(12) lgkmcnt(0)'); a('s_barrier')
    if dbg: ts(a, 44)
    entry(a, False)
    for k in range(3): a.extend(stage_dma())
    a('s_waitcnt lgkmcnt(0)')
    loop(a, False, 'f_yloop')
    if dbg: ts(a, 45)
    a.extend(rbase(True))
    a('s_add_u32 s%d, s%d, 0x%x' % (sSlR, sSlR, SL)); a('s_cmp_gt_u32 s%d, 0x%x' % (sSlR, 5 * SL)); a('s_cselect_b32 s%d, 0, s%d' % (sSlR, sSlR))
    a('s_waitcnt lgkmcnt(0)')
    entry(a, True)
    a.extend(srd_off(sPO, P['ws'], 8 << 20, '0x%x' % WS_PY))
    a('s_lshl_b32 s32, s%d, 3' % sH); a('s_add_u32 s32, s32, s3'); a('s_mul_i32 s32, s32, 3'); a('s_add_u32 s32, s32, s%d' % sI); a('s_mul_i32 s32, s32, 10240')
    pstore(a, YA, 32)
    a('s_branch f_out')
    a.label('f_bU')
    a.extend(rbase(True))
    a('s_mov_b32 s%d, 14' % sSt); a('s_mov_b32 s%d, 0x%x' % (sEv, 1 << 23))
    a('s_mov_b32 s%d, 0x%x' % (sSlW, 5 * SL)); a('s_lshl_b32 s%d, s%d, 2' % (sIdx, sHL))
    a.extend(flag_addr(vPub, 8, 4, F5B))
    a('s_waitcnt vmcnt(0) lgkmcnt(0)'); a('s_barrier')
    pub_w0(a, 5, 'f_p5u', 8, 9)
    for k in range(3): a.extend(dmaA() + [adv()])
    a.extend(stage_dma())
    sM, sYc, sYw, sYh = 82, 83, 84, 85
    XR = 64; vXo = 84; vDs = 85; vYo = 86
    a('s_lshr_b32 s32, s2, 3'); a('s_sub_u32 s32, s32, 12'); a('s_lshl_b32 s32, s32, 3'); a('s_add_u32 s%d, s32, s3' % sM)
    a('s_mul_i32 s32, s%d, 13108' % sM); a('s_lshr_b32 s32, s32, 16'); a('s_mul_i32 s33, s32, 5'); a('s_sub_u32 s%d, s%d, s33' % (sYc, sM))
    a('s_and_b32 s%d, s32, 7' % sYw); a('s_lshr_b32 s%d, s32, 3' % sYh)
    a('s_mul_i32 s32, s%d, 160' % sYh); a('s_and_b32 s33, s%d, 1' % sYw); a('s_mul_i32 s33, s33, 80'); a('s_add_u32 s32, s32, s33'); a('s_lshl_b32 s33, s%d, 4' % sYc); a('s_add_u32 s32, s32, s33')
    a('v_and_b32 v8, 15, v1'); a('v_add_u32 v8, s32, v8')
    a('s_lshl_b32 s32, s%d, 8' % sX_); a('s_lshr_b32 s33, s%d, 1' % sYw); a('s_lshl_b32 s33, s33, 6'); a('s_add_u32 s32, s32, s33')
    a('v_lshrrev_b32 v9, 4, v1'); a('v_lshl_add_u32 v9, v9, 2, s32'); a('v_mul_u32_u24 v9, 640, v9')
    a('v_add_lshl_u32 v%d, v9, v8, 1' % vXo); a('v_lshl_add_u32 v9, v9, 1, v8'); a('v_lshlrev_b32 v%d, 2, v9' % vYo); a('v_lshlrev_b32 v8, 1, v8')
    mk_srd(a, sXS, P['A_x'], 2048 * 1280)
    a('global_load_ushort v%d, v8, %s' % (vDs, sr(P['Dskip'], 2)))
    for q in range(4):
        a('s_mov_b32 s32, %d' % (q * 16 * 1280))
        for r in range(4): a('buffer_load_ushort v%d, v%d, %s, s32 offen offset:%d' % (XR + 4 * q + r, vXo, sr(sXS, 4), r * 1280))
    a(flag_ld(vFl, vPub))
    flag_wait(a, 'f_w5u', vFl, vPub, 4, 5, 's_waitcnt vmcnt(0)')
    a('s_waitcnt vmcnt(18)'); a('s_barrier')
    if dbg: ts(a, 45)
    entry(a, True)
    for k in range(2): a.extend(stage_dma())
    a.label('f_out')
    a('s_waitcnt lgkmcnt(0)')
    loop(a, True, 'f_oloop')
    if dbg: ts(a, 46)
    a.extend(srd_off(sPO, P['ws'], 20 << 20, '0x%x' % WS_PO))
    a('s_lshl_b32 s%d, s%d, 2' % (sT0, sI)); a('s_add_u32 s%d, s%d, s%d' % (sT0, sT0, sHL)); a('s_lshl_b32 s%d, s%d, 3' % (sT0, sT0))
    a('s_add_u32 s32, s%d, s3' % sT0); a('s_lshl_b32 s32, s32, 3'); a('s_add_u32 s32, s32, s%d' % sX_); a('s_mul_i32 s%d, s32, 10240' % sT1)
    pstore(a, OA, sT1)
    mk_srd(a, sOUT, P['out'], 2048 * 5120)
    a('s_mov_b32 s%d, 0x3f80' % sAs); a('s_mov_b32 s%d, 0x3f800000' % sBs)
    def dot(d, s, first): return ['v_dot2_f32_bf16 v%d, v%d, s%d, %s' % (d + k, s, sAs + k, '0' if first else 'v%d' % (d + k)) for k in range(2)]
    a('s_cmp_lt_u32 s2, 96'); a('s_cbranch_scc1 f_e1')
    a.extend(flag_addr(vPub, 1, 3, ['s_lshl_b32 s32, s%d, 2' % sX_, 's_add_u32 s32, s32, s%d' % sYh, 's_lshl_b32 s32, s32, 3'])); a(flag_ld(vFl, vPub))
    a('v_lshlrev_b32 v%d, 16, v%d' % (vDs, vDs))
    for k in range(16): a('v_lshlrev_b32 v%d, 16, v%d' % (XR + k, XR + k)); a('v_mul_f32 v%d, v%d, v%d' % (XR + k, XR + k, vDs))
    for k in range(8): a(cvt(XR + k, XR + 2 * k, XR + 2 * k + 1))
    flag_wait(a, 'f_w6', vFl, vPub, 3, 6, 's_waitcnt vmcnt(0)')
    a.label('f_e1')
    a.extend(flag_addr(vPub, 32, 8, ['s_lshl_b32 s32, s%d, 3' % sHL, 's_add_u32 s32, s32, s%d' % sI]))
    a('s_waitcnt vmcnt(0)'); a('s_barrier')
    pub_w0(a, 7, 'f_p7', 8, 9)
    if dbg: ts(a, 47)
    a('s_cmp_lt_u32 s2, 96'); a('s_cbranch_scc1 f_e2')
    YL = 96; YS = 128
    a.extend(srd_off(sXS, P['ws'], 8 << 20, '0x%x' % WS_PY))
    a('s_lshl_b32 s32, s%d, 2' % sX_); a('s_add_u32 s32, s32, s%d' % sYh); a('s_lshl_b32 s32, s32, 3'); a('s_add_u32 s32, s32, s%d' % sYw); a('s_mul_i32 s32, s32, 30720')
    a('s_lshl_b32 s33, s%d, 11' % sYc); a('s_add_u32 s32, s32, s33')
    for p in range(3):
        for e in range(2): a('buffer_load_dwordx4 %s, v%d, %s, s32 offen offset:%d' % (vr(YL + (p * 2 + e) * 4, 4), vL16, sr(sXS, 4), e * 1024))
        a('s_add_u32 s32, s32, 10240')
    for k in range(8): a.extend(dot(YS + 2 * k, XR + k, True))
    for p in range(3):
        a('s_waitcnt vmcnt(%d)' % (4 - 2 * p))
        for k in range(8): a.extend(dot(YS + 2 * k, YL + p * 8 + k, False))
    for q in range(4):
        for r in range(4):
            a('s_mov_b32 s32, %d' % ((q * 16 + r) * 5120)); a('buffer_store_dword v%d, v%d, %s, s32 offen' % (YS + 4 * q + r, vYo, sr(sOUT, 4)))
    a.label('f_e2')
    a(flag_ld(vFl, vPub))
    vO1, vO2, vG2 = 10, 11, 12
    a('s_sub_u32 s32, 15, s%d' % sI); a('s_cmp_lt_u32 s%d, 4' % sX_); a('s_cselect_b32 s32, s%d, s32' % sI); a('s_lshl_b32 s32, s32, 7')
    a('s_bfe_u32 s33, s%d, 0x10001' % sX_); a('s_lshl_b32 s33, s33, 6'); a('s_add_u32 s%d, s32, s33' % sSt)
    a('s_mul_i32 s%d, s%d, 640' % (sEv, sHL)); a('s_add_u32 s%d, s%d, 2560' % (sEv, sEv))
    a('s_and_b32 s%d, s%d, 1' % (sIdx, sHL)); a('s_and_b32 s%d, s%d, 1' % (sIm, sX_))
    a('s_and_b32 s32, s3, 1'); a('s_lshl_b32 s32, s32, 5'); a('s_add_u32 s32, s32, s%d' % sSt)
    a('v_lshrrev_b32 v8, 4, v1'); a('v_lshl_add_u32 v8, v8, 2, s32'); a('v_mul_u32_u24 v8, 5120, v8')
    a('s_lshl_b32 s32, s%d, 2' % sIm); a('s_lshr_b32 s33, s3, 1'); a('s_add_u32 s32, s32, s33'); a('s_lshl_b32 s32, s32, 6'); a('s_lshl_b32 s33, s%d, 7' % sIdx); a('s_add_u32 s32, s32, s33'); a('s_add_u32 s32, s32, s%d' % sEv)
    a('v_and_b32 v9, 15, v1'); a('v_lshl_add_u32 v9, v9, 2, s32'); a('v_add_u32 v%d, v8, v9' % vO1)
    a('s_lshr_b32 s32, s3, 2'); a('s_lshl_b32 s32, s32, 5'); a('s_and_b32 s33, s3, 3'); a('s_lshl_b32 s33, s33, 2'); a('s_add_u32 s32, s32, s33'); a('s_add_u32 s32, s32, s%d' % sSt)
    a('v_bfe_u32 v8, v1, 1, 1'); a('v_and_b32 v9, 1, v1'); a('v_lshl_add_u32 v8, v8, 3, v9'); a('v_lshl_add_u32 v8, v8, 1, s32'); a('v_mul_u32_u24 v8, 5120, v8')
    a('s_xor_b32 s33, s%d, 1' % sIdx); a('s_lshl_b32 s33, s33, 9'); a('s_lshl_b32 s32, s%d, 6' % sIm); a('s_add_u32 s32, s32, s33'); a('s_add_u32 s32, s32, s%d' % sEv)
    a('v_and_b32 v9, 0xfc, v1'); a('v_add3_u32 v%d, v8, v9, s32' % vO2)
    a('s_lshl_b32 s32, s3, 8'); a('s_add_u32 s32, s32, 0x2000'); a('v_lshl_add_u32 v%d, v1, 2, s32' % vG2)
    a('s_lshl_b32 s32, s3, 10'); a('v_add_u32 v13, s32, v%d' % vL16)
    a('s_add_u32 s%d, s%d, s%d' % (sT0, sT0, sX_)); a('s_mul_i32 s%d, s%d, 81920' % (sT0, sT0))
    flag_wait(a, 'f_w7', vFl, vPub, 8, 7, 's_waitcnt vmcnt(0)')
    a('s_barrier')
    if dbg: ts(a, 48)
    G1 = 32; G2 = 64; R1 = 80; R2 = 88
    for s in range(8):
        a('buffer_load_dwordx4 %s, v13, %s, s%d offen' % (vr(G1 + 4 * s, 4), sr(sPO, 4), sT0))
        a('buffer_load_dword v%d, v%d, %s, s%d offen' % (G2 + s, vG2, sr(sPO, 4), sT0))
        if s < 7: a('s_add_u32 s%d, s%d, 10240' % (sT0, sT0))
    for s in range(8):
        a('s_waitcnt vmcnt(%d)' % (14 - 2 * s))
        for k in range(4): a.extend(dot(R1 + 2 * k, G1 + 4 * s + k, s == 0))
        a.extend(dot(R2, G2 + s, s == 0))
    for k in range(8):
        a('s_mov_b32 s32, %d' % (((k >> 2) * 16 + (k & 3)) * 5120)); a('buffer_store_dword v%d, v%d, %s, s32 offen' % (R1 + k, vO1, sr(sOUT, 4)))
    for k in range(2):
        a('s_mov_b32 s32, %d' % (k * 5120)); a('buffer_store_dword v%d, v%d, %s, s32 offen' % (R2 + k, vO2, sr(sOUT, 4)))
```

```python
from common import *
import copy, os
XO = os.environ.get('XO', '').split(',')
MF = 'v_mfma_f32_16x16x32_bf16 %s, %s, %s, %s'
QSCALE = 128 ** -0.5 * LOG2E
WS_ES = 100 << 20
WR = 98304
sA, sW, sKVO, sKV, sUS, sDB, sES = 4, 8, 12, 16, 20, 24, 28
sX_, sHL, sI, sH = 34, 35, 36, 37
sJ, sJ1, sD, sN, sThr, sDq, sMsk = 38, 39, 40, 41, 42, 43, 44
sKm0, sKsrc, sVm0, sVsrc, sCtA, sCtB, sXl, sWl, sHook, sRdy, sPub, sLim = 52, 53, 54, 55, 56, 57, 58, 59, 60, 61, 62, 63
P = dict(A_x=64, Lre=66, Lim=68, Bre=70, Bim=72, Cre=74, Cim=76, logdt=78, Dskip=80, B_x=82, ckv=84, wq=86, wuk=88, wuv=90, wo=92, out=94, dbg=96, ws=98)
sK0, sV0 = 44, 45
sUx, sUb, sTT, sCB, sHo, sEo = 46, 47, 48, 49, 50, 51
vL16 = 2; vL0 = 3; vKS = 5; vU = 6; UAD = 8; vKS0 = 12; vFo = 13; vTm = 14; vPf = 15
vT = 16; vW = 24; vX = 25; vAr = 27; vPub = 31; vFl = 30
FR = 32; ACC = 64; Q = 128; XF = 192; UACC = 224
H8 = '0x80808080'

def lam_params(T, vlre, vlim, vldt):
    return ['v_mul_f32 v%d, %s, v%d' % (vldt, f32(LOG2E), vldt), 'v_exp_f32 v%d, v%d' % (vldt, vldt),
            'v_cvt_pk_bf16_f32 v%d, v%d, v%d' % (vldt, vldt, vldt), 'v_lshlrev_b32 v%d, 16, v%d' % (vldt, vldt),
            'v_mul_f32 v%d, v%d, v%d' % (T, vldt, vlre), 'v_mul_f32 v%d, v%d, v%d' % (T + 1, vldt, vlim),
            'v_mul_f32 v%d, %s, v%d' % (T, f32(LOG2E), T), 'v_mul_f32 v%d, %s, v%d' % (T + 1, f32(INV2PI), T + 1)]
def srd_l(s, ptr, size, off=0):
    t = Asm(); mk_srd(t, s, ptr, size, off); return '\n'.join(t.lines)
def cvt(d, x, y): return 'v_cvt_pk_bf16_f32 v%d, v%d, v%d' % (d, x, y)
def pack8(d, s): return [cvt(d + k, s + 2 * k, s + 2 * k + 1) for k in range(4)]
def publish(val, vt=vTm, vo=vFo):
    return 'v_mov_b32 v%d, %s\nbuffer_store_byte v%d, v%d, %s, 0 offen sc1' % (vt, val, vt, vo, sr(sDB, 4))
def rdy_calc(vf):
    return ['v_readlane_b32 s32, v%d, 0' % vf, 'v_readlane_b32 s33, v%d, 1' % vf,
            's_or_b32 s32, s32, %s' % H8, 's_or_b32 s33, s33, %s' % H8,
            's_sub_u32 s32, s32, 0x02020202', 's_sub_u32 s33, s33, 0x02020202',
            's_andn2_b32 s32, %s, s32' % H8, 's_andn2_b32 s33, %s, s33' % H8,
            's_ff1_i32_b64 s32, s[32:33]', 's_lshr_b32 s32, s32, 3', 's_min_u32 s32, s32, 8', 's_lshl_b32 s%d, s32, 17' % sRdy]
def rdy_load(vf, vt):
    return ('s_lshl_b32 s32, s%d, 3\ns_lshl_b32 s33, s3, 8\ns_add_u32 s32, s32, s33\nv_mul_u32_u24 v%d, 0x84, v1\nv_and_b32 v%d, 0xffffff04, v%d\nv_add_u32 v%d, s32, v%d\n' % (sH, vt, vt, vt, vt, vt) +
            'buffer_load_dword v%d, v%d, %s, 0 offen sc1' % (vf, vt, sr(sDB, 4)))
SPIN = 20000

def front_start(a, dbg):
    a('s_cmp_ge_u32 s2, 256'); a('s_cbranch_scc1 f_end')
    a('s_load_dwordx16 s[80:95], s[0:1], 64')
    a('s_load_dwordx16 s[64:79], s[0:1], 0')
    a('s_load_dwordx4 s[96:99], s[0:1], 128')
    a('v_lshrrev_b32 v2, 6, v0'); a('v_readfirstlane_b32 s3, v2')
    a('v_and_b32 v1, 63, v0')
    a('s_and_b32 s%d, s2, 7' % sX_); a('s_bfe_u32 s%d, s2, 0x20003' % sHL); a('s_lshr_b32 s%d, s2, 5' % sI)
    a('s_lshl_b32 s32, s%d, 2' % sX_); a('s_add_u32 s%d, s32, s%d' % (sH, sHL))
    a('v_lshrrev_b32 v34, 4, v1')
    a('s_and_b32 s33, s3, 3'); a('s_lshl_b32 s33, s33, 3'); a('v_add_u32 v37, s33, v34'); a('v_lshlrev_b32 v37, 13, v37')
    a('s_and_b32 s33, s3, 1'); a('s_lshl_b32 s33, s33, 3'); a('v_lshl_add_u32 v39, v34, 1, s33')
    a('v_and_b32 v38, 15, v1'); a('v_xor_b32 v40, v38, v39')
    a('v_lshl_add_u32 v37, v40, 4, v37'); a('s_lshl_b32 s33, s%d, 8' % sH); a('v_add_u32 v%d, s33, v37' % vW)
    a('s_lshl_b32 s32, s%d, 8' % sI); a('s_lshl_b32 s33, s3, 5'); a('s_add_u32 s32, s32, s33')
    a('v_lshrrev_b32 v32, 3, v1'); a('v_add_u32 v33, s32, v32'); a('v_lshlrev_b32 v33, 10, v33')
    a('v_and_b32 v35, 7, v1'); a('v_xor_b32 v35, v34, v35'); a('v_xor_b32 v36, 4, v35')
    a('v_lshl_add_u32 v%d, v35, 4, v33' % vX); a('v_lshl_add_u32 v%d, v36, 4, v33' % (vX + 1)); a('v_add_u32 v%d, 0x2000, v%d' % (vX + 1, vX + 1))
    a('s_lshl_b32 s%d, s3, 12' % sXl); a('s_lshl_b32 s%d, s3, 11' % sWl)
    a('v_cmp_eq_u32 vcc, 0, v0')
    a('s_lshl_b32 s32, s%d, 3' % sH); a('s_add_u32 s32, s32, s%d' % sI)
    a('v_mov_b32 v%d, 0x1000' % vFo); a('v_mov_b32 v33, s32'); a('v_cndmask_b32 v%d, v%d, v33, vcc' % (vFo, vFo))
    a('s_waitcnt lgkmcnt(0)')
    if dbg: ts(a, 0); tsr(a, 60)
    mk_srd(a, sA, P['ckv'], 2048 * 1024)
    a('s_cmp_lt_u32 s3, 4'); a('s_cselect_b32 s%d, s%d, s%d' % (sW, P['wuk'], P['wuv'])); a('s_cselect_b32 s%d, s%d, s%d' % (sW + 1, P['wuk'] + 1, P['wuv'] + 1))
    a('s_and_b32 s%d, s%d, 0xffff' % (sW + 1, sW + 1)); a('s_mov_b32 s%d, 0x%x' % (sW + 2, 512 * 8192)); a('s_mov_b32 s%d, 0x00020000' % (sW + 3))

def front_role(role, dbg, tail):
    a = Asm(); vm = VM(); lg = LG()
    isU = role == 'U'
    tagW = {}; tagA = {}; tagU = {}; tagQW = {}; tagX = {}; tg = {}
    def wslot(s): return ((s + 2) % 4) * 16384
    def dmaW(s, i):
        def f(a):
            a('s_add_u32 m0, s%d, 0x%x' % (sWl, WR + wslot(s) + i * 1024))
            a('s_mov_b32 s32, 0x%x' % (s * 262144 + i * 32768))
            a('buffer_load_dwordx4 v%d, %s, s32 offen lds' % (vW, sr(sW, 4))); tagW[s] = vm.issue()
        return f
    def dmaA(D, i):
        def f(a):
            a('s_add_u32 m0, s%d, 0x%x' % (sXl, (D % 3) * 32768 + i * 1024))
            a('s_movk_i32 s33, 0x%x' % (D * 128 + (i >> 1) * 16384))
            a('buffer_load_dwordx4 v%d, %s, s33 offen lds' % (vX + (i & 1), sr(sA, 4))); tagA[D] = vm.issue()
        return f
    USLOT = [65536, 131072, 0, 98304, 32768]
    def dmaU(n, i):
        def f(a):
            a('s_add_u32 m0, s%d, 0x%x' % (sXl, USLOT[n % 5] + i * 1024))
            a('s_movk_i32 s33, 0x%x' % (n * 128 + (i >> 1) * 5120))
            a('buffer_load_dwordx4 v%d, %s, s33 offen lds' % (vU + (i & 1), sr(sUS, 4))); tagU[n] = vm.issue()
        return f
    def dmaQW(s, i):
        def f(a):
            a('s_add_u32 m0, s%d, 0x%x' % (sWl, WR + wslot(s) + i * 1024))
            a('s_mov_b32 s32, 0x%x' % (s * 524288 + i * 32768))
            a('buffer_load_dwordx4 v%d, %s, s32 offen lds' % (vW, sr(sW, 4))); tagQW[s] = vm.issue()
        return f
    def xreg(s): return (2, 0, 1)[s % 3]
    def dmaX(s, i):
        def f(a):
            if s < 10:
                a('s_add_u32 m0, s%d, 0x%x' % (sXl, xreg(s) * 32768 + i * 1024))
                a('s_movk_i32 s33, 0x%x' % (s * 128 + (i >> 1) * 20480))
                a('buffer_load_dwordx4 v%d, %s, s33 offen lds' % (vX + (i & 1), sr(sA, 4)))
            else:
                a('s_add_u32 m0, s%d, 0x%x' % (sXl, xreg(s) * 32768))
                a('s_mov_b32 s33, 0x%x' % (0, 0x10000, 0x2000)[s - 10])
                a('buffer_load_dwordx4 v%d, %s, s33 offen offset:%d lds' % (vKS0, sr(sKV, 4), i * 1024))
            tagX[s] = vm.issue()
        return f
    def vmi(txt, key=None):
        def f(a):
            a(txt); t = vm.issue()
            if key is not None: tg[key] = t
        return f
    def vmw(key): return lambda a: vm.wait_for(a, tg[key])
    for i in range(2): dmaW(0, i)(a)
    for i in range(4): dmaA(0, i)(a)
    for s in (1, 2):
        for i in range(2): dmaW(s, i)(a)
    for i in range(4): dmaA(1, i)(a)
    for i in range(2): dmaW(3, i)(a)
    for i in range(4): dmaA(2, i)(a)
    a('s_lshl_b32 s32, s%d, 3' % sHL); a('s_add_u32 s32, s32, s3'); a('s_lshl_b32 s32, s32, 13'); a('s_lshl_b32 s33, s%d, 18' % sI); a('s_add_u32 s32, s32, s33')
    a('v_lshlrev_b32 v41, 7, v1')
    vmi('buffer_load_dword v%d, v41, %s, s32 offen' % (vPf, sr(sA, 4)))(a)
    a('s_lshl_b32 s32, s%d, 2' % sI); a('s_and_b32 s33, s3, 3'); a('s_add_u32 s32, s32, s33'); a('s_lshl_b32 s32, s32, 17'); a('s_lshl_b32 s33, s%d, 8' % sH); a('s_add_u32 s32, s32, s33')
    a('v_lshrrev_b32 v42, 2, v1'); a('v_lshlrev_b32 v42, 13, v42'); a('v_and_b32 v43, 3, v1'); a('v_lshl_add_u32 v42, v43, 6, v42')
    vmi('buffer_load_dword v%d, v42, %s, s32 offen' % (vPf, sr(sW, 4)))(a)
    a('v_lshlrev_b32 v%d, 4, v1' % vL16)
    a('v_bfe_u32 v32, v1, 2, 2'); a('v_lshl_add_u32 v33, v34, 3, v32')
    a('v_and_b32 v35, 3, v1'); a('v_lshlrev_b32 v35, 3, v35'); a('v_add_u32 v35, 0x%x, v35' % WR)
    a('v_lshl_add_u32 v36, v33, 8, v35')
    a('v_and_b32 v37, 1, v34'); a('v_lshl_add_u32 v38, v37, 2, v32')
    for dt in range(8):
        a('v_xor_b32 v39, %d, v38' % dt); a('v_lshl_add_u32 v%d, v39, 5, v36' % (vT + dt))
    a('s_lshr_b32 s%d, s3, 2' % sD); a('s_lshl_b32 s%d, s%d, 7' % (sD, sD))
    for dt in range(4): a('v_xor_b32 v%d, s%d, v%d' % (vT + dt, sD, vT + dt))
    a('v_and_b32 v39, 15, v1'); a('v_lshrrev_b32 v40, 1, v39'); a('v_xor_b32 v40, v40, v34'); a('v_lshlrev_b32 v39, 7, v39')
    a('v_lshl_add_u32 v%d, v40, 4, v39' % vL0); a('v_xor_b32 v%d, 64, v%d' % (vL0 + 1, vL0))
    a('s_and_b32 s32, s3, 3'); a('s_lshl_b32 s32, s32, 13'); a('s_add_u32 s33, s32, 0x10000')
    for k in range(4): a('v_add_u32 v%d, s%d, v%d' % (vAr + k, 32 + (k >> 1), vL0 + (k & 1)))
    a('s_lshl_b32 s32, s%d, 3' % sH); a('s_add_u32 s32, s32, s%d' % sI); a('s_lshl_b32 s32, s32, 2'); a('s_and_b32 s33, s3, 3'); a('s_add_u32 s32, s32, s33'); a('s_lshl_b32 s32, s32, 15')
    a('s_add_u32 s%d, s%d, s32' % (sKVO, P['ws'])); a('s_addc_u32 s%d, s%d, 0' % (sKVO + 1, P['ws'] + 1)); a('s_and_b32 s%d, s%d, 0xffff' % (sKVO + 1, sKVO + 1))
    a('s_mov_b32 s%d, 0x8000' % (sKVO + 2)); a('s_mov_b32 s%d, 0x00020000' % (sKVO + 3))
    a('s_lshl_b32 s%d, s%d, 4' % (sK0, sD)); a('s_lshl_b32 s%d, s%d, 5' % (sV0, sD)); a('s_add_u32 s%d, s%d, 0x2000' % (sV0, sV0))
    mk_srd(a, sDB, P['dbg'], 256)
    a('s_lshr_b32 s32, s2, 3'); a('s_sub_u32 s32, s32, 12'); a('s_cmp_ge_u32 s32, 10'); a('s_cselect_b32 s33, 1, 0'); a('s_lshl_b32 s%d, s%d, 1' % (sTT, sX_)); a('s_add_u32 s%d, s%d, s33' % (sTT, sTT))
    a('s_mul_i32 s33, s33, 10'); a('s_sub_u32 s%d, s32, s33' % sCB)
    a('s_lshl_b32 s33, s%d, 2' % sCB); a('s_and_b32 s%d, s3, 3' % sHo); a('s_add_u32 s%d, s%d, s33' % (sHo, sHo))
    a('s_lshl_b32 s33, s%d, 12' % sHo); a('s_add_u32 s33, s33, 0x%x' % WS_ES)
    a('s_add_u32 s%d, s%d, s33' % (sES, P['ws'])); a('s_addc_u32 s%d, s%d, 0' % (sES + 1, P['ws'] + 1)); a('s_and_b32 s%d, s%d, 0xffff' % (sES + 1, sES + 1))
    a('s_cmp_lt_u32 s32, 20'); a('s_cselect_b32 s%d, 0x1000, 0' % (sES + 2)); a('s_mov_b32 s%d, 0x00020000' % (sES + 3))
    a('s_lshl_b32 s32, s%d, 1' % sTT); a('s_lshr_b32 s33, s3, 2'); a('s_add_u32 s32, s32, s33'); a('s_sub_u32 s32, 31, s32'); a('s_lshl_b32 s%d, s32, 7' % sEo)
    a('v_mov_b32 v32, -1'); a('v_mov_b32 v33, -1')
    a('v_lshlrev_b32 v35, 3, v1'); a('v_lshl_add_u32 v35, v34, 12, v35')
    vmi('buffer_store_dwordx2 v[32:33], v35, %s, s%d offen sc1' % (sr(sES, 4), sEo), 'sent')(a)

    S = Sched()
    tR = {}
    def rd(key, txt):
        def f(a):
            a(txt); tR[key] = lg.issue()
        return f
    def lw(key): return lambda a: lg.wait_for(a, tR[key])
    def mkbar(tags, stamp=None):
        def f(a):
            a('s_waitcnt lgkmcnt(0)'); lg.done = lg.n
            vm.wait_for(a, max(t() for t in tags))
            a('s_barrier'); a('s_setprio 3')
            if dbg > 1 and stamp is not None: ts(a, stamp)
        return f
    def tK(kt, d): return ACC + ((d >> 1) * 4 + kt) * 8 + (d & 1) * 4
    def tV(kt, d): return 128 + (d * 2 + (kt >> 1)) * 8 + (kt & 1) * 4
    def af(s, kt): return XF + (s & 1) * 16 + kt * 4
    def rdW(s, g, d, hf): return rd(('W', s, g, d), 'ds_read_b64_tr_b16 %s, v%d offset:%d' % (vr(FR + g * 16 + d * 4 + hf * 2, 2), vT + d, wslot(s) + g * 8192 + hf * 1024))
    def rdA(s, kt):
        sl = (s >> 1) % 3
        return rd(('A', s, kt), 'ds_read_b128 %s, v%d offset:%d' % (vr(af(s, kt), 4), vAr + (s & 1) + (2 if sl == 2 else 0), (sl & 1) * 32768 + kt * 2048))
    for s in range(16):
        for g in range(2):
            for d in range(4):
                for kt in range(4):
                    w = vr(FR + g * 16 + d * 4, 4); x = vr(af(s, kt), 4)
                    t = vr(tK(kt, d) if g == 0 else tV(kt, d), 4)
                    i = S.mfma(MF % ((t, w, x, '0' if s == 0 else t) if g == 0 else (t, x, w, '0' if s == 0 else t)))
                    if kt == 0: S.add_pre(i, lw(('W', s, g, d)))
                    if g == 0 and d == 0: S.add_pre(i, lw(('A', s, kt)))
    UB = [[32, 36, 40, 44, 192, 196, 200, 204, 96, 100, 104, 108], [48, 52, 56, 60, 208, 212, 216, 220, 112, 116, 120, 124]]
    def uf(n, ks, q): return UB[n & 1][ks * 6 + q]
    def ua(c, tt): return UACC + (c * 4 + tt) * 4
    def rdU(n, ks, q):
        return rd(('U', n, ks, q), 'ds_read_b128 %s, v%d offset:%d' % (vr(uf(n, ks, q), 4), UAD + ks + (2 if q >= 4 else 0), q * 2048 if q < 4 else (q - 4) * 8192))
    def uaddr(n):
        return ['s_add_u32 s33, s%d, 0x%x\nv_add_u32 v%d, s33, v%d\nv_add_u32 v%d, s33, v%d' % (sb, USLOT[n % 5], UAD + o, vL0, UAD + o + 1, vL0 + 1) for sb, o in ((sUx, 0), (sUb, 2))]
    BU = 512
    if isU:
        for n in range(10):
            for ks in range(2):
                for c in range(2):
                    for tt in range(4):
                        d = vr(ua(c, tt), 4)
                        i = S.mfma(MF % (d, vr(uf(n, ks, tt), 4), vr(uf(n, ks, 4 + c), 4), '0' if (n == 0 and ks == 0) else d))
                        if n == 0:
                            if c == 0: S.add_pre(i, lw(('U', n, ks, tt)))
                            if tt == 0: S.add_pre(i, lw(('U', n, ks, 4 + c)))
    BQ = 672 if isU else 512
    def tile(qt, dt): return ACC + (dt * 2 + qt) * 4
    def qf(s, qt): return Q + (s * 2 + qt) * 4
    def xf(s, ks, qt): return XF + (((s & 1) * 2 + ks) * 2 + qt) * 4
    def rdQW(s, g, q, hf): return rd(('QW', s, g, q), 'ds_read_b64_tr_b16 %s, v%d offset:%d' % (vr(FR + (g & 1) * 16 + q * 4 + hf * 2, 2), vT + 2 * g + (q >> 1), wslot(s) + (q & 1) * 8192 + hf * 1024))
    def rdX(s, ks, qt): return rd(('X', s, ks, qt), 'ds_read_b128 %s, v%d offset:%d' % (vr(xf(s, ks, qt), 4), vAr + ks + (2 if xreg(s) == 2 else 0), (xreg(s) & 1) * 32768 + qt * 2048))
    for s in range(10):
        for g in range(4):
            for q in range(4):
                for qt in range(2):
                    d = vr(tile(qt, 2 * g + (q >> 1)), 4)
                    i = S.mfma(MF % (d, vr(FR + (g & 1) * 16 + q * 4, 4), vr(xf(s, q & 1, qt), 4), '0' if (s == 0 and (q & 1) == 0) else d))
                    if qt == 0: S.add_pre(i, lw(('QW', s, g, q)))
                    if g == 0 and q < 2: S.add_pre(i, lw(('X', s, q, qt)))
    def qfirst(s):
        L = [rdQW(s, 0, q, hf) for q in range(4) for hf in range(2)]
        return L[:2] + [rdX(s, 0, 0), rdX(s, 0, 1)] + L[2:4] + [rdX(s, 1, 0), rdX(s, 1, 1)] + L[4:]
    PF = {}
    tS = sKV
    def pfb(w, base, lim, idx, wq=False):
        vP = vKS0
        v = ['v_lshrrev_b32 v%d, 3, v1\nv_lshlrev_b32 v%d, 13, v%d' % (vP, vP, vP), 'v_and_b32 v%d, 7, v1\nv_lshl_add_u32 v%d, v%d, 7, v%d' % (vKS, vP, vKS, vP)] if wq else ['v_lshlrev_b32 v%d, 7, v1' % vP]
        return [base + '\ns_and_b32 s%d, s%d, 0xffff\ns_mov_b32 s%d, 0x00020000' % (tS + 1, tS + 1, tS + 3), lim + '\ns_cmp_eq_u32 s3, %d\ns_cselect_b32 s%d, s33, 0' % (w, tS + 2)] + v + \
               [vmi(idx + '\nv_add_u32 v%d, s32, v%d\nbuffer_load_dword v%d, v%d, %s, 0 offen' % (vP, vP, vPf, vP, sr(tS, 4)))]
    def pb(k): return 's_mov_b32 s%d, s%d\ns_mov_b32 s%d, s%d' % (tS, P[k], tS + 1, P[k] + 1)
    def pb2(k, k2): return 's_cmp_lt_u32 s2, 128\ns_cselect_b32 s%d, s%d, s%d\ns_cselect_b32 s%d, s%d, s%d' % (tS, P[k], P[k2], tS + 1, P[k] + 1, P[k2] + 1)
    def xpart(sz, o): return 's_lshr_b32 s32, s2, 3\ns_add_u32 s32, s32, %d\ns_lshl_b32 s32, s32, 13\ns_mul_i32 s33, s%d, %d\ns_add_u32 s32, s32, s33' % (o, sX_, sz)
    def xlim(sz): return 's_add_u32 s33, s%d, 1\ns_mul_i32 s33, s33, %d' % (sX_, sz)
    def cl(v): return 's_mov_b32 s33, 0x%x' % v
    h128 = 's_and_b32 s32, s2, 127\ns_lshl_b32 s32, s32, 13'
    PF[1] = pfb(0, pb('A_x'), xlim(327680), xpart(327680, 0))
    PF[2] = pfb(1, pb('B_x'), cl(2048 * 1280), 's_lshl_b32 s32, s2, 13')
    PF[3] = pfb(2, pb2('Bre', 'Bim'), cl(640 * 1280), h128)
    for k in range(3):
        PF[4 + k] = pfb(3 + k, pb('wq'), cl(640 * 8192), 's_lshr_b32 s32, s2, 3\ns_add_u32 s32, s32, %d\ns_lshl_b32 s32, s32, 16\ns_lshl_b32 s33, s%d, 10\ns_add_u32 s32, s32, s33' % (32 * k, sX_), True)
        PF[10 + k] = pfb(2 + k, pb('wo'), xlim(655360), xpart(655360, 32 * k))
    PF[7] = pfb(6, pb('A_x'), xlim(327680), xpart(327680, 32))
    PF[8] = pfb(7, pb('B_x'), cl(2048 * 1280), 's_lshl_b32 s32, s2, 13\ns_add_u32 s32, s32, 0x200000')
    PF[9] = pfb(1, pb2('Cre', 'Cim'), cl(640 * 1280), h128)
    BP = 12
    for s in range(16):
        b = 32 * s
        S.spread([rdW(s, 1, d, hf) for d in range(4) for hf in range(2)], b, b + 8)
        tags = []
        if s < 15: tags = [lambda s=s: tagW[s + 1], lambda s=s: tagA[(s + 1) >> 1]]
        elif isU: tags = [lambda: tagU[0]]
        else: tags = [lambda: tagQW[0], lambda: tagX[0]]
        if s == 3: tags.append(lambda: tg['sent'])
        S.add_post(b + BP, mkbar(tags, 2 + s))
        for q, p in enumerate((20, 28, 36)): S.add_post(b + p, 's_setprio %d' % (2 - q))
        if s == 3: S.add_post(b + BP, vmi(publish(1)))
        if s < 15:
            W = [rdW(s + 1, 0, d, hf) for d in range(4) for hf in range(2)]
            S.spread([rdA(s + 1, 0), W[0], W[1], rdA(s + 1, 1), rdA(s + 1, 2), rdA(s + 1, 3)] + W[2:], b + BP + 1, b + 28)
        D = []
        if s + 4 < 16: D += [dmaW(s + 4, 0), dmaW(s + 4, 1)]
        if 1 <= s <= 10:
            Dn = ((s - 1) >> 1) + 3; o = 2 * ((s - 1) & 1)
            D += [dmaA(Dn, o), dmaA(Dn, o + 1)]
        if isU:
            if s == 11: D += [dmaU(0, 0), dmaU(0, 1)]
            if s == 12: D += [dmaU(0, 2), dmaU(0, 3)]
            if s == 13: D += [dmaU(1, i) for i in range(4)]
            if s == 14: D += [dmaU(2, i) for i in range(4)]
            if s == 15: D += [dmaU(3, i) for i in range(4)]
        else:
            if s >= 12: D += [dmaQW(s - 12, 0), dmaQW(s - 12, 1)]
            if s >= 11:
                n = (s - 11) >> 1; o = 2 * ((s - 11) & 1)
                D += [dmaX(n, o), dmaX(n, o + 1)]
        for k, dd in enumerate(D): S.add_post(b + BP + 2 + 5 * k, dd)
        if s in PF and 'nopf' not in XO:
            S.spread(PF[s][:-1], b + 20, b + 29) if len(PF[s]) > 1 else None
            S.add_post(b + 31, PF[s][-1])
    S.add_pre(32 * 10 + 2, '@SPLIT')
    xset = ['s_sub_u32 s32, 15, s%d\ns_and_b32 s33, s3, 3\ns_lshl_b32 s%d, s32, 2\ns_add_u32 s%d, s%d, s33' % (sI, sDq, sDq, sDq),
            's_lshl_b32 s%d, s%d, 2\ns_and_b32 s33, s3, 3\ns_add_u32 s%d, s%d, s33' % (sN, sI, sN, sN),
            's_lshl_b32 s%d, s%d, 18\ns_lshl_b32 s%d, s%d, 18' % (sCtA, sN, sCtB, sDq),
            's_cmp_ge_u32 s3, 4\ns_cselect_b32 s%d, s%d, s%d' % (sJ1, sN, sDq),
            's_lshl_b32 s32, s%d, 5\nv_lshrrev_b32 v%d, 3, v1\nv_add_u32 v%d, s32, v%d' % (sJ1, vTm, vTm, vTm), 'v_mul_u32_u24 v%d, 1280, v%d' % (vTm, vTm),
            'v_and_b32 v%d, 0x70, v%d' % (vX, vX), 'v_and_b32 v%d, 0x70, v%d' % (vX + 1, vX + 1),
            'v_add_u32 v%d, v%d, v%d' % (vX, vX, vTm), 'v_add3_u32 v%d, v%d, v%d, s%d' % (vX + 1, vX + 1, vTm, sThr),
            srd_l(sA, P['B_x'], 2048 * 1280)]
    S.add_post(32 * 10 + 30, 's_movk_i32 s%d, 10240' % sThr)
    if isU:
        uset = ['s_lshl_b32 s32, s%d, 7\ns_lshr_b32 s33, s3, 1\ns_lshl_b32 s33, s33, 6\ns_add_u32 s%d, s32, s33' % (sTT, sUx),
                's_lshl_b32 s33, s%d, 6\ns_cmp_lt_u32 s3, 4\ns_cselect_b32 s%d, s%d, s33' % (sCB, sUx, sUx),
                's_and_b32 s33, s3, 1\ns_lshl_b32 s33, s33, 3\ns_add_u32 s%d, s%d, s33' % (sUx, sUx),
                'v_lshrrev_b32 v%d, 5, v1\nv_bfe_u32 v%d, v1, 3, 2' % (vTm, vU), 'v_lshl_add_u32 v%d, v%d, 4, v%d' % (vTm, vTm, vU), 'v_add_u32 v%d, s%d, v%d' % (vTm, sUx, vTm),
                'v_mul_u32_u24 v%d, 1280, v%d' % (vTm, vTm),
                'v_and_b32 v%d, 0x70, v%d' % (vU, vX), 'v_and_b32 v%d, 0x70, v%d' % (vU + 1, vX + 1),
                'v_add_u32 v%d, v%d, v%d' % (vU, vU, vTm), 'v_add_u32 v%d, v%d, v%d' % (vU + 1, vU + 1, vTm), 'v_add_u32 v%d, 0x%x, v%d' % (vU + 1, 32 * 1280, vU + 1),
                's_cmp_lt_u32 s3, 6\ns_cselect_b32 s32, s%d, s%d\ns_cselect_b32 s33, s%d, s%d\n' % (P['Bre'], P['Bim'], P['Bre'] + 1, P['Bim'] + 1) +
                's_cmp_lt_u32 s3, 4\ns_cselect_b32 s%d, s%d, s32\ns_cselect_b32 s33, s%d, s33\n' % (sUS, P['A_x'], P['A_x'] + 1) +
                's_mov_b32 s32, 0x%x\ns_cselect_b32 s%d, 0x%x, s32\ns_and_b32 s%d, s33, 0xffff\ns_mov_b32 s%d, 0x00020000' % (640 * 1280, sUS + 2, 2048 * 1280, sUS + 1, sUS + 3),
                's_lshr_b32 s%d, s3, 2\ns_lshl_b32 s%d, s%d, 13' % (sUx, sUx, sUx),
                's_and_b32 s%d, s3, 3\ns_lshl_b32 s%d, s%d, 11\ns_add_u32 s%d, s%d, 0x4000' % (sUb, sUb, sUb, sUb, sUb)]
        S.spread(uset, 32 * 10 + 3, 32 * 11 + 10)
        S.spread(xset, 32 * 12 + 16, 32 * 13 + 10)
    else:
        S.spread(xset, 32 * 10 + 31, 32 * 11 + 12)
    wset = ['s_lshr_b32 s32, s3, 2\ns_lshl_b32 s32, s32, 18\nv_add_u32 v%d, s32, v%d' % (vW, vW), srd_l(sW, P['wq'], 640 * 8192)]
    S.spread(wset, 32 * 12 + 2, 32 * 12 + 8)
    b = 32 * 15
    S.spread(['s_add_u32 s33, s%d, 0x10000\nv_add_u32 v%d, s33, v%d\nv_add_u32 v%d, s33, v%d' % (sXl, vAr + 2, vL0, vAr + 3, vL0 + 1),
              'v_add_u32 v%d, s%d, v%d' % (vAr, sXl, vL0), 'v_add_u32 v%d, s%d, v%d' % (vAr + 1, sXl, vL0 + 1)], b + 1, b + 6)
    S.spread(['v_xor_b32 v%d, s%d, v%d' % (vT + dt, sD, vT + dt) for dt in range(4)], b + 8, b + 12)
    S.add_post(b + 12, 's_mov_b32 s%d, s%d' % (sD, sJ1))
    KP = 64 if isU else 224
    S.spread(sum([pack8(KP + 4 * f, ACC + 8 * f) for f in range(4)], []), b + 10, b + 18)
    S.spread(sum([pack8(KP + 4 * f, ACC + 8 * f) for f in range(4, 8)], []), b + 18, b + 26)
    for f in range(8):
        e = b + 16 + 2 * f + 1
        S.spread(pack8(128 + 4 * f, 128 + 8 * f), max(e + 4, b + 26 + f), max(e + 6, b + 28 + f))
    def stK(f):
        kt, s_ = f & 3, f >> 2
        return vmi('s_add_u32 s33, s%d, 0x%x\nbuffer_store_dwordx4 %s, v%d, %s, s33 offen offset:%d sc1' % (sK0, (kt >> 1) * 16384 + (kt & 1) * 4096, vr(KP + 4 * f, 4), vL16, sr(sKVO, 4), s_ * 1024), 'kv')
    def stV(f):
        d, kb = f >> 1, f & 1
        return vmi('s_add_u32 s33, s%d, 0x%x\nbuffer_store_dwordx4 %s, v%d, %s, s33 offen offset:%d sc1' % (sV0, kb * 16384, vr(128 + 4 * f, 4), vL16, sr(sKVO, 4), d * 1024), 'kv')
    ST = [stK(f) for f in range(8)] + [stV(f) for f in range(8)]
    if 'nokvst' in XO: ST = [vmi('buffer_load_dword v%d, v%d, %s, 0 offen' % (vPf, vL16, sr(sKVO, 4)), 'kv') for f in range(16)]
    T = 160
    def cis(m_mag, m_ang, re, im, tmp):
        return ['v_fract_f32 v%d, v%d' % (im, m_ang), 'v_exp_f32 v%d, v%d' % (tmp, m_mag), 'v_cos_f32 v%d, v%d' % (re, im), 'v_sin_f32 v%d, v%d' % (im, im),
                'v_mul_f32 v%d, v%d, v%d' % (re, re, tmp), 'v_mul_f32 v%d, v%d, v%d' % (im, im, tmp)]
    if isU:
        S.spread(uaddr(0), b + 6, b + 10)
        S.spread([rdU(0, 0, q) for q in (0, 4, 1, 2, 3, 5)] + [rdU(0, 1, 0), rdU(0, 1, 1)], b + 16, b + 26)
        S.spread([rdU(0, 1, q) for q in (4, 2, 3, 5)], b + 27, b + 32)
        for n in range(10):
            u = BU + 16 * n
            tags = [lambda n=n: tagU[n + 1]] if n < 9 else [lambda: tagQW[0], lambda: tagX[0]]
            S.add_pre(u, mkbar(tags, 20 + n))
            for q, p in enumerate((4, 8, 12)): S.add_post(u + p, 's_setprio %d' % (2 - q))
            if n < 9: S.spread(uaddr(n + 1) + [rdU(n + 1, ks, q) for ks in range(2) for q in range(6)], u, u + 12)
            else: S.spread(qfirst(0), u, u + 12)
            if n == 0: D = [dmaU(4, i) for i in range(4)] + [dmaU(5, i) for i in range(4)]
            elif n < 5: D = [dmaU(n + 5, i) for i in range(4)]
            elif n & 1: D = [dmaX((n - 5) >> 1, i) for i in range(4)]
            else: D = [dmaQW(n - 6 + (i >> 1), i & 1) for i in range(4)]
            S.spread(D, u + 1, u + 16)
        S.spread(ST[:8], BU + 3, BU + 155)
        S.spread(ST[8:], BQ + 3, BQ + 200)
        LR, A_, L16, L32, L256, G64, EO, LO, PA, PB, EL = T, T + 2, T + 4, T + 6, T + 8, T + 10, T + 12, T + 14, T + 16, T + 18, T + 16
        TR = vTm
        SC = ['v_and_b32 v%d, 3, v1\nv_bfe_u32 v%d, v1, 2, 2' % (PA, TR), 'v_lshl_add_u32 v%d, v%d, 4, v%d' % (TR, TR, PA),
              's_lshl_b32 s32, s%d, 6\ns_and_b32 s33, s3, 3\ns_lshl_b32 s33, s33, 2\ns_add_u32 s32, s32, s33\nv_add_lshl_u32 v%d, v%d, s32, 1' % (sCB, TR, TR)]
        SC += [vmi('global_load_ushort v%d, v%d, %s' % (PA + p, TR, sr(P[k], 2)), 'par') for p, k in enumerate(('Lre', 'Lim', 'logdt'))]
        S.spread(SC, BU + 10, BU + 22)
        SC = [vmw('par')] + ['v_lshlrev_b32 v%d, 16, v%d' % (PA + p, PA + p) for p in range(3)] + lam_params(A_, PA, PA + 1, PA + 2)
        SC += cis(A_, A_ + 1, LR, LR + 1, TR)
        for W, m in ((L16, 16.0), (L32, 32.0), (L256, 256.0)):
            SC += ['v_mul_f32 v%d, %s, v%d' % (W + 1, f32(m), A_ + 1), 'v_mul_f32 v%d, %s, v%d' % (TR, f32(m), A_)] + cis(TR, W + 1, W, W + 1, TR)
        SC += ['v_lshrrev_b32 v%d, 4, v1' % TR, 'v_lshlrev_b32 v%d, 6, v%d' % (TR, TR), 'v_cvt_f32_u32 v%d, v%d' % (TR, TR),
               'v_mul_f32 v%d, v%d, v%d' % (G64 + 1, TR, A_ + 1), 'v_mul_f32 v%d, v%d, v%d' % (TR, TR, A_)] + cis(TR, G64 + 1, G64, G64 + 1, TR)
        S.spread(SC, BU + 70, BU + 150)
        def cfma(d, m, x, y):
            return ['v_fma_f32 v%d, v%d, v%d, v%d' % (d, m, x, y), 'v_fma_f32 v%d, v%d, v%d, v%d' % (d + 1, m, x + 1, y + 1),
                    'v_fma_f32 v%d, -v%d, v%d, v%d' % (d, m + 1, x + 1, d), 'v_fmac_f32 v%d, v%d, v%d' % (d + 1, m + 1, x)]
        def ur(k): return UACC + k
        def ui(k): return UACC + 16 + k
        SC = []
        for k in range(1, 16):
            d = PA if k & 1 else PB
            er, ei = (ur(0), ui(0)) if k == 1 else ((PB, PB + 1) if k & 1 else (PA, PA + 1))
            SC += ['v_fma_f32 v%d, v%d, v%d, v%d' % (d, LR, er, ur(k)), 'v_fma_f32 v%d, v%d, v%d, v%d' % (d + 1, LR, ei, ui(k)),
                   'v_fma_f32 v%d, -v%d, v%d, v%d' % (d, LR + 1, ei, d), 'v_fmac_f32 v%d, v%d, v%d' % (d + 1, LR + 1, er)]
        SC += ['v_mov_b32 v%d, v%d' % (EO + c, PA + c) for c in range(2)] + ['v_permlane16_swap_b32 v%d, v%d' % (EO + c, PA + c) for c in range(2)]
        SC += cfma(PA, L16, EO, PA)
        SC += ['v_mov_b32 v%d, v%d' % (LO + c, PA + c) for c in range(2)] + ['v_permlane32_swap_b32 v%d, v%d' % (LO + c, PA + c) for c in range(2)]
        SC += cfma(PA, L32, LO, PA)
        SC += ['v_min_u32 v%d, -2, v%d' % (PA + c, PA + c) for c in range(2)]
        SC += ['v_lshrrev_b32 v%d, 4, v1\nv_lshlrev_b32 v%d, 3, v1' % (TR, PB), 'v_lshl_add_u32 v%d, v%d, 12, v%d' % (PB, TR, PB)]
        SC += [vmi('buffer_store_dwordx2 %s, v%d, %s, s%d offen sc1' % (vr(PA, 2), PB, sr(sES, 4), sEo))]
        S.spread(SC, BQ + 4, BQ + 48)
        S.add_post(BQ + 60, vmi('s_lshl_b32 s32, s3, 8\nv_lshl_add_u32 v%d, v1, 2, s32\nbuffer_load_dword v%d, v%d, %s, 0 offen sc1' % (vU, TR, vU, sr(sDB, 4)), 'st'))
        chk = ['v_or_b32 v%d, %s, v%d' % (TR, H8, TR), 'v_subrev_u32 v%d, 0x01010101, v%d' % (TR, TR), 'v_and_b32 v%d, %s, v%d' % (TR, H8, TR), 'v_cmp_ne_u32 vcc, %s, v%d' % (H8, TR)]
        S.spread([vmw('st')] + chk + ['s_cmp_lg_u32 s3, 0\ns_cbranch_scc1 fU_st_ret\ns_cbranch_vccnz fU_st\nfU_st_ret:'], BQ + 108, BQ + 120)
        t = tail
        t.label('fU_st'); t('s_mov_b32 s32, %d' % SPIN); t.label('fU_st_l'); t('s_sleep 8')
        t('buffer_load_dword v%d, v%d, %s, 0 offen sc1' % (TR, vU, sr(sDB, 4))); t('s_waitcnt vmcnt(0)'); t.extend(chk)
        t('s_cbranch_vccz fU_st_ret'); t('s_sub_u32 s32, s32, 1'); t('s_cmp_lg_u32 s32, 0'); t('s_cbranch_scc1 fU_st_l'); t('s_branch fU_st_ret')
        vE = vU + 1
        eld = ['buffer_load_dwordx2 %s, v%d, %s, 0 offen offset:%d sc1' % (vr(EL + 2 * m, 2), vE, sr(sES, 4), 128 + 512 * m) for m in range(8)]
        S.spread(['v_lshl_add_u32 v%d, v1, 3, s%d' % (vE, sEo)] + [vmi(e, 'es') for e in eld], BQ + 122, BQ + 140)
        emax = ['v_max3_u32 v%d, v%d, v%d, v%d' % (TR, EL, EL + 1, EL + 2)] + ['v_max3_u32 v%d, v%d, v%d, v%d' % (TR, TR, EL + k, EL + k + 1) for k in range(3, 15, 2)] + \
               ['v_max_u32 v%d, v%d, v%d' % (TR, TR, EL + 15), 'v_cmp_eq_u32 vcc, -1, v%d' % TR]
        SC = [vmw('es')] + emax + ['s_nop 0', 's_cbranch_vccnz fU_es\nfU_es_ret:']
        t.label('fU_es'); t('s_mov_b32 s32, %d' % SPIN); t.label('fU_es_l'); t('s_sleep 8')
        t.extend(eld); t('s_waitcnt vmcnt(0)'); t.extend(emax)
        t('s_cbranch_vccz fU_es_ret'); t('s_sub_u32 s32, s32, 1'); t('s_cmp_lg_u32 s32, 0'); t('s_cbranch_scc1 fU_es_l'); t('s_branch fU_es_ret')
        for m in range(6, -1, -1): SC += cfma(EL + 2 * m, L256, EL + 2 * m + 2, EL + 2 * m)
        C_ = EL + 2; X_ = EL + 4
        SC += ['v_mul_f32 v%d, v%d, v%d' % (C_, G64, EL), 'v_mul_f32 v%d, v%d, v%d' % (C_ + 1, G64, EL + 1),
               'v_fma_f32 v%d, -v%d, v%d, v%d' % (C_, G64 + 1, EL + 1, C_), 'v_fmac_f32 v%d, v%d, v%d' % (C_ + 1, G64 + 1, EL)]
        for sw in ('16', '32'):
            SC += ['v_mov_b32 v%d, v%d' % (X_ + c, C_ + c) for c in range(2)] + ['v_permlane%s_swap_b32 v%d, v%d' % (sw, C_ + c, X_ + c) for c in range(2)]
            SC += ['v_add_f32 v%d, v%d, v%d' % (C_ + c, C_ + c, X_ + c) for c in range(2)]
        SC += cfma(LO, L32, C_, LO)
        SC += ['v_cmp_lt_u32 vcc, 31, v1\nv_cndmask_b32 v%d, v%d, v%d, vcc\nv_cndmask_b32 v%d, v%d, v%d, vcc' % (C_, C_, LO, C_ + 1, C_ + 1, LO + 1)]
        SC += cfma(EO, L16, C_, EO)
        SC += ['v_and_b32 v%d, 16, v1' % TR, 'v_cmp_ne_u32 vcc, 0, v%d\nv_cndmask_b32 v%d, v%d, v%d, vcc\nv_cndmask_b32 v%d, v%d, v%d, vcc' % (TR, C_, C_, EO, C_ + 1, C_ + 1, EO + 1)]
        SC += [srd_l(sUS, P['ws'], 5 << 20, WS_HT),
               's_mul_i32 s32, s%d, 40\ns_add_u32 s32, s32, s%d\ns_lshl_b32 s32, s32, 1\ns_and_b32 s33, s%d, 1\ns_add_u32 s32, s32, s33\n' % (sX_, sHo, sTT) +
               's_lshl_b32 s32, s32, 1\ns_lshr_b32 s33, s3, 2\ns_add_u32 s32, s32, s33\ns_lshl_b32 s%d, s32, 12' % sHo,
               'v_xor_b32 v%d, 0x80, v%d' % (vE, vL16)]
        for k in range(16):
            pr, pi = (C_, C_ + 1) if k == 0 else (ur(k - 1), ui(k - 1))
            SC += ['v_fmac_f32 v%d, v%d, v%d' % (ur(k), LR, pr), 'v_fmac_f32 v%d, v%d, v%d' % (ui(k), LR, pi),
                   'v_fma_f32 v%d, -v%d, v%d, v%d' % (ur(k), LR + 1, pi, ur(k)), 'v_fmac_f32 v%d, v%d, v%d' % (ui(k), LR + 1, pr)]
            if k in (8, 15):
                hh = 0 if k == 8 else 1
                for c, base in enumerate((ur(8 * hh), ui(8 * hh))):
                    SC += pack8(base, base)
                    SC += [vmi('buffer_store_dwordx4 %s, v%d, %s, s%d offen offset:%d sc1' % (vr(base, 4), vE if hh else vL16, sr(sUS, 4), sHo, c * 2048 + hh * 1024), 'kv')]
        S.spread(SC, BQ + 170, BQ + 280)
    else:
        S.spread(qfirst(0), b + 16, b + 31)
        S.spread([dmaX(2, 2), dmaX(2, 3)], BQ + 1, BQ + 7)
        S.spread(ST, BQ + 7, BQ + 80)
        sWid, sDbk, sU_ = sUx, sUb, sTT
        C0 = T; CP = T + 16; TT = 6
        vC = vTm
        SC = ['s_lshl_b32 s32, s2, 3\ns_add_u32 s%d, s32, s3' % sWid,
              srd_l(sES, P['ws'], 1600 * 1024, WS_CC), 's_cmp_lt_u32 s%d, 400\ns_cselect_b32 s%d, s%d, 0\ns_cselect_b32 s%d, s%d, 0' % (sWid, sES + 2, sES + 2, sWid, sWid),
              's_mul_i32 s%d, s%d, 6554\ns_lshr_b32 s%d, s%d, 16' % (sDbk, sWid, sDbk, sDbk), 's_mul_i32 s32, s%d, 10\ns_sub_u32 s%d, s%d, s32' % (sDbk, sU_, sWid),
              's_lshl_b32 s32, s%d, 7\nv_lshl_add_u32 v%d, v1, 1, s32' % (sU_, vC)]
        SC += [vmi('global_load_ushort v%d, v%d, %s' % (CP + p, vC, sr(P[k], 2))) for p, k in enumerate(('Lre', 'Lim', 'logdt'))]
        SC += ['v_and_b32 v%d, 15, v1\ns_lshl_b32 s33, s%d, 4\nv_add_u32 v%d, s33, v%d' % (vC, sDbk, vC, vC), 'v_mul_u32_u24 v%d, 1280, v%d' % (vC, vC),
               'v_lshrrev_b32 v%d, 4, v1\nv_lshl_add_u32 v%d, v%d, 5, v%d' % (TT, vC, TT, vC), 's_lshl_b32 s32, s%d, 7\nv_add_u32 v%d, s32, v%d' % (sU_, vC, vC)]
        for p, k in enumerate(('Cre', 'Cim')):
            for o in range(2): SC.append(vmi('global_load_dwordx4 %s, v%d, %s offset:%d' % (vr(C0 + 8 * p + 4 * o, 4), vC, sr(P[k], 2), 16 * o), 'cc'))
        S.spread(SC, BQ + 14, BQ + 40)
        E = CP + 3
        SC = [vmw('cc')] + ['v_lshlrev_b32 v%d, 16, v%d' % (CP + p, CP + p) for p in range(3)] + lam_params(E, CP, CP + 1, CP + 2)
        SC += ['v_exp_f32 v%d, v%d' % (E, E), 'v_cos_f32 v%d, v%d' % (E + 2, E + 1), 'v_sin_f32 v%d, v%d' % (E + 1, E + 1),
               'v_fma_f32 v%d, v%d, v%d, -1.0' % (E + 2, E, E + 2), 'v_mul_f32 v%d, v%d, v%d' % (E + 1, E, E + 1),
               'v_mul_f32 v%d, v%d, v%d' % (E + 3, CP, CP), 'v_fmac_f32 v%d, v%d, v%d' % (E + 3, CP + 1, CP + 1),
               'v_rcp_f32 v%d, v%d' % (E + 3, E + 3), 'v_add_f32 v%d, v%d, v%d' % (E + 3, E + 3, E + 3),
               'v_mul_f32 v%d, v%d, v%d' % (E + 4, E + 2, CP), 'v_fmac_f32 v%d, v%d, v%d' % (E + 4, E + 1, CP + 1),
               'v_mul_f32 v%d, v%d, v%d' % (E, E + 1, CP), 'v_fma_f32 v%d, -v%d, v%d, v%d' % (E, E + 2, CP + 1, E)]
        AR, NAR, NAI = CP, CP + 1, CP + 2
        SC += ['v_mul_f32 v%d, v%d, v%d' % (AR, E + 4, E + 3), 'v_mul_f32 v%d, -v%d, v%d' % (NAR, E + 4, E + 3), 'v_mul_f32 v%d, -v%d, v%d' % (NAI, E, E + 3)]
        SC += ['s_mul_i32 s32, s%d, 6554\ns_lshr_b32 s32, s32, 16\ns_mul_i32 s33, s32, 390\ns_add_u32 s33, s33, s%d\ns_mul_i32 s32, s%d, 40\ns_add_u32 s33, s33, s32\ns_lshl_b32 s%d, s33, 10' % (sDbk, sDbk, sU_, sWid)]
        OB = (T + 24, T + 28); X = TT
        for n in range(16):
            re = C0 + (n >> 1); im = re + 8
            y0 = X + 2 + (n & 1); y1 = X + 4 + (n & 1)
            if n & 1: SC += ['v_and_b32 v%d, 0xffff0000, v%d' % (X, re), 'v_and_b32 v%d, 0xffff0000, v%d' % (X + 1, im)]
            else: SC += ['v_lshlrev_b32 v%d, 16, v%d' % (X, re), 'v_lshlrev_b32 v%d, 16, v%d' % (X + 1, im)]
            D = ' row_newbcast:%d row_mask:0xf bank_mask:0xf' % n
            SC += ['v_mul_f32_dpp v%d, v%d, v%d' % (y0, AR, X) + D, 'v_mul_f32_dpp v%d, v%d, v%d' % (y1, NAR, X + 1) + D,
                   'v_fmac_f32_dpp v%d, v%d, v%d' % (y0, NAI, X + 1) + D, 'v_fmac_f32_dpp v%d, v%d, v%d' % (y1, NAI, X) + D]
            if n & 1:
                O = OB[(n >> 2) & 1]
                SC += [cvt(O + ((n >> 1) & 1), X + 2, X + 3), cvt(O + 2 + ((n >> 1) & 1), X + 4, X + 5)]
            if n & 3 == 3:
                SC.append(vmi('s_add_u32 s33, s%d, %d\nbuffer_store_dwordx4 %s, v%d, %s, s33 offen sc1' % (sWid, (n >> 2) * 10240, vr(O, 4), vL16, sr(sES, 4)), 'cs'))
        S.spread(SC, BQ + 100, BQ + 270)
    for s in range(10):
        b = BQ + 32 * s
        for g in range(3):
            S.spread([rdQW(s, g + 1, q, hf) for q in range(4) for hf in range(2)], b + 8 * g, b + 8 * g + 6)
        S.spread([dmaX(s + 3, i) for i in range(4)], b + 8, b + 24)
        if s == 9: break
        tags = [lambda s=s: tagQW[s + 1], lambda s=s: tagX[s + 1]]
        if not isU and s == 3: tags.append(lambda: tg['kv'])
        S.add_post(b + 25, mkbar(tags, 32 + s))
        if not isU and s == 3: S.add_post(b + 25, vmi(publish(2, vPf)))
        for q, p in enumerate((33, 41, 49)): S.add_post(b + p, 's_setprio %d' % (2 - q))
        S.spread(qfirst(s + 1), b + 25, b + 31)
        if s + 4 < 10: S.spread([dmaQW(s + 4, 0), dmaQW(s + 4, 1)], b + 28, b + 36)
    aset = ['s_lshl_b32 s32, s%d, 20\ns_add_u32 s%d, s%d, s32\ns_addc_u32 s%d, s%d, 0\ns_and_b32 s%d, s%d, 0xffff' % (sH, sKV, P['ws'], sKV + 1, P['ws'] + 1, sKV + 1, sKV + 1),
            's_sub_u32 s32, 16, s%d\ns_lshl_b32 s%d, s32, 16\ns_mov_b32 s%d, 0x00020000\ns_mov_b32 s%d, s%d' % (sI, sKV + 2, sKV + 3, sLim, sKV + 2),
            's_lshl_b32 s32, s%d, 13\ns_add_u32 s%d, s%d, s32\ns_add_u32 s%d, s%d, s32' % (sH, sCtA, sCtA, sCtB, sCtB),
            's_lshr_b32 s32, s3, 1\ns_lshl_b32 s32, s32, 14\ns_and_b32 s33, s3, 1\ns_lshl_b32 s33, s33, 12\ns_add_u32 s32, s32, s33\nv_add_u32 v%d, s32, v%d' % (vKS0, vL16),
            's_lshr_b32 s32, s3, 2\ns_lshl_b32 s32, s32, 14\ns_and_b32 s33, s3, 3\ns_lshl_b32 s33, s33, 11\ns_add_u32 s32, s32, s33\nv_add_u32 v%d, s32, v%d' % (vKS, vL16),
            's_mov_b32 s%d, s%d\ns_add_u32 s%d, s%d, 0x8000' % (sKm0, sWl, sVm0, sWl), 's_mov_b32 s%d, 0x20000\ns_mov_b32 s%d, 0x12000' % (sKsrc, sVsrc),
            's_lshl_b32 s32, s%d, 1\ns_add_u32 s%d, s32, 2' % (sI, sJ1), 's_mov_b32 s%d, 0\ns_mov_b32 s%d, 0' % (sJ, sN), 's_mov_b32 s%d, %s' % (sThr, f32(2.0 ** 30)),
            's_cmp_eq_u32 s3, 0\ns_cselect_b32 s%d, 0x6081, 0' % sHook]
    S.spread(aset, BQ + 132, BQ + 165)
    S.add_post(BQ + 172, vmi(rdy_load(vPf, vPub), 'rdy'))
    S.spread([vmw('rdy'), '\n'.join(rdy_calc(vPf)) + '\ns_add_u32 s32, s%d, s3\ns_cmp_eq_u32 s32, 0\ns_cbranch_scc1 f%s_kv\nf%s_kv_ret:' % (sRdy, role, role)], BQ + 212, BQ + 216)
    t = tail
    t.label('f%s_kv' % role); t('s_mov_b32 s100, %d' % SPIN); t.label('f%s_kv_l' % role); t('s_sleep 8')
    t(rdy_load(vPf, vPub)); t('s_waitcnt vmcnt(0)'); t.extend(rdy_calc(vPf)); t('s_cmp_lg_u32 s%d, 0' % sRdy); t('s_cbranch_scc1 f%s_kv_ret' % role)
    t('s_sub_u32 s100, s100, 1'); t('s_cmp_lg_u32 s100, 0'); t('s_cbranch_scc1 f%s_kv_l' % role); t('s_branch f%s_kv_ret' % role)
    def fin(g):
        o = []
        for qt in range(2):
            for h2 in range(2):
                tt = tile(qt, 2 * g + h2)
                o += ['v_mul_f32 v%d, %s, v%d' % (tt + r, f32(QSCALE), tt + r) for r in range(4)]
                o += [cvt(qf(g, qt) + 2 * h2 + r, tt + 2 * r, tt + 2 * r + 1) for r in range(2)]
        return o
    e = BQ + 288
    for g in range(2): S.spread(fin(g), e + 8 * g + 11, e + 8 * g + 19)
    S.spread(fin(2)[:12], e + 27, e + 32)
    vm.wait_for(a, tagA[0]); a('s_barrier')
    if dbg: ts(a, 1)
    for f in [rdA(0, 0), rdW(0, 0, 0, 0), rdW(0, 0, 0, 1), rdA(0, 1), rdA(0, 2), rdA(0, 3)] + [rdW(0, 0, d, hf) for d in range(1, 4) for hf in range(2)]: f(a)
    S.emit(a, 0, BQ + 320)
    a.extend(fin(2)[12:]); a.extend(fin(3))
    a(rdy_load(vFl, vPub)); vm.issue()
    vm.wait_for(a, max(tagX[10], tg['kv'], tg.get('cs', 0)))
    return a.lines
```

```python
from f_back import *
def gen_f(dbg=0):
    a = Asm(); tail = Asm()
    front_start(a, dbg)
    U = front_role('U', dbg, tail); N = front_role('N', dbg, tail)
    iu = U.index('@SPLIT'); iN = N.index('@SPLIT')
    assert U[:iu] == N[:iN]
    a.extend(U[:iu])
    a('s_cmp_ge_u32 s2, 96'); a('s_cbranch_scc1 f_U')
    a.extend(N[iN + 1:]); a('s_branch f_join')
    a.label('f_U'); a.extend(U[iu + 1:])
    a.label('f_join')
    attention(a, tail, dbg, setup, hooks, epi0)
    back(a, tail, dbg)
    if dbg:
        ts(a, 62); a('s_waitcnt vmcnt(0)'); ts(a, 63); tsr(a, 61)
        ts_store(a, 0, 3, 64, 32, 'f_ts'); ts_store(a, 1, 3, 64, 32, 'f_ts4', wave=4)
    a.label('f_end')
    a('s_endpgm')
    a.extend(tail.lines)
    return dict(name='f_kernel', grid=256, block=512, lds=163840, asm=a, nvgpr=256, accum=256, nsgpr=102)
if __name__ == '__main__':
    import sys
    d = int(sys.argv[1]) if len(sys.argv) > 1 else 1
    txt = build_file([gen_f(d)])
    if 'nosc1' in XO:
        import re
        txt = re.sub(r'(buffer_store_dwordx4 .*) sc1', r'\1', txt)
    if 'rt' in XO: txt = txt.replace('s_memtime', 's_memrealtime')
    open(sys.argv[2] if len(sys.argv) > 2 else 'f.s', 'w').write(txt)
```

```python
from f_front import *
PUB = 131072; XL = 159744
vK, vV, T0, T1, L, NM, BS = 3, 4, 6, 7, 8, 10, 12
ET = 16; TMP = 24; SS = 160; PP = 192; C = 208; QB = 224
sCT = 4
NINF = '0xff800000'
def tile(qt, dt): return ACC + (dt * 2 + qt) * 4
def qf(s, qt): return Q + (s * 2 + qt) * 4
def pub_w0(t, val, lbl, va=T0, vb=T1):
    t('s_cmp_lg_u32 s3, 0'); t('s_cbranch_scc1 %s' % lbl)
    t('s_lshl_b32 s32, s%d, 3' % sH); t('s_add_u32 s32, s32, s%d' % sI)
    t('v_lshl_add_u32 v%d, v%d, 4, s32' % (vb, vL16)); t('v_mov_b32 v%d, %s' % (va, val))
    t('buffer_store_byte v%d, v%d, %s, 0 offen sc1' % (va, vb, sr(sDB, 4)))
    t.label(lbl)

sPost = 75
def attention(a, tail, dbg, setup, hooks, epi0):
    a('s_and_b32 s32, s3, 3'); a('s_lshl_b32 s32, s32, 13'); a('s_add_u32 s32, s32, 0x%x' % WR); a('v_add_u32 v%d, s32, v%d' % (T0, vL16))
    a('s_cmp_ge_u32 s3, 4'); a('s_cbranch_scc1 k2_nopub')
    for f in range(8): a('ds_write_b128 v%d, %s offset:%d' % (T0, vr(Q + 4 * f, 4), f * 1024))
    a.label('k2_nopub')
    for r in range(64): a('v_mov_b32 v%d, 0' % (ACC + r))
    for r in range(16): a('v_mov_b32 v%d, 0' % (C + r))
    a('v_mov_b32 v%d, 0' % L); a('v_mov_b32 v%d, 0' % (L + 1)); a('v_mov_b32 v%d, v%d' % (vK, vL16))
    a('v_and_b32 v32, 15, v1'); a('v_lshrrev_b32 v33, 4, v1'); a('v_lshlrev_b32 v33, 2, v33')
    for r in range(4):
        a('v_add_u32 v35, %d, v33' % r); a('v_cmp_gt_u32 %s, v35, v32' % sr(sMsk + 2 * r, 2))
    a('s_and_b32 s32, s3, 3'); a('s_lshl_b32 s32, s32, 9'); a('s_add_u32 s32, s32, 0x%x' % PUB)
    a('v_lshl_add_u32 v%d, v1, 3, s32' % vPub)
    mk_srd(a, sCT, P['ws'], 16 << 20, WS_CTX)
    setup(a)
    a('s_waitcnt lgkmcnt(0)'); a('s_barrier')
    pub_w0(a, 3, 'f_pub3', 32, 33)
    if dbg: ts(a, 42)

    def st(b, kt, qt): return SS + b * 16 + (kt * 2 + qt) * 4
    def ct(kt, qt): return C + (kt * 2 + qt) * 4
    def pf(b, qt): return PP + b * 8 + qt * 4
    def sm_items(b):
        o = []
        for p in range(8):
            kt, qt, hf = p >> 2, (p >> 1) & 1, p & 1
            sreg = st(b, kt, qt) + 2 * hf; e = ET + 2 * (p & 3); G = 10 + 4 * p; bs = BS + 2 * b + qt
            o += [(G, 'v_exp_f32 v%d, v%d' % (e, sreg)), (G + 2, 'v_exp_f32 v%d, v%d' % (e + 1, sreg + 1)),
                  (G + 3, cvt(pf(b, qt) + 2 * kt + hf, e, e + 1))]
            if p in (0, 2): o += [(G + 4, 'v_add_f32 v%d, v%d, v%d' % (bs, e, e + 1))]
            else: o += [(G + 4, 'v_add_f32 v%d, v%d, v%d' % (e, e, e + 1)), (G + 5, 'v_add_f32 v%d, v%d, v%d' % (bs, bs, e))]
        o.sort(key=lambda x: x[0])
        return o
    def sm(b, lo, hi): return [t for g, t in sm_items(b) if lo <= g < hi]
    def xg(op, x, t):
        return ['v_mov_b32 v%d, v%d' % (t, x), 'v_permlane16_swap_b32 v%d, v%d' % (x, t), '%s v%d, v%d, v%d' % (op, x, x, t),
                'v_mov_b32 v%d, v%d' % (t, x), 'v_permlane32_swap_b32 v%d, v%d' % (x, t), '%s v%d, v%d, v%d' % (op, x, x, t)]
    def blockmax(b, qt, x, t):
        s0, s1 = st(b, 0, qt), st(b, 1, qt)
        return ['v_max3_f32 v%d, v%d, v%d, v%d' % (x, s0, s0 + 1, s0 + 2), 'v_max3_f32 v%d, v%d, v%d, v%d' % (t, s0 + 3, s1, s1 + 1),
                'v_max3_f32 v%d, v%d, v%d, v%d' % (x, x, s1 + 2, s1 + 3), 'v_max_f32 v%d, v%d, v%d' % (x, x, t)] + xg('v_max_f32', x, t)
    def patch(name, sreg):
        t = tail
        t.label(name)
        t('s_cmp_eq_u32 %s, s%d' % (sreg, sD)); t('s_cbranch_scc1 %s_tri' % name)
        for r in range(16): t('v_mov_b32 v%d, %s' % (C + r, NINF))
        t('s_branch %s_ret' % name)
        t.label(name + '_tri')
        t('v_mov_b32 v%d, %s' % (T0, NINF))
        for r in range(4):
            t('v_mov_b32 v%d, %s' % (ct(1, 0) + r, NINF))
            for k in range(2): t('v_cndmask_b32 v%d, v%d, v%d, %s' % (ct(k, k) + r, ct(k, k) + r, T0, sr(sMsk + 2 * r, 2)))
        t('s_branch %s_ret' % name)
        return ['s_cmp_ge_u32 %s, s%d' % (sreg, sD), 's_cbranch_scc1 %s\n%s_ret:' % (name, name)]
    def slow(name, b, bnd=False):
        t = tail
        t.label(name)
        ND = TMP; F = TMP + 2
        for qt in range(2):
            t.extend(blockmax(b, qt, ND + qt, TMP + 4 + qt))
            t('v_max_f32 v%d, 0, v%d' % (ND + qt, ND + qt)); t('v_xor_b32 v%d, 0x80000000, v%d' % (ND + qt, ND + qt))
            t('v_exp_f32 v%d, v%d' % (F + qt, ND + qt))
        for kt in range(2):
            for qt in range(2):
                for r in range(4): t('v_add_f32 v%d, v%d, v%d' % (st(b, kt, qt) + r, st(b, kt, qt) + r, ND + qt))
        for dt in range(8):
            for qt in range(2):
                for r in range(4): t('v_mul_f32 v%d, v%d, v%d' % (tile(qt, dt) + r, tile(qt, dt) + r, F + qt))
        for qt in range(2):
            t('v_mul_f32 v%d, v%d, v%d' % (L + qt, L + qt, F + qt))
        t.extend(sm(b, 0, 99))
        if bnd: t('s_cmp_ge_u32 s3, 4'); t('s_cbranch_scc1 %s_r2' % name)
        for kt in range(2):
            for qt in range(2):
                for r in range(4):
                    t('v_add_f32 v%d, v%d, v%d' % (st(1 - b, kt, qt) + r, st(1 - b, kt, qt) + r, ND + qt))
                    t('v_add_f32 v%d, v%d, v%d' % (ct(kt, qt) + r, ct(kt, qt) + r, ND + qt))
        for qt in range(2): t('v_add_f32 v%d, v%d, v%d' % (NM + qt, NM + qt, ND + qt))
        t.label(name + '_r2')
        t.extend(sm(1 - b, 0, 16))
        t('s_branch %s_ret' % name)
        return (['v_add_f32 v%d, v%d, v%d' % (T1, BS + 2 * b, BS + 2 * b + 1), 'v_cmp_nge_f32 vcc, s%d, v%d' % (sThr, T1)], 's_cbranch_vccnz %s\n%s_ret:' % (name, name))
    def ladd(b): return ['v_add_f32 v%d, v%d, v%d' % (L + qt, L + qt, BS + 2 * b + qt) for qt in range(2)]
    def qk(b, s, kt, qt):
        d = vr(st(b, kt, qt), 4)
        return MF % (d, vr(FR + (kt * 4 + s) * 4, 4), vr(qf(s, qt), 4), vr(ct(kt, qt), 4) if s == 0 else d)
    def pv(b, dt, qt):
        d = vr(tile(qt, dt), 4)
        return MF % (d, vr(FR + dt * 4, 4), vr(pf(b, qt), 4), d)
    def rdtxt(isK, b, f):
        return 'ds_read_b128 %s, v%d offset:%d' % (vr(FR + 4 * f, 4), vK if isK else vV, b * 8192 + f * 1024)

    t = tail
    t.label('f_hook')
    t('s_cmp_ge_u32 s%d, s%d' % (sRdy, sLim)); t('s_cbranch_scc1 f_hk_kv')
    t.extend(rdy_calc(vFl))
    t('s_add_u32 s%d, s%d, 0x10000' % (sPub, sKsrc)); t('s_min_u32 s%d, s%d, s%d' % (sPub, sPub, sLim))
    t('s_cmp_ge_u32 s%d, s%d' % (sRdy, sPub)); t('s_cbranch_scc1 f_hk_ok')
    t('s_mov_b32 vcc_lo, %d' % SPIN)
    t.label('f_hk_l')
    t('s_sleep 8'); t(rdy_load(vFl, T0)); t('s_waitcnt vmcnt(0)'); t.extend(rdy_calc(vFl))
    t('s_cmp_ge_u32 s%d, s%d' % (sRdy, sPub)); t('s_cbranch_scc1 f_hk_ok')
    t('s_sub_u32 vcc_lo, vcc_lo, 1'); t('s_cmp_lg_u32 vcc_lo, 0'); t('s_cbranch_scc1 f_hk_l')
    t.label('f_hk_ok')
    t('s_cmp_ge_u32 s%d, s%d' % (sRdy, sLim)); t('s_cbranch_scc1 f_hk_kv')
    t('s_sub_u32 s32, s%d, s%d' % (sRdy, sKsrc)); t('s_lshr_b32 s32, s32, 16'); t('s_sub_u32 s32, s32, 2'); t('s_max_i32 s32, s32, 1')
    t('s_add_u32 s33, s%d, s32' % sJ); t('s_bitset1_b32 s%d, s33' % sHook)
    t('s_cmp_gt_u32 s32, 1'); t('s_cbranch_scc1 f_hk_kv')
    t(rdy_load(vFl, T0))
    t.label('f_hk_kv')
    hooks(t)
    t('s_nop 4')
    t('s_setpc_b64 s[100:101]')

    for f in range(8): a(rdtxt(True, 0, f))
    a('s_cmp_lt_u32 s3, 4'); a('s_cbranch_scc1 k2_noqb')
    for f in range(8): a('ds_read_b128 %s, v%d offset:%d' % (vr(QB + 4 * f, 4), T0, f * 1024))
    a.label('k2_noqb')
    a.extend(patch('k2_p0', 's%d' % sN))
    a('s_waitcnt lgkmcnt(0)')
    for kt in range(2):
        for s in range(4):
            for qt in range(2): a(qk(0, s, kt, qt))
            a(rdtxt(True, 1, kt * 4 + s))
    for qt in range(2):
        a.extend(blockmax(0, qt, NM + qt, TMP + qt)); a('v_xor_b32 v%d, 0x80000000, v%d' % (NM + qt, NM + qt))
    a('s_cmp_ge_u32 s3, 4'); a('s_cbranch_scc1 k2_nopub2')
    a('ds_write_b64 v%d, %s' % (vPub, vr(NM, 2)))
    a.label('k2_nopub2')
    for qt in range(2):
        for kt in range(2):
            for r in range(4): a('v_add_f32 v%d, v%d, v%d' % (st(0, kt, qt) + r, st(0, kt, qt) + r, NM + qt))
    a.extend(sm(0, 0, 32))
    for qt in range(2):
        for kt in range(2):
            for r in range(4): a('v_add_f32 v%d, v%d, v%d' % (ct(kt, qt) + r, ct(kt, qt) + r, NM + qt))
    a('s_mov_b32 s33, 1')
    a.extend(patch('k2_p1', 's33'))
    a('s_waitcnt lgkmcnt(0)')
    a('s_branch k2_h3_1')

    lg = LG(); tagF = {}
    def x2(t):
        for qt in range(2):
            t.extend(xg('v_add_f32', L + qt, TMP + qt)); t('v_rcp_f32 v%d, v%d' % (TMP + 2 + qt, L + qt))
        for qt in range(2): t('v_mov_b32 v%d, 0' % (L + qt))
        t('s_add_u32 s32, s%d, 0x1000' % sCtA)
        for s in range(4):
            for qt in range(2):
                o = QB + (s * 2 + qt) * 4
                for h2 in range(2):
                    d = tile(qt, 2 * s + h2)
                    for r in range(4): t('v_mul_f32 v%d, v%d, v%d' % (d + r, d + r, TMP + 2 + qt))
                    for r in range(2): t(cvt(o + 2 * h2 + r, d + 2 * r, d + 2 * r + 1))
                    for r in range(4): t('v_mov_b32 v%d, 0' % (d + r))
                t('buffer_store_dwordx4 %s, v%d, %s, s%d offen offset:%d sc1' % (vr(o, 4), vL16, sr(sCT, 4), 32 if s >= 2 else sCtA, ((s & 1) * 2 + qt) * 1024))
    gid = [0]
    def unit(isV, guard=False):
        m0, src = (sVm0, sVsrc) if isV else (sKm0, sKsrc)
        ld = lambda i: 'buffer_load_dwordx4 v%d, %s, s%d offen offset:%d lds' % (vKS, sr(sKV, 4), src, i * 1024)
        pre = ['s_and_b32 m0, s%d, 0xffff' % m0] + (['s_bitset1_b32 m0, 16'] if isV else [])
        o = ['\n'.join(pre + ['s_add_u32 s%d, s%d, 0x4000' % (m0, m0), ld(0)]), ld(1) + '\ns_add_u32 s%d, s%d, 0x8000' % (src, src)]
        if guard or not isV:
            for k in range(2):
                gid[0] += 1
                o[k] = 's_cmp_ge_u32 s%d, s%d\ns_cbranch_scc1 f_g%d\n%s\nf_g%d:' % (src, sLim, gid[0], o[k], gid[0])
        return o
    def body(a, kind):
        S = Sched()
        def rd(isK, b, f):
            def g(a):
                a(rdtxt(isK, b, f)); tagF[f] = lg.issue()
            return g
        for H in range(4):
            for f in range(8):
                for qt in range(2):
                    i = S.mfma(qk(H >> 1, f & 3, f >> 2, qt) if H % 2 == 0 else pv(1 if H == 1 else 0, f, qt))
                    if qt == 0 and f % 4 == 0: S.add_pre(i, lambda a, f=f: lg.wait_for(a, tagF[f + 3]) if f + 3 in tagF else None)
        S.add_pre(32, 'k2_h3_%s:' % kind)
        def bar(a):
            a('s_waitcnt vmcnt(0) lgkmcnt(0)'); lg.done = lg.n
            a('s_bitcmp0_b32 s%d, s%d' % (sHook, sJ)); a('s_cbranch_scc1 f_hr_%s' % kind)
            a('s_call_b64 s[100:101], f_hook')
            a('f_hr_%s:' % kind)
            a('s_barrier'); a('s_setprio 3')
            a('s_bitcmp0_b32 s%d, s%d' % (sPost, sJ)); a('s_cbranch_scc1 f_pr_%s' % kind)
            a('s_call_b64 s[100:101], f_post')
            a('f_pr_%s:' % kind)
        S.add_post(35, bar)
        for q, g in enumerate((61, 17, 29)): S.add_post(g, 's_setprio %d' % (2 - q))
        for f in range(8):
            o = 2 * f + 1
            S.add_post(o, rd(False, 1, f)); S.add_post(16 + o, rd(True, 1, f))
            S.add_post(max(35, 32 + o), rd(False, 0, f)); S.add_post(48 + o, rd(True, 0, f) if kind != 'e' else rd(False, 1, f))
        for b in range(2):
            for g, t in sm_items(b): S.add_post((32 * b + g) % 64, t)
        S.add_post(52, ladd(0)[0]); S.add_post(52, ladd(0)[1])
        if kind == 'e':
            S.emit(a, 48, 64); return
        if kind == 'w':
            S.emit(a, 48, 64); S.emit(a, 0, 48); return
        pa = patch('k2_pa' + kind, 's%d' % sN); pb = patch('k2_pb' + kind, 's33')
        ca, bra = slow('k2_sa' + kind, 0); cb, brb = slow('k2_sb' + kind, 1, kind == '2f')
        S.add_post(48, 's_and_b32 s32, s%d, 7\ns_lshl_b32 s32, s32, 13\nv_add_u32 v%d, s32, v%d' % (sN, vK, vL16))
        S.add_post(56, pa[0]); S.add_post(56, pa[1])
        S.add_post(12, cb[0]); S.add_post(13, cb[1]); S.add_post(15, brb)
        S.add_post(16, ladd(1)[0]); S.add_post(16, ladd(1)[1])
        S.add_post(20, 's_add_u32 s33, s%d, 1' % sN); S.add_post(20, pb[0]); S.add_post(20, pb[1])
        S.add_post(33, 'v_add_u32 v%d, 0x10000, v%d' % (vV, vK))
        if kind == '2f':
            S.add_post(36, 's_cmp_lt_u32 s3, 4\ns_cbranch_scc1 k2_x2_skip'); S.add_post(36, x2); S.add_post(36, 'k2_x2_skip:')
        early = unit(True) + unit(False) + (unit(False) if kind == '2' else [])
        pos = (48, 54, 60, 0, 6, 12) if kind == '2' else (50, 58, 2, 10)
        for g, t in zip(pos, early): S.add_post(g, t)
        if kind != '1':
            for g, t in zip((37, 42), unit(True, True)): S.add_post(g, t)
        S.add_post(44, ca[0]); S.add_post(45, ca[1])
        S.add_post(46, 's_add_u32 s%d, s%d, %d' % (sN, sN, 2 if kind == '1' else 4)); S.add_post(46, 's_add_u32 s%d, s%d, 1' % (sJ, sJ))
        S.add_post(47, bra)
        S.emit(a, 48, 64); S.emit(a, 0, 48)
    body(Asm(), 'w')
    a.label('k2_loop1')
    body(a, '1')
    a('s_cmp_lt_u32 s%d, s%d' % (sJ, sJ1)); a('s_cbranch_scc1 k2_loop1')
    a('s_cmp_lt_u32 s3, 4'); a('s_cbranch_scc1 k2_x1_skip')
    a('ds_read_b64 %s, v%d' % (vr(NM, 2), vPub))
    a('s_add_u32 s%d, s%d, 2' % (sN, sN)); a('s_mov_b32 s%d, s%d' % (sD, sDq))
    for r in range(32): a('v_mov_b32 v%d, v%d' % (Q + r, QB + r))
    a('s_waitcnt lgkmcnt(0)')
    for kt in range(2):
        for qt in range(2):
            for r in range(4): a('v_mov_b32 v%d, v%d' % (ct(kt, qt) + r, NM + qt))
    a.label('k2_x1_skip')
    body(a, '2f')
    a('s_cmp_ge_u32 s%d, 17' % sJ); a('s_cbranch_scc1 k2_done')
    a.label('k2_loop2')
    body(a, '2')
    a('s_cmp_lt_u32 s%d, 17' % sJ); a('s_cbranch_scc1 k2_loop2')
    a.label('k2_done')
    body(a, 'e')
    if dbg: ts(a, 43)
    epi0(a)
    a.extend(sm(1, 32, 99))
    ce, bre = slow('k2_se', 1)
    a.extend(ce); a(bre)
    a('s_waitcnt lgkmcnt(0)')
    for dt in range(8):
        for qt in range(2): a(pv(1, dt, qt))
        if dt == 0: a.extend(ladd(1))
        if dt in (1, 2): a.extend(xg('v_add_f32', L + dt - 1, TMP + dt))
```

```python
from f_att import *
WS_B = 64 << 20
PA0, PB0, PY0, FL0 = 0, 12 << 20, 24 << 20, 32 << 20
RG = 32768
sBA, sBB, sOUT, sWS, sWO = 8, 12, 16, 20, 28
sSt, sEv, sSlR, sSlW, sA0, sB0, sAs, sBs, sDl = 66, 67, 68, 69, 70, 71, 72, 73, 74
sT0, sT1, sFl1, sFw = 76, 77, 78, 79
sPo, sQ, sFY, sOK, sXb, sIt, sMk, sVal, sBlk = 82, 83, 84, 85, 86, 87, 88, 89, 90
vD = 5
DUMMY = 0x21000
def isN(lbl): return ['s_cmp_lt_u32 s2, 96', 's_cbranch_scc1 ' + lbl]
def isU(lbl): return ['s_cmp_ge_u32 s2, 96', 's_cbranch_scc1 ' + lbl]
def isA(lbl): return ['s_cmp_lt_u32 s3, 4', 's_cbranch_scc1 ' + lbl]
def isB(lbl): return ['s_cmp_ge_u32 s3, 4', 's_cbranch_scc1 ' + lbl]
def srd_off(s, ptr, size, soff):
    return ['s_add_u32 s%d, s%d, %s' % (s, ptr, soff), 's_addc_u32 s%d, s%d, 0' % (s + 1, ptr + 1), 's_and_b32 s%d, s%d, 0xffff' % (s + 1, s + 1),
            's_mov_b32 s%d, 0x%x' % (s + 2, size), 's_mov_b32 s%d, 0x00020000' % (s + 3)]
def F(p, qt): return (224 + 8 * p if p < 4 else 128 + 8 * (p - 4)) + 4 * qt
def ldgrp(G):
    o = ['s_add_u32 s32, s%d, %d' % (sHL, G), 's_and_b32 s32, s32, 3', 's_lshl_b32 s32, s32, 13', 's_add_u32 s32, s32, s%d' % sQ, 's_add_u32 s33, s32, 0x1000']
    for s in range(4):
        for qt in range(2):
            o.append('buffer_load_dwordx4 %s, v%d, %s, s%d offen offset:%d' % (vr(F(4 * G + s, qt), 4), vL16, sr(sCT, 4), 32 + (s >> 1), (s & 1) * 2048 + qt * 1024))
    return o
def wo_params():
    o = ['s_mov_b64 s[%d:%d], s[%d:%d]' % (d + k, d + k + 1, sWO + k, sWO + k + 1) for d in (sBA, sBB) for k in (0, 2)]
    o += ['s_lshl_b32 s32, s%d, 2' % sHL, 's_add_u32 s32, s32, s3', 's_and_b32 s33, s32, 15', 's_mul_i32 s%d, s33, 40960' % sA0, 's_xor_b32 s33, s33, 8', 's_mul_i32 s%d, s33, 40960' % sB0,
          's_mul_i32 s32, s%d, 320' % sHL, 's_add_u32 s%d, s%d, s32' % (sA0, sA0), 's_add_u32 s%d, s%d, s32' % (sB0, sB0),
          's_movk_i32 s%d, 64' % sAs, 's_movk_i32 s%d, 64' % sBs, 's_movk_i32 s%d, 19456' % sDl]
    return o
def wo_voff(t):
    return ['v_lshrrev_b32 v%d, 3, v1' % t, 'v_and_b32 v%d, 2, v%d' % (t, t), 'v_xor_b32 v%d, v%d, v1' % (t, t), 'v_and_b32 v%d, 3, v%d' % (t, t),
            'v_lshrrev_b32 v%d, 2, v1' % vD, 'v_mul_u32_u24 v%d, 1280, v%d' % (vD, vD), 'v_lshl_add_u32 v%d, v%d, 4, v%d' % (vD, t, vD)]
def ring(s): return 's_sub_u32 s%d, s%d, 0x%x\ns_cselect_b32 s%d, 0x%x, s%d' % (s, s, RG, s, 4 * RG, s)
def stage_dma():
    ld = 'buffer_load_dwordx4 v%d, %s, s%d offen offset:%d lds'
    return ['s_add_u32 m0, s%d, s%d\n' % (sSlW, sWl) + ld % (vD, sr(sBA, 4), sA0, 0),
            's_add_u32 s%d, s%d, s%d\n' % (sT0, sA0, sDl) + ld % (vD, sr(sBA, 4), sT0, 1024),
            's_add_u32 m0, m0, 0x4000\n' + ld % (vD, sr(sBB, 4), sB0, 0),
            's_add_u32 s%d, s%d, s%d\n' % (sT0, sB0, sDl) + ld % (vD, sr(sBB, 4), sT0, 1024),
            's_add_u32 s%d, s%d, s%d\ns_add_u32 s%d, s%d, s%d\n' % (sA0, sA0, sAs, sB0, sB0, sBs) + ring(sSlW)]
def quarter_dma():
    o = []
    for d in range(8):
        pre = ''
        if d == 0: pre = 's_add_u32 m0, s%d, s%d\n' % (sSlW, sB0)
        if d == 4: pre = 's_add_u32 m0, m0, 0x1000\n'
        if d: pre += 's_add_u32 s%d, s%d, %d\n' % (sT0, sA0, d * 20480 - (d & 3) * 1024)
        o.append(pre + 'buffer_load_dwordx4 v%d, %s, s%d offen offset:%d lds' % (vD, sr(sBA, 4), sT0 if d else sA0, (d & 3) * 1024))
    return o + ['s_add_u32 s%d, s%d, 64\n' % (sA0, sA0) + ring(sSlW)]
def flag_st(val, saddr, va, vb):
    return ['v_lshlrev_b32 v%d, 26, v1' % va, 'v_mov_b32 v%d, %s' % (vb, val), 'buffer_store_dword v%d, v%d, %s, s%d offen sc1' % (vb, va, sr(sWS, 4), saddr)]
def flag_ld(vf, saddr):
    return ['v_and_b32 v%d, 7, v1' % vf, 'v_lshlrev_b32 v%d, 2, v%d' % (vf, vf), 'buffer_load_dword v%d, v%d, %s, s%d offen sc1' % (vf, vf, sr(sWS, 4), saddr)]
def flag_chk(vf, val, mask):
    return ['v_cmp_gt_u32 vcc, %s, v%d' % (val, vf), 's_and_b32 s33, vcc_lo, %s' % mask]
def flag_spin(t, name, vf, saddr, val, mask, loaded=False):
    t('s_mov_b32 s32, %d' % SPIN)
    if loaded: t('s_branch %s_c' % name)
    t.label(name + '_l')
    t.extend(flag_ld(vf, saddr)); t('s_waitcnt vmcnt(0)')
    t.label(name + '_c')
    t.extend(flag_chk(vf, val, mask)); t('s_cbranch_scc0 %s_d' % name)
    t('s_sleep 2')
    t('s_sub_u32 s32, s32, 1'); t('s_cmp_lg_u32 s32, 0'); t('s_cbranch_scc1 %s_l' % name)
    t.label(name + '_d')
SV, SM = 's%d' % sVal, 's%d' % sMk

def setup(a):
    a.extend(srd_off(sWS, P['ws'], 36 << 20, '0x%x' % WS_B))
    a('s_mul_i32 s32, s%d, %d' % (sX_, 512 * 1280)); a.extend(srd_off(sWO, P['wo'], 512 * 1280, 's32'))
    R, IH = sT0, sT1
    a('s_and_b32 s%d, s3, 3' % R)
    a('s_sub_u32 s32, 7, s%d' % sI); a('s_sub_u32 s33, s%d, 3' % sI); a('s_cselect_b32 s%d, s32, s33' % sBlk)
    a('s_sub_u32 s32, 15, s%d' % sI); a('s_cmp_lt_u32 s3, 4'); a('s_cselect_b32 s32, s%d, s32' % sBlk); a('s_cselect_b32 s33, s%d, s%d' % (sBlk, sI))
    a('s_cselect_b32 s%d, 1, 2' % sVal); a('s_cselect_b32 s%d, 0x%x, 0x%x' % (sPo, PA0, PB0))
    a('s_lshl_b32 s32, s32, 2'); a('s_add_u32 s32, s32, s%d' % R); a('s_lshl_b32 s32, s32, 3'); a('s_add_u32 s32, s32, s%d' % sX_); a('s_lshl_b32 s%d, s32, 15' % sQ)
    a('s_lshl_b32 s32, s%d, 3' % sX_); a('s_add_u32 s32, s32, s33'); a('s_lshl_b32 s32, s32, 2'); a('s_add_u32 s32, s32, s%d' % R); a('s_lshl_b32 s32, s32, 7'); a('s_add_u32 s%d, s32, 0x%x' % (sFw, FL0))
    a('s_lshr_b32 s%d, s2, 3' % IH); a('s_lshl_b32 s%d, s%d, 2' % (IH, IH)); a('s_add_u32 s%d, s%d, s%d' % (IH, IH, R))
    a('s_lshl_b32 s32, s%d, 5' % IH); a('s_add_u32 s32, s32, s%d' % sX_); a('s_lshl_b32 s32, s32, 2'); a('s_add_u32 s32, s32, 0x%x' % (FL0 + 32768))
    a('s_lshl_b32 s33, s%d, 2' % sHL); a('s_add_u32 s33, s33, s%d' % sFw); a('s_cmp_lt_u32 s3, 4'); a('s_cselect_b32 s%d, s32, s33' % sFl1)
    a('s_cselect_b32 s33, 4, s%d' % sHL); a('s_mov_b32 s%d, 15' % sMk); a('s_bitset0_b32 s%d, s33' % sMk)
    a('s_lshl_b32 s32, s%d, 4' % IH); a('s_add_u32 s32, s32, s%d' % sX_); a('s_mul_i32 s32, s32, 5120'); a('s_add_u32 s%d, s%d, s32' % (sPo, sPo))
    a('s_lshr_b32 s33, s3, 2'); a('s_mul_i32 s33, s33, 40960'); a('s_add_u32 s32, s32, s33'); a('s_add_u32 s%d, s32, 0x%x' % (sIt, PB0))
    a('s_lshl_b32 s32, s%d, 3' % sH); a('s_add_u32 s32, s32, s3'); a('s_lshl_b32 s32, s32, 5'); a('s_add_u32 s32, s32, s%d' % sI); a('s_lshl_b32 s32, s32, 2'); a('s_add_u32 s%d, s32, 0x%x' % (sFY, FL0 + 65536))
    a('s_bitcmp1_b32 s%d, 0' % sI); a('s_cselect_b32 s%d, 0x%x, 0' % (sSlW, 4 * RG)); a('s_cselect_b32 s%d, 0, 0x%x' % (sXb, RG)); a('s_mov_b32 s%d, s%d' % (sSlR, sSlW))
    a('s_cmp_lt_u32 s3, 3'); a('s_cselect_b32 s32, 12, 16'); a('s_mov_b32 s%d, 0x1003e' % sPost); a('s_bitset1_b32 s%d, s32' % sPost)
    a('s_add_u32 s32, s%d, 1' % sJ1); a('s_cmp_lt_u32 s3, 4'); a('s_cselect_b32 s32, 15, s32'); a('s_bitset1_b32 s%d, s32' % sPost)
    a('s_mov_b32 s%d, 0' % sOK)
    a.extend(isN('f_suN'))
    a.extend(wo_params())
    a('s_branch f_suE')
    a.label('f_suN')
    a('s_mul_i32 s32, s%d, %d' % (sX_, 40 * 16384)); a('s_add_u32 s32, s32, 0x%x' % WS_HT); a.extend(srd_off(sBA, P['ws'], 40 * 16384, 's32'))
    a('s_mul_i32 s32, s%d, %d' % (sHL, 40 * 10240)); a('s_add_u32 s32, s32, 0x%x' % WS_CC); a.extend(srd_off(sBB, P['ws'], 40 * 10240, 's32'))
    a('s_mul_i32 s%d, s%d, %d' % (sA0, sI, 14 * 16384)); a('s_mul_i32 s%d, s%d, %d' % (sB0, sI, 14 * 10240))
    a('s_movk_i32 s%d, 0x4000' % sAs); a('s_movk_i32 s%d, 10240' % sBs); a('s_mov_b32 s%d, 0' % sDl)
    a('s_and_b32 s%d, s%d, 2' % (sSt, sI)); a('s_add_u32 s32, s%d, 3' % sSt); a('s_movk_i32 s%d, 0x1d00' % sEv); a('s_bitset1_b32 s%d, s32' % sEv)
    a('s_bitset1_b32 s%d, 14' % sPost)
    a.label('f_suE')

def hooks(t):
    t('s_cmp_lg_u32 s%d, 7' % sJ); t('s_cbranch_scc1 f_hk7'); pub_w0(t, 4, 'f_hk7')
    t('s_cmp_lt_u32 s%d, 13' % sJ); t('s_cbranch_scc1 f_hkE'); t('s_cmp_gt_u32 s%d, 14' % sJ); t('s_cbranch_scc1 f_hkE')
    t('s_mov_b32 s32, %d' % SPIN); t('v_lshlrev_b32 v%d, 2, v1' % T0)
    t('s_cmp_eq_u32 s%d, 14' % sJ); t('s_cbranch_scc1 f_hk14')
    t('buffer_load_dword v255, v%d, %s, 0 offen sc1' % (T0, sr(sDB, 4))); t('s_branch f_hkE')
    t.label('f_hk14')
    t('v_or_b32 v255, %s, v255' % H8); t('v_subrev_u32 v255, 0x04040404, v255'); t('v_and_b32 v255, %s, v255' % H8); t('v_cmp_ne_u32 vcc, %s, v255' % H8)
    t('s_cbranch_vccz f_hkE')
    t('s_sleep 8'); t('buffer_load_dword v255, v%d, %s, 0 offen sc1' % (T0, sr(sDB, 4))); t('s_waitcnt vmcnt(0)')
    t('s_sub_u32 s32, s32, 1'); t('s_cmp_lg_u32 s32, 0'); t('s_cbranch_scc1 f_hk14')
    t.label('f_hkE')

def post(t):
    t.label('f_post')
    t('s_cmp_gt_u32 s%d, 5' % sJ); t('s_cbranch_scc1 f_po1')
    for k in range(4): t('v_mov_b32 v%d, -1' % (TMP + k))
    t('buffer_store_dwordx4 %s, v%d, %s, s%d offen sc1' % (vr(TMP, 4), vL16, sr(sWS, 4), sIt)); t('s_add_u32 s%d, s%d, 1024' % (sIt, sIt))
    t('s_cmp_lg_u32 s%d, 1' % sJ); t('s_cbranch_scc1 f_po1')
    t.extend(flag_st(0, sFl1, T0, T1)); t(flag_st(0, sFY, T0, T1)[2])
    t.label('f_po1')
    t.extend(isA('f_po2'))
    t('s_add_u32 s32, s%d, 1' % sJ1); t('s_cmp_lg_u32 s%d, s32' % sJ); t('s_cbranch_scc1 f_po2')
    t.extend(flag_st(1, sFl1, T0, T1))
    t.label('f_po2')
    t('s_cmp_lt_u32 s%d, 12' % sJ); t('s_cbranch_scc1 f_poE')
    t('s_cmp_eq_u32 s%d, 16' % sJ); t('s_cbranch_scc1 f_po16')
    t('s_mov_b32 m0, 0x%x' % DUMMY)
    pf = 'buffer_load_dword v%d, %s, 0 offen lds'
    t('s_cmp_lg_u32 s%d, 12' % sJ); t('s_cbranch_scc1 f_po3')
    t('s_lshr_b32 s32, s2, 3'); t('s_lshl_b32 s33, s3, 5'); t('s_add_u32 s32, s32, s33'); t('s_lshl_b32 s32, s32, 13'); t('v_lshl_add_u32 v%d, v1, 7, s32' % T0)
    if 'nopf2' not in XO: t(pf % (T0, sr(sWO, 4)))
    t('s_branch f_poE')
    t.label('f_po3')
    t('s_cmp_lg_u32 s%d, 14' % sJ); t('s_cbranch_scc1 f_po4')
    t('s_lshl_b32 s32, s%d, 3' % sHL); t('s_add_u32 s32, s32, s3'); t('s_lshl_b32 s32, s32, 13'); t('s_add_u32 s32, s32, s%d' % sA0); t('v_lshl_add_u32 v%d, v1, 7, s32' % T0)
    t('s_lshl_b32 s32, s3, 13'); t('s_add_u32 s32, s32, s%d' % sB0); t('v_lshl_add_u32 v%d, v1, 7, s32' % T1)
    if 'nopf2' not in XO:
        t(pf % (T0, sr(sBA, 4)))
        for k in range(3):
            if k == 2: t('s_cmp_ge_u32 s3, 2'); t('s_cbranch_scc1 f_poE')
            t(pf % (T1, sr(sBB, 4)))
            if k < 2: t('v_add_u32 v%d, 0x10000, v%d' % (T1, T1))
    t('s_branch f_poE')
    t.label('f_po4')
    t('s_cmp_lg_u32 s%d, 15' % sJ); t('s_cbranch_scc1 f_poE')
    t.extend(isB('f_poE'))
    t.extend(flag_ld(255, sFw)); t('s_branch f_poE')
    t.label('f_po16')
    t.extend(isN('f_po16n'))
    t.extend(wo_voff(T0))
    t('s_branch f_po16d')
    t.label('f_po16n')
    t('v_add_u32 v%d, s%d, v%d' % (vD, sWl, vL16)); t('s_cmp_lt_u32 s3, 5'); t('s_cselect_b32 s%d, s%d, 0' % (sBB + 2, sBB + 2))
    t.label('f_po16d')
    for k in range(2): t.extend(stage_dma())
    t.extend(isN('f_poE')); t.extend(isB('f_poE'))
    flag_spin(t, 'f_w16', 255, sFw, SV, SM, True)
    t.extend(ldgrp(0))
    t.label('f_poE')
    t('s_nop 4'); t('s_setpc_b64 s[100:101]')

def epi0(a):
    a.extend(isN('f_e0')); a.extend(isB('f_e0'))
    a.extend(ldgrp(1))
    a.label('f_e0')

def back(a, tail, dbg):
    post(tail)
    vX_, vY_ = 3, 4
    a('s_and_b32 s32, s3, 3'); a('s_lshl_b32 s%d, s32, 13' % sT1); a('s_add_u32 s32, s%d, s%d' % (sT1, sXb)); a('v_add_u32 v%d, s32, v%d' % (T0, vL16))
    a('s_add_u32 s32, s32, 0x1c00'); a('v_lshl_add_u32 v%d, v1, 3, s32' % T1); a('v_lshl_add_u32 v%d, v1, 2, s32' % vX_)
    a('v_and_b32 v%d, 0xf0, v%d' % (vY_, vL16)); a('v_add_u32 v%d, s32, v%d' % (vY_, vY_))
    def xoff(f): return RG + f * 1024 if f < 8 else (f - 8) * 1024
    a.extend(isB('f_B'))
    a.extend(isN('f_a1'))
    a.extend(ldgrp(2)); a.extend(ldgrp(3))
    a.label('f_a1')
    a('ds_write_b128 v%d, %s offset:768' % (vY_, vr(L, 4)))
    for f in range(15): a('ds_write_b128 v%d, %s offset:%d' % (T0, vr(ACC + 4 * f, 4), xoff(f)))
    a(cvt(ACC + 62, ACC + 62, ACC + 63))
    a('ds_write_b64 v%d, %s' % (T1, vr(ACC + 60, 2))); a('ds_write_b32 v%d, v%d offset:512' % (vX_, ACC + 62))
    a.extend(isN('f_NA'))
    a('s_waitcnt vmcnt(24) lgkmcnt(0)'); a('s_barrier')
    if dbg: ts(a, 44)
    a('s_mov_b32 s%d, 6' % sEv)
    a('s_branch f_oent')
    a.label('f_NA')
    a('s_waitcnt vmcnt(0) lgkmcnt(0)'); a('s_barrier')
    if dbg: ts(a, 44)
    a.extend(stage_dma()); a('s_barrier')
    for k in range(2): a.extend(stage_dma())
    a('s_branch f_y')
    a.label('f_B')
    a('s_waitcnt vmcnt(0)')
    a.extend(flag_st(1, sFl1, 12, 13))
    a('s_barrier'); a('s_setprio 3')
    if dbg: ts(a, 44)
    lg = LG(); tg = {}
    O = TMP; S_ = 128
    a('ds_read_b128 %s, v%d offset:768' % (vr(O, 4), vY_)); tg['x'] = lg.issue()
    for f in range(15):
        a('ds_read_b128 %s, v%d offset:%d' % (vr(S_ + 4 * f, 4), T0, xoff(f))); tg[f] = lg.issue()
    a('ds_read_b64 %s, v%d' % (vr(S_ + 60, 2), T1)); lg.issue(); a('ds_read_b32 v%d, v%d offset:512' % (S_ + 63, vX_)); tg[15] = lg.issue()
    a.extend(isU('f_b1'))
    a.extend(stage_dma()); a('s_waitcnt lgkmcnt(0)'); a('s_barrier')
    for k in range(2): a.extend(stage_dma())
    a('s_branch f_b2')
    a.label('f_b1')
    a('s_add_u32 s32, s%d, s3' % sHL); a('s_and_b32 s32, s32, 3'); a('s_mul_i32 s32, s32, %d' % (8 * 20480)); a('s_mul_i32 s33, s%d, 320' % sHL); a('s_add_u32 s32, s32, s33')
    a('s_add_u32 s%d, s32, 128' % sA0); a('s_mov_b32 s%d, s%d' % (sB0, sT1))
    a.extend(quarter_dma())
    a.label('f_b2')
    lg.wait_for(a, tg['x'])
    FA = ET; FB = ET + 2
    for qt in range(2):
        m = ET + 4 + qt
        a('v_min_f32 v%d, v%d, v%d' % (m, NM + qt, O + 2 + qt))
        a('v_sub_f32 v%d, v%d, v%d' % (FA + qt, m, NM + qt)); a('v_sub_f32 v%d, v%d, v%d' % (FB + qt, m, O + 2 + qt))
        a('v_exp_f32 v%d, v%d' % (FA + qt, FA + qt)); a('v_exp_f32 v%d, v%d' % (FB + qt, FB + qt))
        a('v_mul_f32 v%d, v%d, v%d' % (m, L + qt, FA + qt)); a('v_fmac_f32 v%d, v%d, v%d' % (m, O + qt, FB + qt))
        a('v_rcp_f32 v%d, v%d' % (m, m))
        a('v_mul_f32 v%d, v%d, v%d' % (FA + qt, FA + qt, m)); a('v_mul_f32 v%d, v%d, v%d' % (FB + qt, FB + qt, m))
    a('s_add_u32 s32, s%d, 0x1000' % sCtB)
    for s in range(4):
        for qt in range(2):
            o = F(s, qt)
            for h2 in range(2):
                f = (2 * s + h2) * 2 + qt; d = ACC + 4 * f
                for r in range(4): a('v_mul_f32 v%d, v%d, v%d' % (d + r, d + r, FA + qt))
                lg.wait_for(a, tg[f])
                if f == 15: a('v_lshlrev_b32 v%d, 16, v%d' % (S_ + 62, S_ + 63)); a('v_and_b32 v%d, 0xffff0000, v%d' % (S_ + 63, S_ + 63))
                for r in range(4): a('v_fmac_f32 v%d, v%d, v%d' % (d + r, S_ + 4 * f + r, FB + qt))
                for r in range(2): a(cvt(o + 2 * h2 + r, d + 2 * r, d + 2 * r + 1))
            a('buffer_store_dwordx4 %s, v%d, %s, s%d offen offset:%d sc1' % (vr(o, 4), vL16, sr(sCT, 4), 32 if s >= 2 else sCtB, ((s & 1) * 2 + qt) * 1024))
    if dbg: ts(a, 45)
    a.extend(isN('f_y'))
    a('s_mov_b32 s%d, 0' % sEv)
    a.extend(flag_ld(14, sFw))
    for k in range(2): a.extend(quarter_dma())
    a('s_waitcnt vmcnt(16)')
    a.extend(flag_st(2, sFl1, 12, 13))
    if dbg: ts(a, 46)
    a.extend(flag_chk(14, SV, SM)); a('s_cbranch_scc1 f_b3')
    a('s_call_b64 s[100:101], f_ldB')
    a('s_barrier'); a('s_waitcnt vmcnt(24)'); a('s_barrier')
    a('s_branch f_oent')
    a.label('f_b3')
    a('s_barrier')
    if dbg: ts(a, 47)
    a.extend(flag_ld(14, sFw)); a('s_waitcnt vmcnt(0)')
    a.extend(flag_chk(14, SV, SM)); a('s_cbranch_scc1 f_b4')
    a('s_call_b64 s[100:101], f_ldB')
    a('s_barrier')
    a('s_branch f_oent')
    a.label('f_b4')
    a('s_barrier')
    a('s_branch f_late')
    t = tail
    t.label('f_ldB')
    for G in (1, 2, 3): t.extend(ldgrp(G))
    t('s_setpc_b64 s[100:101]')
    YP = [192, 200, 208, 216, 80, 88, 96, 104, 112, 120]; BFy = [64, 68, 72, 76, 16]; vRB = 20; vRC = 22
    def AF(e): return 32 + 16 * e
    def yacc(c, q): return YP[2 * c + (q >> 1)] + (q & 1) * 4
    def radr(): return ['v_add_u32 v%d, s%d, v%d' % (vRC + k, sSlR, vRB + k) for k in range(2)] + [ring(sSlR)]
    def rdA(e, q): return ['ds_read_b64_tr_b16 %s, v%d offset:%d' % (vr(AF(e) + 4 * q + 2 * hf, 2), vRC, hf * 2048 + q * 256) for hf in range(2)]
    def rdB(c): return ['ds_read_b128 %s, v%d offset:%d' % (vr(BFy[c], 4), vRC + 1, c * 1024)]
    a.label('f_y')
    a.extend(['s_lshr_b32 s32, s3, 1', 's_lshl_b32 s32, s32, 12', 's_and_b32 s33, s3, 1', 'v_and_b32 v8, 3, v1', 'v_lshrrev_b32 v9, 2, v1',
              'v_lshrrev_b32 v10, 1, v8', 'v_lshlrev_b32 v11, 3, v10', 'v_xor_b32 v9, v9, v11', 'v_lshlrev_b32 v9, 4, v9', 'v_lshl_add_u32 v9, v10, 10, v9',
              'v_and_b32 v8, 1, v8', 'v_lshl_add_u32 v9, v8, 3, v9', 'v_add_u32 v%d, s32, v9' % vRB,
              's_mul_i32 s33, s33, 5120', 's_add_u32 s33, s33, 0x4000', 'v_add_u32 v%d, s33, v%d' % (vRB + 1, vL16)])
    a.extend(radr())
    for q in range(4):
        a.extend(rdA(0, q))
        if q == 0: a.extend(rdB(0))
    for c in range(1, 5): a.extend(rdB(c))
    for p in YP:
        for r in range(8): a('v_mov_b32 v%d, 0' % (p + r))
    a('s_waitcnt lgkmcnt(0)')
    if dbg: ts(a, 51)
    lg = LG(); tag = {}
    def T(key, txt):
        def f(a):
            a(txt); tag[key] = lg.issue()
        return f
    def stage(a, e):
        S = Sched()
        for c in range(5):
            for q in range(4):
                d = vr(yacc(c, q), 4)
                i = S.mfma(MF % (d, vr(AF(e) + 4 * q, 4), vr(BFy[c], 4), d))
                if c == 0: S.add_pre(i, lambda a, q=q: lg.wait_for(a, max(tag.get(('A', q), 0), tag.get(('B', 0), 0))))
        S.spread(radr(), 0, 3)
        def bar(a):
            a('s_waitcnt vmcnt(12) lgkmcnt(0)'); lg.done = lg.n
            a('s_barrier'); a('s_setprio 3')
        S.add_post(3, bar)
        for k, p in enumerate((8, 13, 18)): S.add_post(p, 's_setprio %d' % (2 - k))
        R = [T(('B', 0), x) for x in rdB(0)] + [T(('A', q), x) for q in range(4) for x in rdA(1 - e, q)]
        S.spread(R, 3, 12)
        for c in range(1, 5): S.spread([T(('B', c), x) for x in rdB(c)], 4 * c + 3, min(20, 4 * c + 5))
        for p, x in zip((5, 8, 11, 14, 15), stage_dma()): S.add_post(p, x)
        S.add_post(16, 's_bitcmp0_b32 s%d, s%d\ns_cbranch_scc1 f_yev%d\ns_call_b64 s[100:101], f_event\nf_yev%d:' % (sEv, sSt, e, e))
        S.add_post(17, 's_add_u32 s%d, s%d, 1' % (sSt, sSt))
        S.emit(a, 0, 20)
    stage(Asm(), 1)
    a.label('f_yloop')
    stage(a, 0); stage(a, 1)
    a('s_cmp_lt_u32 s%d, 14' % sSt); a('s_cbranch_scc1 f_yloop')
    if dbg: ts(a, 52)
    t.label('f_event')
    t('s_cmp_gt_u32 s%d, 5' % sSt); t('s_cbranch_scc1 f_ev1')
    t.extend(isA('f_evE')); t.extend(flag_st(2, sFl1, 8, 9)); t('s_branch f_evE')
    t.label('f_ev1')
    t('s_cmp_lg_u32 s%d, 8' % sSt); t('s_cbranch_scc1 f_ev2')
    t.extend(flag_ld(14, sFw)); t.extend(wo_params()); t.extend(wo_voff(8)); t('s_branch f_evE')
    t.label('f_ev2')
    t('s_cmp_lg_u32 s%d, 10' % sSt); t('s_cbranch_scc1 f_ev3')
    t('s_waitcnt vmcnt(8)'); t.extend(flag_chk(14, SV, SM)); t('s_cselect_b32 s%d, 0, s%d' % (sEv, sEv)); t('s_cbranch_scc1 f_evE')
    t('s_mov_b32 s%d, 1' % sOK)
    t.extend(isB('f_evE')); t.extend(ldgrp(0)); t('s_branch f_evE')
    t.label('f_ev3')
    t('s_cmp_lg_u32 s%d, 11' % sSt); t('s_cbranch_scc1 f_ev4')
    t.extend(ldgrp(1)); t('s_branch f_evE')
    t.label('f_ev4')
    t.extend(ldgrp(2))
    t.label('f_evE')
    t('s_nop 4'); t('s_setpc_b64 s[100:101]')
    a('s_add_u32 s%d, s%d, 0x%x' % (sSlR, sSlR, RG)); a('s_cmp_gt_u32 s%d, 0x%x' % (sSlR, 4 * RG)); a('s_cselect_b32 s%d, 0, s%d' % (sSlR, sSlR))
    a('s_lshl_b32 s32, s%d, 3' % sH); a('s_add_u32 s32, s32, s3'); a('s_mul_i32 s32, s32, 3'); a('s_add_u32 s32, s32, s%d' % sI); a('s_mul_i32 s32, s32, 10240'); a('s_add_u32 s32, s32, 0x%x' % PY0)
    for p in range(10):
        a.extend(pack8(YP[p], YP[p]))
        if p % 4 == 0 and p: a('s_add_u32 s32, s32, 0x1000')
        a('buffer_store_dwordx4 %s, v%d, %s, s32 offen offset:%d sc1' % (vr(YP[p], 4), vL16, sr(sWS, 4), (p & 3) * 1024))
    a('s_mov_b32 s%d, s%d' % (sEv, sOK))
    a('s_cmp_eq_u32 s%d, 0' % sOK); a('s_cbranch_scc1 f_y2')
    a.extend(ldgrp(3)); a('s_branch f_oent')
    a.label('f_y2')
    a('s_call_b64 s[100:101], f_oev')
    a.label('f_late')
    flag_spin(a, 'f_wl', 14, sFw, SV, SM)
    if dbg: ts(a, 48)
    a.extend(isB('f_l2')); a.extend(ldgrp(0))
    a.label('f_l2')
    a('s_call_b64 s[100:101], f_ldB')
    t.label('f_oev')
    t.extend(isU('f_oev1'))
    t('s_waitcnt vmcnt(0)'); t.extend(flag_st(1, sFY, 8, 9))
    t.label('f_oev1')
    t('s_barrier'); t('s_setpc_b64 s[100:101]')
    BF = 32; OA = 64; PK = 80; vB = 3; vC = 6
    a.label('f_oent')
    a('v_lshrrev_b32 v8, 2, v1'); a('v_lshlrev_b32 v8, 6, v8'); a('v_and_b32 v9, 3, v1'); a('v_lshl_add_u32 v8, v9, 3, v8'); a('v_and_b32 v9, 16, v1')
    a('v_lshl_add_u32 v%d, v9, 1, v8' % vB); a('v_xor_b32 v%d, 32, v%d' % (vB + 1, vB))
    for c in range(2): a('v_add_u32 v%d, s%d, v%d' % (vC + c, sSlR, vB + c))
    a(ring(sSlR))
    lg = LG(); tag = {}
    def rdW(n):
        n &= 31
        def f(a):
            for hf in range(2):
                a('ds_read_b64_tr_b16 %s, v%d offset:%d' % (vr(BF + 4 * (n & 7) + 2 * hf, 2), vC + (n >> 4), (n & 15) * 2048 + hf * 1024)); tag[n] = lg.issue()
        return f
    for n in range(8): rdW(n)(a)
    a('s_mov_b32 s%d, 0' % sIt); a('s_add_u32 s%d, s%d, %d' % (sT1, sPo, 40960 - 1024))
    a('s_setprio 2'); a.extend(isA('f_oloop')); a('s_setprio 0')
    if dbg: ts(a, 49)
    S = Sched()
    for n in range(32):
        c, p = n >> 4, n & 15
        for qt in range(2):
            d = vr(OA + 8 * c + 4 * qt, 4)
            i = S.mfma(MF % (d, vr(F(p, qt), 4), vr(BF + 4 * (n & 7), 4), '0' if p == 0 else d))
            if qt == 0:
                if c == 0: S.add_pre(i, 's_waitcnt vmcnt(%d)' % (30 - 2 * p))
                S.add_pre(i, lambda a, n=n: lg.wait_for(a, tag[n]))
        S.add_post(i, rdW(n + 8))
    st = 'buffer_store_dwordx4 %s, v%d, %s, s%d offen sc1'
    S.spread(pack8(PK, OA + 8), 3, 7)
    S.add_post(20, 'v_add_u32 v%d, s%d, v%d' % (vC, sSlR, vB))
    S.add_post(32, 's_cmp_eq_u32 s%d, 0\ns_cbranch_scc1 f_ol1\n' % sIt + st % (vr(PK, 4), vL16, sr(sWS, 4), sT1) + '\nf_ol1:')
    S.spread(pack8(OA, OA), 35, 39)
    S.add_post(40, st % (vr(OA, 4), vL16, sr(sWS, 4), sPo))
    S.add_post(42, 's_add_u32 s%d, s%d, 1024\ns_add_u32 s%d, s%d, 1024' % (sPo, sPo, sT1, sT1))
    S.add_post(46, 's_bitcmp0_b32 s%d, s%d\ns_cbranch_scc1 f_ol2\ns_call_b64 s[100:101], f_oev\nf_ol2:' % (sEv, sIt))
    S.add_post(52, 'v_add_u32 v%d, s%d, v%d' % (vC + 1, sSlR, vB + 1)); S.add_post(54, ring(sSlR))
    S.add_post(56, 's_add_u32 s%d, s%d, 1' % (sIt, sIt))
    a.label('f_oloop')
    S.emit(a, 0, 64)
    a('s_cmp_lt_u32 s%d, 5' % sIt); a('s_cbranch_scc1 f_oloop')
    a.extend(pack8(PK, OA + 8)); a(st % (vr(PK, 4), vL16, sr(sWS, 4), sT1))
    if dbg: ts(a, 50)
    a.extend(isB('f_fin'))
    a('s_setprio 1')
    mk_srd(a, sOUT, P['out'], 2048 * 5120)
    def acc2(d, s, t, first):
        if first: return ['v_lshlrev_b32 v%d, 16, v%d' % (d, s), 'v_and_b32 v%d, 0xffff0000, v%d' % (d + 1, s)]
        return ['v_lshlrev_b32 v%d, 16, v%d' % (t, s), 'v_and_b32 v%d, 0xffff0000, v%d' % (s, s), 'v_add_f32 v%d, v%d, v%d' % (d, d, t), 'v_add_f32 v%d, v%d, v%d' % (d + 1, d + 1, s)]
    a.extend(isN('f_t1'))
    sXS = sBA; sYa = (70, 71); sYf = (72, 73); sM, sYc, sYw, sYh = 66, 67, 68, 69
    mk_srd(a, sXS, P['A_x'], 2048 * 1280)
    XR = (96, 112); vXo = (16, 17); vDs = (18, 19); vYo = (20, 21); vFy = (22, 23)
    for e in range(2):
        a('s_lshr_b32 s32, s2, 3'); a('s_sub_u32 s32, s32, 12'); a('s_lshl_b32 s32, s32, 2'); a('s_add_u32 s32, s32, s3'); a('s_lshl_b32 s32, s32, 1'); a('s_add_u32 s%d, s32, %d' % (sM, e))
        a('s_mul_i32 s32, s%d, 13108' % sM); a('s_lshr_b32 s32, s32, 16'); a('s_mul_i32 s33, s32, 5'); a('s_sub_u32 s%d, s%d, s33' % (sYc, sM))
        a('s_and_b32 s%d, s32, 7' % sYw); a('s_lshr_b32 s%d, s32, 3' % sYh)
        a('s_lshl_b32 s33, s%d, 5' % sX_); a('s_add_u32 s32, s32, s33')
        a('s_lshl_b32 s33, s32, 7'); a('s_add_u32 s%d, s33, 0x%x' % (sYf[e], FL0 + 65536))
        a('s_mul_i32 s32, s32, 30720'); a('s_lshl_b32 s33, s%d, 11' % sYc); a('s_add_u32 s32, s32, s33'); a('s_add_u32 s%d, s32, 0x%x' % (sYa[e], PY0))
        a('s_mul_i32 s32, s%d, 160' % sYh); a('s_and_b32 s33, s%d, 1' % sYw); a('s_mul_i32 s33, s33, 80'); a('s_add_u32 s32, s32, s33'); a('s_lshl_b32 s33, s%d, 4' % sYc); a('s_add_u32 s32, s32, s33')
        a('v_and_b32 v8, 15, v1'); a('v_add_u32 v8, s32, v8')
        a('s_lshl_b32 s32, s%d, 8' % sX_); a('s_lshr_b32 s33, s%d, 1' % sYw); a('s_lshl_b32 s33, s33, 6'); a('s_add_u32 s32, s32, s33')
        a('v_lshrrev_b32 v9, 4, v1'); a('v_lshl_add_u32 v9, v9, 2, s32'); a('v_mul_u32_u24 v9, 640, v9')
        a('v_add_lshl_u32 v%d, v9, v8, 1' % vXo[e]); a('v_lshl_add_u32 v9, v9, 1, v8'); a('v_lshlrev_b32 v%d, 2, v9' % vYo[e]); a('v_lshlrev_b32 v8, 1, v8')
        a('global_load_ushort v%d, v8, %s' % (vDs[e], sr(P['Dskip'], 2)))
        for q in range(4):
            a('s_mov_b32 s32, %d' % (q * 16 * 1280))
            for r in range(4): a('buffer_load_ushort v%d, v%d, %s, s32 offen offset:%d' % (XR[e] + 4 * q + r, vXo[e], sr(sXS, 4), r * 1280))
        a.extend(flag_ld(vFy[e], sYf[e]))
    a('s_waitcnt vmcnt(36)')
    a.extend(flag_st(1, sFl1, 8, 9))
    if dbg: ts(a, 53)
    a('s_waitcnt vmcnt(1)')
    YL = (128, 160); YS = (32, 48)
    for e in range(2):
        flag_spin(a, 'f_wy%d' % e, vFy[e], sYf[e], 1, 7, True)
        for p in range(3):
            for k in range(2): a('buffer_load_dwordx4 %s, v%d, %s, s%d offen offset:%d' % (vr(YL[e] + (p * 2 + k) * 4, 4), vL16, sr(sWS, 4), sYa[e], k * 1024))
            if p < 2: a('s_add_u32 s%d, s%d, 10240' % (sYa[e], sYa[e]))
    for e in range(2):
        a('v_lshlrev_b32 v%d, 16, v%d' % (vDs[e], vDs[e]))
        for k in range(16): a('v_lshlrev_b32 v%d, 16, v%d' % (XR[e] + k, XR[e] + k)); a('v_mul_f32 v%d, v%d, v%d' % (XR[e] + k, XR[e] + k, vDs[e]))
        for k in range(8): a(cvt(XR[e] + k, XR[e] + 2 * k, XR[e] + 2 * k + 1)); a.extend(acc2(YS[e] + 2 * k, XR[e] + k, 8, True))
    for e in range(2):
        for p in range(3):
            a('s_waitcnt vmcnt(%d)' % ((10 - 2 * p) if e == 0 else (20 - 2 * p)))
            for k in range(8): a.extend(acc2(YS[e] + 2 * k, YL[e] + p * 8 + k, 8 + (k & 1), False))
        for q in range(4):
            for r in range(4):
                a('s_mov_b32 s32, %d' % ((q * 16 + r) * 5120)); a('buffer_store_dword v%d, v%d, %s, s32 offen' % (YS[e] + 4 * q + r, vYo[e], sr(sOUT, 4)))
    a('s_branch f_t2')
    a.label('f_t1')
    a('s_waitcnt vmcnt(0)')
    a.extend(flag_st(1, sFl1, 8, 9))
    a.label('f_t2')
    if dbg: ts(a, 54)
    sIn, sOb, sPass = 66, 67, 68
    vO1, vO2, vG1, vG2 = 10, 11, 12, 13
    a('s_mul_i32 s%d, s2, 40960' % sIn)
    a('s_lshr_b32 s32, s2, 1'); a('s_lshl_b32 s32, s32, 7'); a('s_add_u32 s%d, s32, 0x%x' % (sFw, FL0 + 32768))
    a('v_lshrrev_b32 v8, 4, v1'); a('v_mul_u32_u24 v8, %d, v8' % (4 * 5120)); a('v_and_b32 v9, 15, v1'); a('s_lshl_b32 s32, s3, 7'); a('v_lshl_add_u32 v9, v9, 2, s32'); a('v_add_u32 v%d, v8, v9' % vO1)
    a('v_bfe_u32 v8, v1, 1, 1'); a('v_and_b32 v9, 1, v1'); a('v_lshl_add_u32 v8, v8, 3, v9'); a('s_lshl_b32 s32, s3, 2'); a('v_lshl_add_u32 v8, v8, 1, s32'); a('v_mul_u32_u24 v8, 5120, v8')
    a('v_and_b32 v9, 0xfc, v1'); a('s_movk_i32 s32, 512'); a('v_add3_u32 v%d, v8, v9, s32' % vO2)
    a('s_lshl_b32 s32, s3, 10'); a('v_add_u32 v%d, s32, v%d' % (vG1, vL16))
    a('s_lshl_b32 s32, s3, 8'); a('s_add_u32 s32, s32, 0x1000'); a('v_lshl_add_u32 v%d, v1, 2, s32' % vG2)
    a('s_mov_b32 s%d, 0' % sPass)
    flag_spin(a, 'f_wa', 14, sFw, 1, 0xff)
    if dbg: ts(a, 55)
    a.label('f_gat')
    a('s_lshl_b32 s32, s%d, 2' % sBlk); a('s_lshr_b32 s33, s%d, 1' % sX_); a('s_add_u32 s32, s32, s33'); a('s_mul_i32 s%d, s32, %d' % (sOb, 32 * 5120))
    a('s_mul_i32 s32, s%d, 640' % sHL); a('s_and_b32 s33, s%d, 1' % sX_); a('s_lshl_b32 s33, s33, 6'); a('s_add_u32 s32, s32, s33'); a('s_add_u32 s32, s32, 2560'); a('s_add_u32 s%d, s%d, s32' % (sOb, sOb))
    G1 = 32; R1 = 80
    def gat(name, nd, vG, vO, rows):
        a('s_mov_b32 s%d, %d' % (sT0, SPIN))
        a.label(name)
        for s in range(8):
            a('s_add_u32 s32, s%d, %d' % (sIn, s * 5120))
            a('buffer_load_dword%s %s, v%d, %s, s32 offen sc1' % ('x4' if nd == 4 else '', vr(G1 + nd * s, nd), vG, sr(sWS, 4)))
        n = 8 * nd
        for k in range(0, n, 2):
            if (k + 1) // nd != (k - 1) // nd or k == 0: a('s_waitcnt vmcnt(%d)' % (7 - (k + 1) // nd))
            a('v_max_u32 v8, v%d, v%d' % (G1, G1 + 1) if k == 0 else 'v_max3_u32 v8, v8, v%d, v%d' % (G1 + k, G1 + k + 1))
        a('v_cmp_eq_u32 vcc, -1, v8'); a('s_cbranch_vccz %s_d' % name)
        a('s_sleep 2')
        a('s_sub_u32 s%d, s%d, 1' % (sT0, sT0)); a('s_cmp_lg_u32 s%d, 0' % sT0); a('s_cbranch_scc1 %s' % name)
        a.label(name + '_d')
        for s in range(8):
            for k in range(nd): a.extend(acc2(R1 + 2 * k, G1 + nd * s + k, 8 + ((s + k) & 1), s == 0))
        for k, row in enumerate(rows):
            a('s_add_u32 s32, s%d, %d' % (sOb, row * 5120)); a('buffer_store_dword v%d, v%d, %s, s32 offen' % (R1 + k, vO, sr(sOUT, 4)))
    gat('f_ga1', 4, vG1, vO1, [(k >> 2) * 16 + (k & 3) for k in range(8)])
    gat('f_ga2', 1, vG2, vO2, [0, 1])
    a('s_cmp_lg_u32 s%d, 0' % sPass); a('s_cbranch_scc1 f_fin')
    if dbg: ts(a, 56)
    a('s_mov_b32 s%d, 1' % sPass); a('s_add_u32 s%d, s%d, 0x%x' % (sIn, sIn, PB0)); a('s_sub_u32 s%d, 15, s%d' % (sBlk, sI))
    a('s_branch f_gat')
    a.label('f_fin')
```

```python
from h_front import *
PUB = 131072; XL = 159744
vK, vV, T0, T1, L, NM, BS = 3, 4, 6, 7, 8, 10, 12
ET = 16; TMP = 24; SS = 160; PP = 192; C = 208; QB = 224
sCT = 4
NINF = '0xff800000'
def tile(qt, dt): return ACC + (dt * 2 + qt) * 4
def qf(s, qt): return Q + (s * 2 + qt) * 4
sPost = 75
def attention(a, tail, dbg, setup, hooks, epi0):
    a('s_and_b32 s32, s3, 3'); a('s_lshl_b32 s32, s32, 13'); a('s_add_u32 s32, s32, 0x%x' % WR); a('v_add_u32 v%d, s32, v%d' % (T0, vL16))
    a('s_cmp_ge_u32 s3, 4'); a('s_cbranch_scc1 k2_nopub')
    for f in range(8): a('ds_write_b128 v%d, %s offset:%d' % (T0, vr(Q + 4 * f, 4), f * 1024))
    a.label('k2_nopub')
    for r in range(64): a('v_mov_b32 v%d, 0' % (ACC + r))
    for r in range(16): a('v_mov_b32 v%d, 0' % (C + r))
    a('v_mov_b32 v%d, 0' % L); a('v_mov_b32 v%d, 0' % (L + 1)); a('v_mov_b32 v%d, v%d' % (vK, vL16))
    a('v_and_b32 v32, 15, v1'); a('v_lshrrev_b32 v33, 4, v1'); a('v_lshlrev_b32 v33, 2, v33')
    for r in range(4):
        a('v_add_u32 v35, %d, v33' % r); a('v_cmp_gt_u32 %s, v35, v32' % sr(sMsk + 2 * r, 2))
    a('s_and_b32 s32, s3, 3'); a('s_lshl_b32 s32, s32, 9'); a('s_add_u32 s32, s32, 0x%x' % PUB)
    a('v_lshl_add_u32 v%d, v1, 3, s32' % vPub)
    mk_srd(a, sCT, P['ws'], 16 << 20, WS_CTX)
    setup(a)
    a('s_waitcnt lgkmcnt(0)'); a('s_barrier')
    if dbg: ts(a, 42)

    def st(b, kt, qt): return SS + b * 16 + (kt * 2 + qt) * 4
    def ct(kt, qt): return C + (kt * 2 + qt) * 4
    def pf(b, qt): return PP + b * 8 + qt * 4
    def sm_items(b):
        o = []
        for p in range(8):
            kt, qt, hf = p >> 2, (p >> 1) & 1, p & 1
            sreg = st(b, kt, qt) + 2 * hf; e = ET + 2 * (p & 3); G = 10 + 4 * p; bs = BS + 2 * b + qt
            o += [(G, 'v_exp_f32 v%d, v%d' % (e, sreg)), (G + 2, 'v_exp_f32 v%d, v%d' % (e + 1, sreg + 1)),
                  (G + 3, cvt(pf(b, qt) + 2 * kt + hf, e, e + 1))]
            if p in (0, 2): o += [(G + 4, 'v_add_f32 v%d, v%d, v%d' % (bs, e, e + 1))]
            else: o += [(G + 4, 'v_add_f32 v%d, v%d, v%d' % (e, e, e + 1)), (G + 5, 'v_add_f32 v%d, v%d, v%d' % (bs, bs, e))]
        o.sort(key=lambda x: x[0])
        return o
    def sm(b, lo, hi): return [t for g, t in sm_items(b) if lo <= g < hi]
    def xg(op, x, t):
        return ['v_mov_b32 v%d, v%d' % (t, x), 'v_permlane16_swap_b32 v%d, v%d' % (x, t), '%s v%d, v%d, v%d' % (op, x, x, t),
                'v_mov_b32 v%d, v%d' % (t, x), 'v_permlane32_swap_b32 v%d, v%d' % (x, t), '%s v%d, v%d, v%d' % (op, x, x, t)]
    def blockmax(b, qt, x, t):
        s0, s1 = st(b, 0, qt), st(b, 1, qt)
        return ['v_max3_f32 v%d, v%d, v%d, v%d' % (x, s0, s0 + 1, s0 + 2), 'v_max3_f32 v%d, v%d, v%d, v%d' % (t, s0 + 3, s1, s1 + 1),
                'v_max3_f32 v%d, v%d, v%d, v%d' % (x, x, s1 + 2, s1 + 3), 'v_max_f32 v%d, v%d, v%d' % (x, x, t)] + xg('v_max_f32', x, t)
    def patch(name, sreg):
        t = tail
        t.label(name)
        t('s_cmp_eq_u32 %s, s%d' % (sreg, sD)); t('s_cbranch_scc1 %s_tri' % name)
        for r in range(16): t('v_mov_b32 v%d, %s' % (C + r, NINF))
        t('s_branch %s_ret' % name)
        t.label(name + '_tri')
        t('v_mov_b32 v%d, %s' % (T0, NINF))
        for r in range(4):
            t('v_mov_b32 v%d, %s' % (ct(1, 0) + r, NINF))
            for k in range(2): t('v_cndmask_b32 v%d, v%d, v%d, %s' % (ct(k, k) + r, ct(k, k) + r, T0, sr(sMsk + 2 * r, 2)))
        t('s_branch %s_ret' % name)
        return ['s_cmp_ge_u32 %s, s%d' % (sreg, sD), 's_cbranch_scc1 %s\n%s_ret:' % (name, name)]
    def slow(name, b, bnd=False):
        t = tail
        t.label(name)
        ND = TMP; F = TMP + 2
        for qt in range(2):
            t.extend(blockmax(b, qt, ND + qt, TMP + 4 + qt))
            t('v_max_f32 v%d, 0, v%d' % (ND + qt, ND + qt)); t('v_xor_b32 v%d, 0x80000000, v%d' % (ND + qt, ND + qt))
            t('v_exp_f32 v%d, v%d' % (F + qt, ND + qt))
        for kt in range(2):
            for qt in range(2):
                for r in range(4): t('v_add_f32 v%d, v%d, v%d' % (st(b, kt, qt) + r, st(b, kt, qt) + r, ND + qt))
        for dt in range(8):
            for qt in range(2):
                for r in range(4): t('v_mul_f32 v%d, v%d, v%d' % (tile(qt, dt) + r, tile(qt, dt) + r, F + qt))
        for qt in range(2):
            t('v_mul_f32 v%d, v%d, v%d' % (L + qt, L + qt, F + qt))
        t.extend(sm(b, 0, 99))
        if bnd: t('s_cmp_ge_u32 s3, 4'); t('s_cbranch_scc1 %s_r2' % name)
        for kt in range(2):
            for qt in range(2):
                for r in range(4):
                    t('v_add_f32 v%d, v%d, v%d' % (st(1 - b, kt, qt) + r, st(1 - b, kt, qt) + r, ND + qt))
                    t('v_add_f32 v%d, v%d, v%d' % (ct(kt, qt) + r, ct(kt, qt) + r, ND + qt))
        for qt in range(2): t('v_add_f32 v%d, v%d, v%d' % (NM + qt, NM + qt, ND + qt))
        t.label(name + '_r2')
        t.extend(sm(1 - b, 0, 16))
        t('s_branch %s_ret' % name)
        return (['v_add_f32 v%d, v%d, v%d' % (T1, BS + 2 * b, BS + 2 * b + 1), 'v_cmp_nge_f32 vcc, s%d, v%d' % (sThr, T1)], 's_cbranch_vccnz %s\n%s_ret:' % (name, name))
    def ladd(b): return ['v_add_f32 v%d, v%d, v%d' % (L + qt, L + qt, BS + 2 * b + qt) for qt in range(2)]
    def qk(b, s, kt, qt):
        d = vr(st(b, kt, qt), 4)
        return MF % (d, vr(FR + (kt * 4 + s) * 4, 4), vr(qf(s, qt), 4), vr(ct(kt, qt), 4) if s == 0 else d)
    def pv(b, dt, qt):
        d = vr(tile(qt, dt), 4)
        return MF % (d, vr(FR + dt * 4, 4), vr(pf(b, qt), 4), d)
    def rdtxt(isK, b, f):
        return 'ds_read_b128 %s, v%d offset:%d' % (vr(FR + 4 * f, 4), vK if isK else vV, b * 8192 + f * 1024)

    t = tail
    t.label('f_hook')
    t('s_cmp_ge_u32 s%d, s%d' % (sRdy, sLim)); t('s_cbranch_scc1 f_hk_kv')
    t.extend(rdy_calc(vFl))
    t('s_add_u32 s%d, s%d, 0x10000' % (sPub, sKsrc)); t('s_min_u32 s%d, s%d, s%d' % (sPub, sPub, sLim))
    t('s_cmp_ge_u32 s%d, s%d' % (sRdy, sPub)); t('s_cbranch_scc1 f_hk_ok')
    t('s_mov_b32 vcc_lo, %d' % SPIN)
    t.label('f_hk_l')
    t('s_sleep 8'); t(rdy_load(vFl, T0)); t('s_waitcnt vmcnt(0)'); t.extend(rdy_calc(vFl))
    t('s_cmp_ge_u32 s%d, s%d' % (sRdy, sPub)); t('s_cbranch_scc1 f_hk_ok')
    t('s_sub_u32 vcc_lo, vcc_lo, 1'); t('s_cmp_lg_u32 vcc_lo, 0'); t('s_cbranch_scc1 f_hk_l')
    t.label('f_hk_ok')
    t('s_cmp_ge_u32 s%d, s%d' % (sRdy, sLim)); t('s_cbranch_scc1 f_hk_kv')
    t('s_sub_u32 s32, s%d, s%d' % (sRdy, sKsrc)); t('s_lshr_b32 s32, s32, 16'); t('s_sub_u32 s32, s32, 2'); t('s_max_i32 s32, s32, 1')
    t('s_add_u32 s33, s%d, s32' % sJ); t('s_bitset1_b32 s%d, s33' % sHook)
    t('s_cmp_gt_u32 s32, 1'); t('s_cbranch_scc1 f_hk_kv')
    t(rdy_load(vFl, T0))
    t.label('f_hk_kv')
    hooks(t)
    t('s_nop 4')
    t('s_setpc_b64 s[100:101]')

    for f in range(8): a(rdtxt(True, 0, f))
    a('s_cmp_lt_u32 s3, 4'); a('s_cbranch_scc1 k2_noqb')
    for f in range(8): a('ds_read_b128 %s, v%d offset:%d' % (vr(QB + 4 * f, 4), T0, f * 1024))
    a.label('k2_noqb')
    a.extend(patch('k2_p0', 's%d' % sN))
    a('s_waitcnt lgkmcnt(0)')
    for kt in range(2):
        for s in range(4):
            for qt in range(2): a(qk(0, s, kt, qt))
            a(rdtxt(True, 1, kt * 4 + s))
    for qt in range(2):
        a.extend(blockmax(0, qt, NM + qt, TMP + qt)); a('v_xor_b32 v%d, 0x80000000, v%d' % (NM + qt, NM + qt))
    a('s_cmp_ge_u32 s3, 4'); a('s_cbranch_scc1 k2_nopub2')
    a('ds_write_b64 v%d, %s' % (vPub, vr(NM, 2)))
    a.label('k2_nopub2')
    for qt in range(2):
        for kt in range(2):
            for r in range(4): a('v_add_f32 v%d, v%d, v%d' % (st(0, kt, qt) + r, st(0, kt, qt) + r, NM + qt))
    a.extend(sm(0, 0, 32))
    for qt in range(2):
        for kt in range(2):
            for r in range(4): a('v_add_f32 v%d, v%d, v%d' % (ct(kt, qt) + r, ct(kt, qt) + r, NM + qt))
    a('s_mov_b32 s33, 1')
    a.extend(patch('k2_p1', 's33'))
    a('s_waitcnt lgkmcnt(0)')
    a('s_branch k2_h3_1')

    lg = LG(); tagF = {}
    def x2(t):
        for qt in range(2):
            t.extend(xg('v_add_f32', L + qt, TMP + qt)); t('v_rcp_f32 v%d, v%d' % (TMP + 2 + qt, L + qt))
        for qt in range(2): t('v_mov_b32 v%d, 0' % (L + qt))
        t('s_add_u32 s32, s%d, 0x1000' % sCtA)
        for s in range(4):
            for qt in range(2):
                o = QB + (s * 2 + qt) * 4
                for h2 in range(2):
                    d = tile(qt, 2 * s + h2)
                    for r in range(4): t('v_mul_f32 v%d, v%d, v%d' % (d + r, d + r, TMP + 2 + qt))
                    for r in range(2): t(cvt(o + 2 * h2 + r, d + 2 * r, d + 2 * r + 1))
                    for r in range(4): t('v_mov_b32 v%d, 0' % (d + r))
                t('buffer_store_dwordx4 %s, v%d, %s, s%d offen offset:%d sc1' % (vr(o, 4), vL16, sr(sCT, 4), 32 if s >= 2 else sCtA, ((s & 1) * 2 + qt) * 1024))
    gid = [0]
    def unit(isV, guard=False):
        m0, src = (sVm0, sVsrc) if isV else (sKm0, sKsrc)
        ld = lambda i: 'buffer_load_dwordx4 v%d, %s, s%d offen offset:%d lds' % (vKS, sr(sKV, 4), src, i * 1024)
        pre = ['s_and_b32 m0, s%d, 0xffff' % m0] + (['s_bitset1_b32 m0, 16'] if isV else [])
        o = ['\n'.join(pre + ['s_add_u32 s%d, s%d, 0x4000' % (m0, m0), ld(0)]), ld(1) + '\ns_add_u32 s%d, s%d, 0x8000' % (src, src)]
        if guard or not isV:
            for k in range(2):
                gid[0] += 1
                o[k] = 's_cmp_ge_u32 s%d, s%d\ns_cbranch_scc1 f_g%d\n%s\nf_g%d:' % (src, sLim, gid[0], o[k], gid[0])
        return o
    def body(a, kind):
        S = Sched()
        def rd(isK, b, f):
            def g(a):
                a(rdtxt(isK, b, f)); tagF[f] = lg.issue()
            return g
        for H in range(4):
            for f in range(8):
                for qt in range(2):
                    i = S.mfma(qk(H >> 1, f & 3, f >> 2, qt) if H % 2 == 0 else pv(1 if H == 1 else 0, f, qt))
                    if qt == 0 and f % 4 == 0: S.add_pre(i, lambda a, f=f: lg.wait_for(a, tagF[f + 3]) if f + 3 in tagF else None)
        S.add_pre(32, 'k2_h3_%s:' % kind)
        def bar(a):
            a('s_waitcnt vmcnt(0) lgkmcnt(0)'); lg.done = lg.n
            a('s_bitcmp0_b32 s%d, s%d' % (sHook, sJ)); a('s_cbranch_scc1 f_hr_%s' % kind)
            a('s_call_b64 s[100:101], f_hook')
            a('f_hr_%s:' % kind)
            a('s_barrier'); a('s_setprio 3')
            a('s_bitcmp0_b32 s%d, s%d' % (sPost, sJ)); a('s_cbranch_scc1 f_pr_%s' % kind)
            a('s_call_b64 s[100:101], f_post')
            a('f_pr_%s:' % kind)
        S.add_post(35, bar)
        for q, g in enumerate((61, 17, 29)): S.add_post(g, 's_setprio %d' % (2 - q))
        for f in range(8):
            o = 2 * f + 1
            S.add_post(o, rd(False, 1, f)); S.add_post(16 + o, rd(True, 1, f))
            S.add_post(max(35, 32 + o), rd(False, 0, f)); S.add_post(48 + o, rd(True, 0, f) if kind != 'e' else rd(False, 1, f))
        for b in range(2):
            for g, t in sm_items(b): S.add_post((32 * b + g) % 64, t)
        S.add_post(52, ladd(0)[0]); S.add_post(52, ladd(0)[1])
        if kind == 'e':
            S.emit(a, 48, 64); return
        if kind == 'w':
            S.emit(a, 48, 64); S.emit(a, 0, 48); return
        pa = patch('k2_pa' + kind, 's%d' % sN); pb = patch('k2_pb' + kind, 's33')
        ca, bra = slow('k2_sa' + kind, 0); cb, brb = slow('k2_sb' + kind, 1, kind == '2f')
        S.add_post(48, 's_and_b32 s32, s%d, 7\ns_lshl_b32 s32, s32, 13\nv_add_u32 v%d, s32, v%d' % (sN, vK, vL16))
        S.add_post(56, pa[0]); S.add_post(56, pa[1])
        S.add_post(12, cb[0]); S.add_post(13, cb[1]); S.add_post(15, brb)
        S.add_post(16, ladd(1)[0]); S.add_post(16, ladd(1)[1])
        S.add_post(20, 's_add_u32 s33, s%d, 1' % sN); S.add_post(20, pb[0]); S.add_post(20, pb[1])
        S.add_post(33, 'v_add_u32 v%d, 0x10000, v%d' % (vV, vK))
        if kind == '2f':
            S.add_post(36, 's_cmp_lt_u32 s3, 4\ns_cbranch_scc1 k2_x2_skip'); S.add_post(36, x2); S.add_post(36, 'k2_x2_skip:')
        early = unit(True) + unit(False) + (unit(False) if kind == '2' else [])
        pos = (48, 54, 60, 0, 6, 12) if kind == '2' else (50, 58, 2, 10)
        for g, t in zip(pos, early): S.add_post(g, t)
        if kind != '1':
            for g, t in zip((37, 42), unit(True, True)): S.add_post(g, t)
        S.add_post(44, ca[0]); S.add_post(45, ca[1])
        S.add_post(46, 's_add_u32 s%d, s%d, %d' % (sN, sN, 2 if kind == '1' else 4)); S.add_post(46, 's_add_u32 s%d, s%d, 1' % (sJ, sJ))
        S.add_post(47, bra)
        S.emit(a, 48, 64); S.emit(a, 0, 48)
    body(Asm(), 'w')
    a.label('k2_loop1')
    body(a, '1')
    a('s_cmp_lt_u32 s%d, s%d' % (sJ, sJ1)); a('s_cbranch_scc1 k2_loop1')
    a('s_cmp_lt_u32 s3, 4'); a('s_cbranch_scc1 k2_x1_skip')
    a('ds_read_b64 %s, v%d' % (vr(NM, 2), vPub))
    a('s_add_u32 s%d, s%d, 2' % (sN, sN)); a('s_mov_b32 s%d, s%d' % (sD, sDq))
    for r in range(32): a('v_mov_b32 v%d, v%d' % (Q + r, QB + r))
    a('s_waitcnt lgkmcnt(0)')
    for kt in range(2):
        for qt in range(2):
            for r in range(4): a('v_mov_b32 v%d, v%d' % (ct(kt, qt) + r, NM + qt))
    a.label('k2_x1_skip')
    body(a, '2f')
    a('s_cmp_ge_u32 s%d, 17' % sJ); a('s_cbranch_scc1 k2_done')
    a.label('k2_loop2')
    body(a, '2')
    a('s_cmp_lt_u32 s%d, 17' % sJ); a('s_cbranch_scc1 k2_loop2')
    a.label('k2_done')
    body(a, 'e')
    if dbg: ts(a, 43)
    epi0(a)
    a.extend(sm(1, 32, 99))
    ce, bre = slow('k2_se', 1)
    a.extend(ce); a(bre)
    a('s_waitcnt lgkmcnt(0)')
    for dt in range(8):
        for qt in range(2): a(pv(1, dt, qt))
        if dt == 0: a.extend(ladd(1))
        if dt in (1, 2): a.extend(xg('v_add_f32', L + dt - 1, TMP + dt))
```

```python
from h_att import *
RG = 32768
sBA, sBB, sOUT, sWS, sWO = 8, 12, 16, 20, 28
sSt, sEv, sSlR, sSlW, sA0, sB0, sAs, sBs, sDl = 66, 67, 68, 69, 70, 71, 72, 73, 74
sT0, sT1, sFl1, sFw = 76, 77, 78, 79
sPo, sQ, sFY, sOK, sXb, sIt, sMk, sVal, sBlk = 82, 83, 84, 85, 86, 87, 88, 89, 90
vD = 5
DUMMY = 0x21000
def isN(lbl): return ['s_cmp_ge_u32 s2, 160', 's_cbranch_scc1 ' + lbl]
def notOK(lbl): return ['s_cmp_eq_u32 s%d, 0' % sOK, 's_cbranch_scc1 ' + lbl]
def isA(lbl): return ['s_cmp_lt_u32 s3, 4', 's_cbranch_scc1 ' + lbl]
def isB(lbl): return ['s_cmp_ge_u32 s3, 4', 's_cbranch_scc1 ' + lbl]
def srd_off(s, ptr, size, soff):
    return ['s_add_u32 s%d, s%d, %s' % (s, ptr, soff), 's_addc_u32 s%d, s%d, 0' % (s + 1, ptr + 1), 's_and_b32 s%d, s%d, 0xffff' % (s + 1, s + 1),
            's_mov_b32 s%d, 0x%x' % (s + 2, size), 's_mov_b32 s%d, 0x00020000' % (s + 3)]
def F(p, qt): return (224 + 8 * p if p < 4 else 128 + 8 * (p - 4)) + 4 * qt
def ldgrp(G):
    o = ['s_add_u32 s32, s%d, %d' % (sHL, G), 's_and_b32 s32, s32, 3', 's_lshl_b32 s32, s32, 13', 's_add_u32 s32, s32, s%d' % sQ, 's_add_u32 s33, s32, 0x1000']
    for s in range(4):
        for qt in range(2):
            o.append('buffer_load_dwordx4 %s, v%d, %s, s%d offen offset:%d' % (vr(F(4 * G + s, qt), 4), vL16, sr(sCT, 4), 32 + (s >> 1), (s & 1) * 2048 + qt * 1024))
    return o
def wo_params():
    o = ['s_mov_b64 s[%d:%d], s[%d:%d]' % (d + k, d + k + 1, sWO + k, sWO + k + 1) for d in (sBA, sBB) for k in (0, 2)]
    o += ['s_lshl_b32 s32, s%d, 2' % sHL, 's_add_u32 s32, s32, s3', 's_and_b32 s33, s32, 15', 's_mul_i32 s%d, s33, 40960' % sA0, 's_xor_b32 s33, s33, 8', 's_mul_i32 s%d, s33, 40960' % sB0,
          's_mul_i32 s32, s%d, 320' % sHL, 's_add_u32 s%d, s%d, s32' % (sA0, sA0), 's_add_u32 s%d, s%d, s32' % (sB0, sB0),
          's_movk_i32 s%d, 64' % sAs, 's_movk_i32 s%d, 64' % sBs, 's_movk_i32 s%d, 19456' % sDl]
    return o
def wo_voff(t):
    return ['v_lshrrev_b32 v%d, 3, v1' % t, 'v_and_b32 v%d, 2, v%d' % (t, t), 'v_xor_b32 v%d, v%d, v1' % (t, t), 'v_and_b32 v%d, 3, v%d' % (t, t),
            'v_lshrrev_b32 v%d, 2, v1' % vD, 'v_mul_u32_u24 v%d, 1280, v%d' % (vD, vD), 'v_lshl_add_u32 v%d, v%d, 4, v%d' % (vD, t, vD)]
def ring(s): return 's_sub_u32 s%d, s%d, 0x%x\ns_cselect_b32 s%d, 0x%x, s%d' % (s, s, RG, s, 4 * RG, s)
def stage_dma():
    ld = 'buffer_load_dwordx4 v%d, %s, s%d offen offset:%d lds'
    return ['s_add_u32 m0, s%d, s%d\n' % (sSlW, sWl) + ld % (vD, sr(sBA, 4), sA0, 0),
            's_add_u32 s%d, s%d, s%d\n' % (sT0, sA0, sDl) + ld % (vD, sr(sBA, 4), sT0, 1024),
            's_add_u32 m0, m0, 0x4000\n' + ld % (vD, sr(sBB, 4), sB0, 0),
            's_add_u32 s%d, s%d, s%d\n' % (sT0, sB0, sDl) + ld % (vD, sr(sBB, 4), sT0, 1024),
            's_add_u32 s%d, s%d, s%d\ns_add_u32 s%d, s%d, s%d\n' % (sA0, sA0, sAs, sB0, sB0, sBs) + ring(sSlW)]
def quarter_dma():
    o = []
    for d in range(8):
        pre = ''
        if d == 0: pre = 's_add_u32 m0, s%d, s%d\n' % (sSlW, sB0)
        if d == 4: pre = 's_add_u32 m0, m0, 0x1000\n'
        if d: pre += 's_add_u32 s%d, s%d, %d\n' % (sT0, sA0, d * 20480 - (d & 3) * 1024)
        o.append(pre + 'buffer_load_dwordx4 v%d, %s, s%d offen offset:%d lds' % (vD, sr(sBA, 4), sT0 if d else sA0, (d & 3) * 1024))
    return o + ['s_add_u32 s%d, s%d, 64\n' % (sA0, sA0) + ring(sSlW)]
def flag_st(val, saddr, va, vb):
    return ['v_lshlrev_b32 v%d, 26, v1' % va, 'v_mov_b32 v%d, %s' % (vb, val), 'buffer_store_dword v%d, v%d, %s, s%d offen sc1' % (vb, va, sr(sWS, 4), saddr)]
def flag_ld(vf, saddr):
    return ['v_and_b32 v%d, 7, v1' % vf, 'v_lshlrev_b32 v%d, 2, v%d' % (vf, vf), 'buffer_load_dword v%d, v%d, %s, s%d offen sc1' % (vf, vf, sr(sWS, 4), saddr)]
def flag_chk(vf, val, mask):
    return ['v_cmp_gt_i32 vcc, %s, v%d' % (val, vf), 's_and_b32 s33, vcc_lo, %s' % mask]
def flag_spin(t, name, vf, saddr, val, mask, loaded=False):
    t('s_mov_b32 s32, %d' % SPIN)
    if loaded: t('s_branch %s_c' % name)
    t.label(name + '_l')
    t.extend(flag_ld(vf, saddr)); t('s_waitcnt vmcnt(0)')
    t.label(name + '_c')
    t.extend(flag_chk(vf, val, mask)); t('s_cbranch_scc0 %s_d' % name)
    t('s_sleep 2')
    t('s_sub_u32 s32, s32, 1'); t('s_cmp_lg_u32 s32, 0'); t('s_cbranch_scc1 %s_l' % name)
    t.label(name + '_d')
SV, SM = 's%d' % sVal, 's%d' % sMk

def setup(a):
    a.extend(srd_off(sWS, P['ws'], 36 << 20, '0x%x' % WS_B))
    a('s_mul_i32 s32, s%d, %d' % (sX_, 512 * 1280)); a.extend(srd_off(sWO, P['wo'], 512 * 1280, 's32'))
    R, IH = sT0, sT1
    a('s_and_b32 s%d, s3, 3' % R)
    a('s_sub_u32 s%d, 7, s%d' % (sBlk, sI))
    a('s_sub_u32 s32, 15, s%d' % sI); a('s_cmp_lt_u32 s3, 4'); a('s_cselect_b32 s32, s%d, s32' % sBlk); a('s_cselect_b32 s33, s%d, s%d' % (sBlk, sI))
    a('s_cselect_b32 s%d, 1, 2' % sVal); a('s_cselect_b32 s%d, 0x%x, 0x%x' % (sPo, PA0, PB0))
    a('s_lshl_b32 s32, s32, 2'); a('s_add_u32 s32, s32, s%d' % R); a('s_lshl_b32 s32, s32, 3'); a('s_add_u32 s32, s32, s%d' % sX_); a('s_lshl_b32 s%d, s32, 15' % sQ)
    a('s_lshl_b32 s32, s%d, 3' % sX_); a('s_add_u32 s32, s32, s33'); a('s_lshl_b32 s32, s32, 2'); a('s_add_u32 s32, s32, s%d' % R); a('s_lshl_b32 s32, s32, 7'); a('s_add_u32 s%d, s32, 0x%x' % (sFw, FL0))
    a('s_lshr_b32 s%d, s2, 3' % IH); a('s_lshl_b32 s%d, s%d, 2' % (IH, IH)); a('s_add_u32 s%d, s%d, s%d' % (IH, IH, R))
    a('s_lshl_b32 s32, s%d, 5' % IH); a('s_add_u32 s32, s32, s%d' % sX_); a('s_lshl_b32 s32, s32, 2'); a('s_add_u32 s32, s32, 0x%x' % (FL0 + 32768))
    a('s_lshl_b32 s33, s%d, 2' % sHL); a('s_add_u32 s33, s33, s%d' % sFw); a('s_cmp_lt_u32 s3, 4'); a('s_cselect_b32 s%d, s32, s33' % sFl1)
    a('s_cselect_b32 s33, 4, s%d' % sHL); a('s_mov_b32 s%d, 15' % sMk); a('s_bitset0_b32 s%d, s33' % sMk)
    a('s_lshl_b32 s32, s%d, 4' % IH); a('s_add_u32 s32, s32, s%d' % sX_); a('s_mul_i32 s32, s32, 5120'); a('s_add_u32 s%d, s%d, s32' % (sPo, sPo))
    a('s_lshr_b32 s33, s3, 2'); a('s_mul_i32 s33, s33, 40960'); a('s_add_u32 s32, s32, s33'); a('s_add_u32 s%d, s32, 0x%x' % (sIt, PB0))
    a('s_bitcmp1_b32 s%d, 0' % sI); a('s_cselect_b32 s%d, 0x%x, 0' % (sSlW, 4 * RG)); a('s_cselect_b32 s%d, 0, 0x%x' % (sXb, RG)); a('s_mov_b32 s%d, s%d' % (sSlR, sSlW))
    a('s_cmp_lt_u32 s3, 3'); a('s_cselect_b32 s32, 12, 16'); a('s_mov_b32 s%d, 0x1003e' % sPost); a('s_bitset1_b32 s%d, s32' % sPost)
    a('s_add_u32 s32, s%d, 1' % sJ1); a('s_cmp_lt_u32 s3, 4'); a('s_cselect_b32 s%d, 7, s32' % sSt); a('s_cselect_b32 s32, 15, s32'); a('s_bitset1_b32 s%d, s32' % sPost); a('s_bitset1_b32 s%d, s%d' % (sPost, sSt))
    a('s_lshr_b32 s32, s2, 1'); a('s_lshl_b32 s32, s32, 7'); a('s_add_u32 s%d, s32, 0x%x' % (sFY, FL0 + 32768))
    a('s_mov_b32 s%d, 0' % sOK)
    a.extend(wo_params())

def hooks(t):
    t('s_cmp_lg_u32 s%d, 1' % sJ); t('s_cbranch_scc1 f_hk7'); t('v_lshlrev_b32 v%d, 20, v1' % T1); t(publish('x', T0, T1)); t(publish('kv', T0, T1)); t.label('f_hk7')
    t('s_cmp_lt_u32 s%d, 13' % sJ); t('s_cbranch_scc1 f_hkE'); t('s_cmp_gt_u32 s%d, 14' % sJ); t('s_cbranch_scc1 f_hkE')
    t('s_mov_b32 s32, %d' % SPIN); t('v_and_b32 v%d, 31, v1' % T0); t('v_lshlrev_b32 v%d, 2, v%d' % (T0, T0)); t('s_lshl_b32 s33, s%d, 7' % sX_); t('s_add_u32 s33, s33, 0x%x' % XFL)
    t('s_cmp_eq_u32 s%d, 14' % sJ); t('s_cbranch_scc1 f_hk14')
    t('buffer_load_dword v255, v%d, %s, s33 offen sc1' % (T0, sr(sDB, 4))); t('s_branch f_hkE')
    t.label('f_hk14')
    t('v_cmp_ne_u32 vcc, 1, v255')
    t('s_cbranch_vccz f_hkE')
    t('s_sleep 8'); t('buffer_load_dword v255, v%d, %s, s33 offen sc1' % (T0, sr(sDB, 4))); t('s_waitcnt vmcnt(0)')
    t('s_sub_u32 s32, s32, 1'); t('s_cmp_lg_u32 s32, 0'); t('s_cbranch_scc1 f_hk14')
    t.label('f_hkE')

def post(t):
    t.label('f_post')
    t('s_cmp_gt_u32 s%d, 5' % sJ); t('s_cbranch_scc1 f_po1')
    for k in range(4): t('v_mov_b32 v%d, -1' % (TMP + k))
    t('buffer_store_dwordx4 %s, v%d, %s, s%d offen sc1' % (vr(TMP, 4), vL16, sr(sWS, 4), sIt)); t('s_add_u32 s%d, s%d, 1024' % (sIt, sIt))
    t.label('f_po1')
    t('s_cmp_lg_u32 s%d, s%d' % (sJ, sSt)); t('s_cbranch_scc1 f_po2')
    t.extend(flag_st(1, sFl1, T0, T1))
    t.label('f_po2')
    t('s_cmp_lt_u32 s%d, 12' % sJ); t('s_cbranch_scc1 f_poE')
    t('s_cmp_eq_u32 s%d, 16' % sJ); t('s_cbranch_scc1 f_po16')
    t('s_mov_b32 m0, 0x%x' % DUMMY)
    pf = 'buffer_load_dword v%d, %s, 0 offen lds'
    t('s_cmp_lg_u32 s%d, 12' % sJ); t('s_cbranch_scc1 f_po3')
    t('s_lshr_b32 s32, s2, 3'); t('s_lshl_b32 s33, s3, 5'); t('s_add_u32 s32, s32, s33'); t('s_lshl_b32 s32, s32, 13'); t('v_lshl_add_u32 v%d, v1, 7, s32' % T0)
    if 'nopf2' not in XO: t(pf % (T0, sr(sWO, 4)))
    t('s_branch f_poE')
    t.label('f_po3')
    t.label('f_po4')
    t('s_cmp_lg_u32 s%d, 15' % sJ); t('s_cbranch_scc1 f_poE')
    t.extend(isB('f_poE'))
    t.extend(flag_ld(255, sFw)); t('s_branch f_poE')
    t.label('f_po16')
    t.extend(wo_voff(T0))
    for k in range(2): t.extend(stage_dma())
    t.extend(isB('f_poE'))
    t.extend(flag_chk(255, SV, SM)); t('s_cbranch_scc1 f_po17')
    t('s_mov_b32 s%d, 1' % sOK)
    t.extend(ldgrp(0)); t('s_branch f_poE')
    t.label('f_po17')
    t.extend(flag_ld(255, sFw))
    t.label('f_poE')
    t('s_nop 4'); t('s_setpc_b64 s[100:101]')

def epi0(a):
    a('s_cmp_eq_u32 s%d, 17' % sSt); a('s_cbranch_scc1 f_e4')
    a.extend(isB('f_e0'))
    a('s_cmp_lg_u32 s%d, 0' % sOK); a('s_cbranch_scc0 f_e2')
    a.label('f_e1')
    a.extend(ldgrp(1))
    a.label('f_e0')
def epi_tail(t):
    t.label('f_e2')
    t('s_waitcnt vmcnt(0)')
    t.extend(flag_chk(255, SV, SM)); t('s_cbranch_scc1 f_e3')
    t('s_mov_b32 s%d, 1' % sOK)
    t.extend(ldgrp(0)); t('s_branch f_e1')
    t.label('f_e3')
    t.extend(flag_ld(255, sFw)); t('s_branch f_e0')
    t.label('f_e4')
    t('s_waitcnt vmcnt(0)'); t.extend(flag_st(1, sFl1, T0, T1)); t('s_branch f_e0')

def back(a, tail, dbg):
    post(tail); epi_tail(tail)
    vX_, vY_ = 3, 4
    a('s_and_b32 s32, s3, 3'); a('s_lshl_b32 s%d, s32, 13' % sT1); a('s_add_u32 s32, s%d, s%d' % (sT1, sXb)); a('v_add_u32 v%d, s32, v%d' % (T0, vL16))
    a('s_add_u32 s32, s32, 0x1c00'); a('v_lshl_add_u32 v%d, v1, 3, s32' % T1); a('v_lshl_add_u32 v%d, v1, 2, s32' % vX_)
    a('v_and_b32 v%d, 0xf0, v%d' % (vY_, vL16)); a('v_add_u32 v%d, s32, v%d' % (vY_, vY_))
    def xoff(f): return RG + f * 1024 if f < 8 else (f - 8) * 1024
    a('s_add_u32 s32, s%d, s3' % sHL); a('s_and_b32 s32, s32, 3'); a('s_mul_i32 s32, s32, %d' % (8 * 20480)); a('s_mul_i32 s33, s%d, 320' % sHL); a('s_add_u32 s32, s32, s33')
    a('s_add_u32 s%d, s32, 128' % sA0); a('s_mov_b32 s%d, s%d' % (sB0, sT1))
    a.extend(isB('f_B'))
    a.extend(notOK('f_a1'))
    a.extend(ldgrp(2)); a.extend(ldgrp(3))
    a.label('f_a1')
    a('ds_write_b128 v%d, %s offset:768' % (vY_, vr(L, 4)))
    for f in range(15): a('ds_write_b128 v%d, %s offset:%d' % (T0, vr(ACC + 4 * f, 4), xoff(f)))
    a(cvt(ACC + 62, ACC + 62, ACC + 63))
    a('ds_write_b64 v%d, %s' % (T1, vr(ACC + 60, 2))); a('ds_write_b32 v%d, v%d offset:512' % (vX_, ACC + 62))
    a('s_mov_b32 s%d, 2' % sEv)
    a('s_waitcnt vmcnt(24) lgkmcnt(0)'); a('s_barrier')
    if dbg: ts(a, 44)
    a.extend(quarter_dma())
    a('s_cmp_lg_u32 s%d, 0' % sOK); a('s_cbranch_scc1 f_oent')
    a('s_cmp_eq_u32 s%d, 0' % sI); a('s_cbranch_scc1 f_b4')
    a('s_waitcnt vmcnt(0)')
    a('s_barrier')
    a('s_branch f_b3')
    a.label('f_B')
    a('s_waitcnt vmcnt(0)')
    a('s_barrier'); a('s_setprio 3')
    if dbg: ts(a, 44)
    lg = LG(); tg = {}
    O = TMP; S_ = 128
    a('ds_read_b128 %s, v%d offset:768' % (vr(O, 4), vY_)); tg['x'] = lg.issue()
    for f in range(15):
        a('ds_read_b128 %s, v%d offset:%d' % (vr(S_ + 4 * f, 4), T0, xoff(f))); tg[f] = lg.issue()
    a('ds_read_b64 %s, v%d' % (vr(S_ + 60, 2), T1)); lg.issue(); a('ds_read_b32 v%d, v%d offset:512' % (S_ + 63, vX_)); tg[15] = lg.issue()
    a(quarter_dma()[-1])
    lg.wait_for(a, tg['x'])
    FA = ET; FB = ET + 2
    for qt in range(2):
        m = ET + 4 + qt
        a('v_min_f32 v%d, v%d, v%d' % (m, NM + qt, O + 2 + qt))
        a('v_sub_f32 v%d, v%d, v%d' % (FA + qt, m, NM + qt)); a('v_sub_f32 v%d, v%d, v%d' % (FB + qt, m, O + 2 + qt))
        a('v_exp_f32 v%d, v%d' % (FA + qt, FA + qt)); a('v_exp_f32 v%d, v%d' % (FB + qt, FB + qt))
        a('v_mul_f32 v%d, v%d, v%d' % (m, L + qt, FA + qt)); a('v_fmac_f32 v%d, v%d, v%d' % (m, O + qt, FB + qt))
        a('v_rcp_f32 v%d, v%d' % (m, m))
        a('v_mul_f32 v%d, v%d, v%d' % (FA + qt, FA + qt, m)); a('v_mul_f32 v%d, v%d, v%d' % (FB + qt, FB + qt, m))
    a('s_add_u32 s32, s%d, 0x1000' % sCtB)
    for s in range(4):
        for qt in range(2):
            o = F(s, qt)
            for h2 in range(2):
                f = (2 * s + h2) * 2 + qt; d = ACC + 4 * f
                for r in range(4): a('v_mul_f32 v%d, v%d, v%d' % (d + r, d + r, FA + qt))
                lg.wait_for(a, tg[f])
                if f == 15: a('v_lshlrev_b32 v%d, 16, v%d' % (S_ + 62, S_ + 63)); a('v_and_b32 v%d, 0xffff0000, v%d' % (S_ + 63, S_ + 63))
                for r in range(4): a('v_fmac_f32 v%d, v%d, v%d' % (d + r, S_ + 4 * f + r, FB + qt))
                for r in range(2): a(cvt(o + 2 * h2 + r, d + 2 * r, d + 2 * r + 1))
            a('buffer_store_dwordx4 %s, v%d, %s, s%d offen offset:%d sc1' % (vr(o, 4), vL16, sr(sCT, 4), 32 if s >= 2 else sCtB, ((s & 1) * 2 + qt) * 1024))
    if dbg: ts(a, 45)
    for k in range(2): a.extend(quarter_dma())
    a.extend(flag_ld(14, sFw))
    a('s_waitcnt vmcnt(17)')
    a.extend(flag_st(2, sFl1, 12, 13))
    if dbg: ts(a, 46)
    a('s_mov_b32 s%d, 2' % sEv)
    a('s_cmp_eq_u32 s%d, 0' % sI); a('s_cbranch_scc1 f_b2')
    a('s_waitcnt vmcnt(2)')
    a('s_barrier')
    if dbg: ts(a, 47)
    a('s_mov_b32 s%d, 0' % sEv)
    a.label('f_b2')
    a('s_waitcnt vmcnt(1)')
    a.extend(flag_chk(14, SV, SM)); a('s_cbranch_scc0 f_l2')
    a('s_branch f_b4')
    a.label('f_b3')
    t = tail
    t.label('f_ldB')
    for G in (1, 2, 3): t.extend(ldgrp(G))
    t.extend(flag_ld(15, sFY)); t('s_mov_b32 s32, 0x2000000')
    for k in range(7): t('buffer_load_dword v14, v%d, %s, s32 offen' % (vL16, sr(sCT, 4)))
    t('s_setpc_b64 s[100:101]')
    a('s_mov_b32 s%d, 0' % sEv)
    a.label('f_b4')
    flag_spin(a, 'f_wl', 14, sFw, SV, SM)
    if dbg: ts(a, 48)
    a.extend(isB('f_l2'))
    a.extend(ldgrp(0))
    a.label('f_l2')
    a('s_call_b64 s[100:101], f_ldB')
    BF = 32; OA = 64; PK = 80; vB = 3; vC = 6
    a.label('f_oent')
    a('v_lshrrev_b32 v8, 2, v1'); a('v_lshlrev_b32 v8, 6, v8'); a('v_and_b32 v9, 3, v1'); a('v_lshl_add_u32 v8, v9, 3, v8'); a('v_and_b32 v9, 16, v1')
    a('v_lshl_add_u32 v%d, v9, 1, v8' % vB); a('v_xor_b32 v%d, 32, v%d' % (vB + 1, vB))
    for c in range(2): a('v_add_u32 v%d, s%d, v%d' % (vC + c, sSlR, vB + c))
    a(ring(sSlR))
    lg = LG(); tag = {}
    def rdW(n, hf):
        n &= 31
        def f(a):
            a('ds_read_b64_tr_b16 %s, v%d offset:%d' % (vr(BF + 4 * (n & 7) + 2 * hf, 2), vC + (n & 1), (n >> 1) * 2048 + hf * 1024)); tag[n] = lg.issue()
        return f
    for n in range(15): rdW(n >> 1, n & 1)(a)
    a('s_mov_b32 s%d, 0' % sIt); a('s_add_u32 s%d, s%d, %d' % (sT1, sPo, 40960 - 1024))
    if dbg: ts(a, 49)
    a('s_setprio 0'); a.extend(isB('f_oloop')); a('s_setprio 2'); a('s_waitcnt vmcnt(32)')
    S = Sched()
    st = 'buffer_store_dwordx4 %s, v%d, %s, s%d offen sc1'
    for n in range(32):
        c, p = n & 1, n >> 1
        for qt in range(2):
            d = vr(OA + 8 * c + 4 * qt, 4)
            i = S.mfma(MF % (d, vr(F(p, qt), 4), vr(BF + 4 * (n & 7), 4), '0' if p == 0 else d))
            if qt == 0:
                if n % 8 == 0 and n: S.add_pre(i, 's_cmp_lg_u32 s%d, 0\ns_cbranch_scc1 f_ow%d\ns_waitcnt vmcnt(%d)\nf_ow%d:' % (sIt, p, 32 - n, p))
                S.add_pre(i, lambda a, n=n: lg.wait_for(a, tag[n]))
            S.add_post(i, rdW(n + 7 + qt, 1 - qt))
    for x in pack8(PK + 4, OA + 8): S.add_post(1, x)
    S.add_post(4, 's_cmp_eq_u32 s%d, 0\ns_cbranch_scc1 f_ol1\n' % sIt + st % (vr(PK + 4, 4), vL16, sr(sWS, 4), sT1) + '\nf_ol1:')
    S.add_post(6, 's_add_u32 s%d, s%d, 1024' % (sT1, sT1))
    S.add_post(48, 's_bitcmp0_b32 s%d, s%d\ns_cbranch_scc1 f_ol2\ns_waitcnt vmcnt(2)\ns_barrier\nf_ol2:' % (sEv, sIt))
    S.add_post(47, 'v_add_u32 v%d, s%d, v%d' % (vC, sSlR, vB)); S.add_post(49, 'v_add_u32 v%d, s%d, v%d' % (vC + 1, sSlR, vB + 1)); S.add_post(52, ring(sSlR))
    S.add_post(56, 's_add_u32 s%d, s%d, 1' % (sIt, sIt))
    for x in pack8(PK, OA): S.add_post(63, x)
    S.add_post(63, st % (vr(PK, 4), vL16, sr(sWS, 4), sPo) + '\ns_add_u32 s%d, s%d, 1024' % (sPo, sPo))
    if dbg == 1 and 'lts' in XO:
        S.add_post(31, 's_memtime s[100:101]\ns_add_u32 m0, s%d, 20\ns_waitcnt lgkmcnt(0)\nv_writelane_b32 v0, s100, m0' % sIt)
        S.add_post(63, 's_memtime s[100:101]\ns_add_u32 m0, s%d, 29\ns_waitcnt lgkmcnt(0)\nv_writelane_b32 v0, s100, m0' % sIt)
    a.label('f_oloop')
    S.emit(a, 0, 64)
    a('s_cmp_lt_u32 s%d, 5' % sIt); a('s_cbranch_scc1 f_oloop')
    a.extend(pack8(PK + 4, OA + 8)); a(st % (vr(PK + 4, 4), vL16, sr(sWS, 4), sT1))
    if dbg: ts(a, 50)
    mk_srd(a, sOUT, P['out'], 2048 * 5120)
    a('s_waitcnt vmcnt(10)')
    a.extend(isB('f_t2'))
    a('s_setprio 1')
    a('v_mov_b32 v15, -1')
    def acc2(d, s, t, first):
        if first: return ['v_lshlrev_b32 v%d, 16, v%d' % (d, s), 'v_and_b32 v%d, 0xffff0000, v%d' % (d + 1, s)]
        return ['v_lshlrev_b32 v%d, 16, v%d' % (t, s), 'v_and_b32 v%d, 0xffff0000, v%d' % (s, s), 'v_add_f32 v%d, v%d, v%d' % (d, d, t), 'v_add_f32 v%d, v%d, v%d' % (d + 1, d + 1, s)]
    a.extend(isN('f_t1'))
    sXS = sBA; sYa = (70, 71); sYf = (72, 73); sM, sYc, sYw, sYh = 66, 67, 68, 69
    mk_srd(a, sXS, P['A_x'], 2048 * 1280)
    XR = (96, 112); vXo = (16, 17); vDs = (18, 19); vYo = (20, 21); vFy = (22, 23)
    for e in range(2):
        a('s_lshr_b32 s32, s2, 3'); a('s_lshl_b32 s32, s32, 2'); a('s_add_u32 s32, s32, s3'); a('s_lshl_b32 s32, s32, 1'); a('s_add_u32 s%d, s32, %d' % (sM, e))
        a('s_mul_i32 s32, s%d, 13108' % sM); a('s_lshr_b32 s32, s32, 16'); a('s_mul_i32 s33, s32, 5'); a('s_sub_u32 s%d, s%d, s33' % (sYc, sM))
        a('s_and_b32 s%d, s32, 7' % sYw); a('s_lshr_b32 s%d, s32, 3' % sYh)
        a('s_lshl_b32 s33, s%d, 5' % sX_); a('s_add_u32 s32, s32, s33')
        a('s_mul_i32 s32, s32, 30720'); a('s_lshl_b32 s33, s%d, 11' % sYc); a('s_add_u32 s32, s32, s33'); a('s_add_u32 s%d, s32, 0x%x' % (sYa[e], PY0))
        a('s_mul_i32 s32, s%d, 160' % sYh); a('s_and_b32 s33, s%d, 1' % sYw); a('s_mul_i32 s33, s33, 80'); a('s_add_u32 s32, s32, s33'); a('s_lshl_b32 s33, s%d, 4' % sYc); a('s_add_u32 s32, s32, s33')
        a('v_and_b32 v8, 15, v1'); a('v_add_u32 v8, s32, v8')
        a('s_lshl_b32 s32, s%d, 8' % sX_); a('s_lshr_b32 s33, s%d, 1' % sYw); a('s_lshl_b32 s33, s33, 6'); a('s_add_u32 s32, s32, s33')
        a('v_lshrrev_b32 v9, 4, v1'); a('v_lshl_add_u32 v9, v9, 2, s32'); a('v_mul_u32_u24 v9, 640, v9')
        a('v_add_lshl_u32 v%d, v9, v8, 1' % vXo[e]); a('v_lshl_add_u32 v9, v9, 1, v8'); a('v_lshlrev_b32 v%d, 2, v9' % vYo[e]); a('v_lshlrev_b32 v8, 1, v8')
        a('global_load_ushort v%d, v8, %s' % (vDs[e], sr(P['Dskip'], 2)))
        for q in range(4):
            a('s_mov_b32 s32, %d' % (q * 16 * 1280))
            for r in range(4): a('buffer_load_ushort v%d, v%d, %s, s32 offen offset:%d' % (XR[e] + 4 * q + r, vXo[e], sr(sXS, 4), r * 1280))
    YL = (128, 160); YS = (32, 48)
    for e in range(2):
        for p in range(3):
            for k in range(2): a('buffer_load_dwordx4 %s, v%d, %s, s%d offen offset:%d' % (vr(YL[e] + (p * 2 + k) * 4, 4), vL16, sr(sWS, 4), sYa[e], k * 1024))
            if p < 2: a('s_add_u32 s%d, s%d, 10240' % (sYa[e], sYa[e]))
    a('s_waitcnt vmcnt(46)')
    a.extend(flag_st(2, sFl1, 8, 9))
    if dbg: ts(a, 53)
    a('s_waitcnt vmcnt(13)')
    for e in range(2):
        a('v_lshlrev_b32 v%d, 16, v%d' % (vDs[e], vDs[e]))
        for k in range(16): a('v_lshlrev_b32 v%d, 16, v%d' % (XR[e] + k, XR[e] + k)); a('v_mul_f32 v%d, v%d, v%d' % (XR[e] + k, XR[e] + k, vDs[e]))
        for k in range(8): a(cvt(XR[e] + k, XR[e] + 2 * k, XR[e] + 2 * k + 1)); a.extend(acc2(YS[e] + 2 * k, XR[e] + k, 8, True))
    for e in range(2):
        for p in range(3):
            a('s_waitcnt vmcnt(%d)' % ((11 - 2 * p) if e == 0 else (21 - 2 * p)))
            for k in range(8): a.extend(acc2(YS[e] + 2 * k, YL[e] + p * 8 + k, 8 + (k & 1), False))
        for q in range(4):
            for r in range(4):
                a('s_mov_b32 s32, %d' % ((q * 16 + r) * 5120)); a('buffer_store_dword v%d, v%d, %s, s32 offen' % (YS[e] + 4 * q + r, vYo[e], sr(sOUT, 4)))
    a('s_branch f_t2')
    a.label('f_t1')
    a('s_waitcnt vmcnt(0)')
    a.extend(flag_st(2, sFl1, 8, 9))
    a.label('f_t2')
    if dbg: ts(a, 54)
    sIn, sOb, sR = 66, 67, 68
    vO1, vO2, vG1, vG2 = 10, 11, 12, 13
    a('s_mul_i32 s%d, s2, 40960' % sIn); a('s_and_b32 s%d, s3, 3' % sR); a('s_sub_u32 s%d, 3, s%d' % (sVal, sVal))
    a('s_add_u32 s32, s%d, 0x%x' % (sIn, PB0)); a('s_sub_u32 s33, 15, s%d' % sI); a('s_cmp_lt_u32 s3, 4'); a('s_cselect_b32 s%d, s%d, s32' % (sIn, sIn)); a('s_cselect_b32 s%d, s%d, s33' % (sBlk, sBlk))
    a('s_lshl_b32 s32, s%d, 10' % sR); a('v_add_u32 v%d, s32, v%d' % (vG1, vL16))
    a('s_lshl_b32 s32, s%d, 8' % sR); a('s_add_u32 s32, s32, 0x1000'); a('v_lshl_add_u32 v%d, v1, 2, s32' % vG2)
    flag_spin(a, 'f_wa', 15, sFY, SV, 0xff, True)
    if dbg: ts(a, 55)
    G1 = 32; G2 = 64; R1 = 96
    a('s_mov_b32 s%d, %d' % (sT0, SPIN))
    a.label('f_ga')
    for s in range(8):
        a('s_add_u32 s32, s%d, %d' % (sIn, s * 5120))
        a('buffer_load_dwordx4 %s, v%d, %s, s32 offen sc1' % (vr(G1 + 4 * s, 4), vG1, sr(sWS, 4)))
        a('buffer_load_dword v%d, v%d, %s, s32 offen sc1' % (G2 + s, vG2, sr(sWS, 4)))
    a('v_lshrrev_b32 v8, 4, v1'); a('v_mul_u32_u24 v8, %d, v8' % (4 * 5120)); a('v_and_b32 v9, 15, v1'); a('s_lshl_b32 s32, s%d, 7' % sR); a('v_lshl_add_u32 v9, v9, 2, s32'); a('v_add_u32 v%d, v8, v9' % vO1)
    a('v_bfe_u32 v8, v1, 1, 1'); a('v_and_b32 v9, 1, v1'); a('v_lshl_add_u32 v8, v8, 3, v9'); a('s_lshl_b32 s32, s%d, 2' % sR); a('v_lshl_add_u32 v8, v8, 1, s32'); a('v_mul_u32_u24 v8, 5120, v8')
    a('v_and_b32 v9, 0xfc, v1'); a('s_movk_i32 s32, 512'); a('v_add3_u32 v%d, v8, v9, s32' % vO2)
    a('s_lshl_b32 s32, s%d, 2' % sBlk); a('s_lshr_b32 s33, s%d, 1' % sX_); a('s_add_u32 s32, s32, s33'); a('s_mul_i32 s%d, s32, %d' % (sOb, 32 * 5120))
    a('s_mul_i32 s32, s%d, 640' % sHL); a('s_and_b32 s33, s%d, 1' % sX_); a('s_lshl_b32 s33, s33, 6'); a('s_add_u32 s32, s32, s33'); a('s_add_u32 s32, s32, 2560'); a('s_add_u32 s%d, s%d, s32' % (sOb, sOb))
    for s in range(8):
        a('s_waitcnt vmcnt(%d)' % (14 - 2 * s))
        g = G1 + 4 * s
        a('v_max3_u32 v9, v%d, v%d, v%d' % (g, g + 1, g + 2)); a('v_max3_u32 v9, v9, v%d, v%d' % (g + 3, G2 + s))
        a('v_mov_b32 v8, v9' if s == 0 else 'v_max_u32 v8, v8, v9')
        for k in range(4): a.extend(acc2(R1 + 2 * k, g + k, 16 + (k & 1), s == 0))
        a.extend(acc2(R1 + 8, G2 + s, 18, s == 0))
    a('v_cmp_eq_u32 vcc, -1, v8'); a('s_cbranch_vccz f_ga_d')
    a('s_sleep 2')
    a('s_sub_u32 s%d, s%d, 1' % (sT0, sT0)); a('s_cmp_lg_u32 s%d, 0' % sT0); a('s_cbranch_scc1 f_ga')
    a.label('f_ga_d')
    if dbg: ts(a, 56)
    for k, row in enumerate([(k >> 2) * 16 + (k & 3) for k in range(8)] + [0, 1]):
        a('s_add_u32 s32, s%d, %d' % (sOb, row * 5120)); a('buffer_store_dword v%d, v%d, %s, s32 offen' % (R1 + k, vO1 if k < 8 else vO2, sr(sOUT, 4)))
```

```python
from common import *
import copy, os
XO = os.environ.get('XO', '').split(',')
MF = 'v_mfma_f32_16x16x32_bf16 %s, %s, %s, %s'
QSCALE = 128 ** -0.5 * LOG2E
WS_B = 64 << 20
PA0, PB0, PY0, FL0 = 0, 12 << 20, 24 << 20, 32 << 20
KVF, XFL, CCF = 49152, 53248, 55296
WS_ES = WS_B + FL0 + 65536
sDG = 76
WR = 98304
sA, sW, sKVO, sKV, sUS, sDB, sES = 4, 8, 12, 16, 20, 24, 28
sX_, sHL, sI, sH = 34, 35, 36, 37
sJ, sJ1, sD, sN, sThr, sDq, sMsk = 38, 39, 40, 41, 42, 43, 44
sKm0, sKsrc, sVm0, sVsrc, sCtA, sCtB, sXl, sWl, sHook, sRdy, sPub, sLim = 52, 53, 54, 55, 56, 57, 58, 59, 60, 61, 62, 63
P = dict(A_x=64, Lre=66, Lim=68, Bre=70, Bim=72, Cre=74, Cim=76, logdt=78, Dskip=80, B_x=82, ckv=84, wq=86, wuk=88, wuv=90, wo=92, out=94, dbg=96, ws=98)
sK0, sV0 = 44, 45
sUx, sUb, sTT, sCB, sHo, sEo = 46, 47, 48, 49, 50, 51
vL16 = 2; vL0 = 3; vKS = 5; vU = 6; UAD = 8; vKS0 = 12; vFo = 13; vTm = 14; vPf = 15
vT = 16; vW = 24; vX = 25; vAr = 27; vPub = 31; vFl = 30
FR = 32; ACC = 64; Q = 128; XF = 192; UACC = 224
H8 = '0x80808080'
STE = int(os.environ.get('STE', '300')); STN = int(os.environ.get('STN', '250'))

def lam_params(T, vlre, vlim, vldt):
    return ['v_mul_f32 v%d, %s, v%d' % (vldt, f32(LOG2E), vldt), 'v_exp_f32 v%d, v%d' % (vldt, vldt),
            'v_cvt_pk_bf16_f32 v%d, v%d, v%d' % (vldt, vldt, vldt), 'v_lshlrev_b32 v%d, 16, v%d' % (vldt, vldt),
            'v_mul_f32 v%d, v%d, v%d' % (T, vldt, vlre), 'v_mul_f32 v%d, v%d, v%d' % (T + 1, vldt, vlim),
            'v_mul_f32 v%d, %s, v%d' % (T, f32(LOG2E), T), 'v_mul_f32 v%d, %s, v%d' % (T + 1, f32(INV2PI), T + 1)]
def srd_l(s, ptr, size, off=0):
    t = Asm(); mk_srd(t, s, ptr, size, off); return '\n'.join(t.lines)
def cvt(d, x, y): return 'v_cvt_pk_bf16_f32 v%d, v%d, v%d' % (d, x, y)
def pack8(d, s): return [cvt(d + k, s + 2 * k, s + 2 * k + 1) for k in range(4)]
def publish(kind, vt=vTm, vo=vFo):
    if kind == 'kv': adr = 's_add_u32 s33, s%d, 3\ns_and_b32 s33, s33, 7\ns_lshl_b32 s32, s%d, 7\ns_add_u32 s33, s33, s32\ns_add_u32 s33, s33, 0x%x' % (sI, sH, KVF)
    if kind == 'x': adr = 's_lshr_b32 s33, s2, 3\ns_lshl_b32 s32, s%d, 5\ns_add_u32 s33, s33, s32\ns_lshl_b32 s33, s33, 2\ns_add_u32 s33, s33, 0x%x' % (sX_, XFL)
    if kind == 'cc': adr = 's_lshl_b32 s33, s2, 5\ns_add_u32 s33, s33, 0x%x' % (CCF - 160 * 32)
    return adr + '\nv_mov_b32 v%d, %d\nbuffer_store_%s v%d, v%d, %s, s33 offen sc1' % (vt, kind != 'kv', 'byte' if kind == 'kv' else 'dword', vt, vo, sr(sDB, 4))
def rdy_calc(vf):
    return ['v_readlane_b32 s32, v%d, 0' % vf, 'v_readlane_b32 s33, v%d, 1' % vf,
            's_ff1_i32_b64 s32, s[32:33]', 's_lshr_b32 s32, s32, 3', 's_min_u32 s32, s32, 8', 's_lshl_b32 s%d, s32, 17' % sRdy]
def rdy_load(vf, vt):
    return ('s_lshl_b32 s32, s%d, 7\ns_add_u32 s32, s32, 0x%x\nv_lshrrev_b32 v%d, 1, v1\nv_add_lshl_u32 v%d, v%d, s3, 20\nv_lshl_add_u32 v%d, v1, 2, v%d\n' % (sH, KVF, vt, vt, vt, vt, vt) +
            'buffer_load_dword v%d, v%d, %s, s32 offen sc1' % (vf, vt, sr(sDB, 4)))
SPIN = 20000


def front_start(a, dbg):
    a('s_cmp_ge_u32 s2, 256'); a('s_cbranch_scc1 f_end')
    a('s_load_dwordx16 s[80:95], s[0:1], 64')
    a('s_load_dwordx16 s[64:79], s[0:1], 0')
    a('s_load_dwordx4 s[96:99], s[0:1], 128')
    a('v_lshrrev_b32 v2, 6, v0'); a('v_readfirstlane_b32 s3, v2')
    a('v_and_b32 v1, 63, v0')
    if 'nocp' not in XO:
        a('s_getpc_b64 s[32:33]'); a.label('f_pc')
        a('s_and_b32 s34, s2, 0xf8'); a('s_add_u32 s34, s34, s3')
        a('s_cmp_ge_u32 s34, 11'); a('s_cbranch_scc1 f_nocp')
        a('s_lshl_b32 s34, s34, 13'); a('v_lshl_add_u32 v%d, v1, 7, s34' % vPf); a('v_min_u32 v%d, f_last-f_pc, v%d' % (vPf, vPf))
        a('global_load_dword v%d, v%d, s[32:33]' % (vPf, vPf))
        a.label('f_nocp')
    a('s_and_b32 s%d, s2, 7' % sX_); a('s_bfe_u32 s%d, s2, 0x20003' % sHL); a('s_lshr_b32 s%d, s2, 5' % sI)
    a('s_lshl_b32 s32, s%d, 2' % sX_); a('s_add_u32 s%d, s32, s%d' % (sH, sHL))
    a('s_add_u32 s%d, s%d, 3' % (sN, sI)); a('s_and_b32 s%d, s%d, 7' % (sN, sN))
    a('v_lshrrev_b32 v34, 4, v1')
    a('s_and_b32 s33, s3, 3'); a('s_lshl_b32 s33, s33, 3'); a('v_add_u32 v37, s33, v34'); a('v_lshlrev_b32 v37, 13, v37')
    a('s_and_b32 s33, s3, 1'); a('s_lshl_b32 s33, s33, 3'); a('v_lshl_add_u32 v39, v34, 1, s33')
    a('v_and_b32 v38, 15, v1'); a('v_xor_b32 v40, v38, v39')
    a('v_lshl_add_u32 v37, v40, 4, v37'); a('s_lshl_b32 s33, s%d, 8' % sH); a('v_add_u32 v%d, s33, v37' % vW)
    a('s_lshl_b32 s32, s%d, 8' % sN); a('s_lshl_b32 s33, s3, 5'); a('s_add_u32 s32, s32, s33')
    a('v_lshrrev_b32 v32, 3, v1'); a('v_add_u32 v33, s32, v32'); a('v_lshlrev_b32 v33, 10, v33')
    a('v_and_b32 v35, 7, v1'); a('v_xor_b32 v35, v34, v35'); a('v_xor_b32 v36, 4, v35')
    a('v_lshl_add_u32 v%d, v35, 4, v33' % vX); a('v_lshl_add_u32 v%d, v36, 4, v33' % (vX + 1)); a('v_add_u32 v%d, 0x2000, v%d' % (vX + 1, vX + 1))
    a('s_lshl_b32 s%d, s3, 12' % sXl); a('s_lshl_b32 s%d, s3, 11' % sWl)
    a('v_lshlrev_b32 v%d, 20, v0' % vFo)

def front_role(role, dbg, tail):
    a = Asm(); vm = VM(); lg = LG()
    isU = role == 'U'
    tagW = {}; tagA = {}; tagU = {}; tagQW = {}; tagX = {}; tagY = {}; tg = {}
    def wslot(s): return ((s + 2) % 4) * 16384
    def dmaW(s, i):
        def f(a):
            a('s_add_u32 m0, s%d, 0x%x' % (sWl, WR + wslot(s) + i * 1024))
            a('s_mov_b32 s32, 0x%x' % (s * 262144 + i * 32768))
            a('buffer_load_dwordx4 v%d, %s, s32 offen lds' % (vW, sr(sW, 4))); tagW[s] = vm.issue()
        return f
    def dmaA(D, i):
        def f(a):
            a('s_add_u32 m0, s%d, 0x%x' % (sXl, (D % 3) * 32768 + i * 1024))
            a('s_movk_i32 s33, 0x%x' % (D * 128 + (i >> 1) * 16384))
            a('buffer_load_dwordx4 v%d, %s, s33 offen lds' % (vX + (i & 1), sr(sA, 4))); tagA[D] = vm.issue()
        return f
    USLOT = [131072, 0, 98304, 32768, 65536]
    def dmaU(n, i):
        def f(a):
            a('s_add_u32 m0, s%d, 0x%x' % (sXl, USLOT[n % 5] + i * 1024))
            if 'norot' in XO: a('s_movk_i32 s33, 0x%x' % (n * 128 + (i >> 1) * 5120))
            else: a('s_add_u32 s33, s%d, %d' % (sJ, (i >> 1) * 5120))
            a('buffer_load_dwordx4 v%d, %s, s33 offen lds' % (vU + (i & 1), sr(sUS, 4))); tagU[n] = vm.issue()
            if i == 3 and 'norot' not in XO: a('s_add_u32 s%d, s%d, 128' % (sJ, sJ)); a('s_cmp_eq_u32 s%d, 1280' % sJ); a('s_cselect_b32 s%d, 0, s%d' % (sJ, sJ))
        return f
    def dmaQW(s, i):
        def f(a):
            a('s_add_u32 m0, s%d, 0x%x' % (sWl, WR + wslot(s) + i * 1024))
            a('s_mov_b32 s32, 0x%x' % (s * 524288 + i * 32768))
            a('buffer_load_dwordx4 v%d, %s, s32 offen lds' % (vW, sr(sW, 4))); tagQW[s] = vm.issue()
        return f
    def xreg(s): return (2, 0, 1)[s % 3]
    def dmaX(s, i):
        def f(a):
            if s < 10:
                a('s_add_u32 m0, s%d, 0x%x' % (sXl, xreg(s) * 32768 + i * 1024))
                a('s_movk_i32 s33, 0x%x' % (s * 128 + (i >> 1) * 20480))
                a('buffer_load_dwordx4 v%d, %s, s33 offen lds' % (vX + (i & 1), sr(sA, 4)))
            else:
                a('s_add_u32 m0, s%d, 0x%x' % (sXl, xreg(s) * 32768))
                a('s_mov_b32 s33, 0x%x' % (0, 0x10000, 0x2000)[s - 10])
                a('buffer_load_dwordx4 v%d, %s, s33 offen offset:%d lds' % (vKS0, sr(sKV, 4), i * 1024))
            tagX[s] = vm.issue()
        return f
    YR = [0, 3, 1, 2, 4]; sY = sUS; sYo, sYs = sCB, sHo; vY = 6
    def dmaY(n, i):
        def f(a):
            if n == 12 and i == 0: a('s_cmp_eq_u32 s%d, 7' % sI); a('s_cselect_b32 s%d, 0, s%d' % (sY + 2, sY + 2))
            a('s_add_u32 m0, s%d, 0x%x' % (sXl, YR[n % 5] * 32768))
            a('buffer_load_dwordx4 v%d, %s, 0 offen offset:%d lds' % (vY, sr(sY, 4), i * 1024)); tagY[n] = vm.issue()
            if i == 3: a('s_add_u32 s%d, s%d, s%d' % (sY, sY, sYs)); a('s_addc_u32 s%d, s%d, 0' % (sY + 1, sY + 1))
        return f
    def vmi(txt, key=None):
        def f(a):
            a(txt); t = vm.issue()
            if key is not None: tg[key] = t
        return f
    def vmw(key): return lambda a: vm.wait_for(a, tg[key])
    def kvsrd():
        mk_srd(a, sA, P['ckv'], 2048 * 1024)
        a('s_cmp_lt_u32 s3, 4'); a('s_cselect_b32 s%d, s%d, s%d' % (sW, P['wuk'], P['wuv'])); a('s_cselect_b32 s%d, s%d, s%d' % (sW + 1, P['wuk'] + 1, P['wuv'] + 1))
        a('s_and_b32 s%d, s%d, 0xffff' % (sW + 1, sW + 1)); a('s_mov_b32 s%d, 0x%x' % (sW + 2, 512 * 8192)); a('s_mov_b32 s%d, 0x00020000' % (sW + 3))
    if isU:
        a('s_lshr_b32 s32, s2, 3'); a('s_cmp_ge_u32 s32, 10'); a('s_cselect_b32 s33, 1, 0'); a('s_lshl_b32 s%d, s%d, 1' % (sTT, sX_)); a('s_add_u32 s%d, s%d, s33' % (sTT, sTT))
        a('s_mul_i32 s33, s33, 10'); a('s_sub_u32 s%d, s32, s33' % sCB)
        a('s_lshr_b32 s33, s33, 1'); a('s_add_u32 s33, s33, s%d' % sCB)
        a('s_add_u32 s33, s33, s%d' % sX_)
        for k in range(2): a('s_sub_u32 s32, s33, 10'); a('s_cselect_b32 s33, s33, s32')
        a('s_lshl_b32 s%d, s33, 7' % sJ)
        a('s_lshl_b32 s32, s%d, 7\ns_lshr_b32 s33, s3, 1\ns_lshl_b32 s33, s33, 6\ns_add_u32 s%d, s32, s33' % (sTT, sUx))
        a('s_lshl_b32 s33, s%d, 6\ns_cmp_lt_u32 s3, 4\ns_cselect_b32 s%d, s%d, s33' % (sCB, sUx, sUx))
        a('s_and_b32 s33, s3, 1\ns_lshl_b32 s33, s33, 3\ns_add_u32 s%d, s%d, s33' % (sUx, sUx))
        a('v_lshrrev_b32 v41, 5, v1\nv_bfe_u32 v42, v1, 3, 2\nv_lshl_add_u32 v41, v41, 4, v42\nv_add_u32 v41, s%d, v41\nv_mul_u32_u24 v41, 1280, v41' % sUx)
        a('v_lshl_add_u32 v%d, v35, 4, v41\nv_lshl_add_u32 v%d, v36, 4, v41\nv_add_u32 v%d, 0x%x, v%d' % (vU, vU + 1, vU + 1, 32 * 1280, vU + 1))
        a('s_waitcnt lgkmcnt(0)')
        if dbg: ts(a, 0); tsr(a, 60)
        a('s_cmp_lt_u32 s3, 6\ns_cselect_b32 s32, s%d, s%d\ns_cselect_b32 s33, s%d, s%d\n' % (P['Bre'], P['Bim'], P['Bre'] + 1, P['Bim'] + 1) +
          's_cmp_lt_u32 s3, 4\ns_cselect_b32 s%d, s%d, s32\ns_cselect_b32 s33, s%d, s33\n' % (sUS, P['A_x'], P['A_x'] + 1) +
          's_mov_b32 s32, 0x%x\ns_cselect_b32 s%d, 0x%x, s32\ns_and_b32 s%d, s33, 0xffff\ns_mov_b32 s%d, 0x00020000' % (640 * 1280, sUS + 2, 2048 * 1280, sUS + 1, sUS + 3))
        for n in range(5):
            for i in range(4): dmaU(n, i)(a)
        a('s_lshr_b32 s%d, s3, 2\ns_lshl_b32 s%d, s%d, 13' % (sUx, sUx, sUx))
        a('s_and_b32 s%d, s3, 3\ns_lshl_b32 s%d, s%d, 11\ns_add_u32 s%d, s%d, 0x4000' % (sUb, sUb, sUb, sUb, sUb))
        kvsrd()
    else:
        a('s_waitcnt lgkmcnt(0)')
        if dbg: ts(a, 0); tsr(a, 60)
        kvsrd()
        for i in range(2): dmaW(0, i)(a)
        for i in range(4): dmaA(0, i)(a)
        for s in (1, 2):
            for i in range(2): dmaW(s, i)(a)
        for i in range(4): dmaA(1, i)(a)
        for i in range(2): dmaW(3, i)(a)
        for i in range(4): dmaA(2, i)(a)
    pfc = vmi('s_lshl_b32 s32, s%d, 3\ns_add_u32 s32, s32, s3\ns_lshl_b32 s32, s32, 13\ns_lshl_b32 s33, s%d, 18\ns_add_u32 s32, s32, s33\n' % (sHL, sN) +
              'v_lshlrev_b32 v%d, 7, v1\nbuffer_load_dword v%d, v%d, %s, s32 offen' % (vPf, vPf, vPf, sr(sA, 4)))
    if not isU:
        pfc(a)
        a('s_sub_u32 s32, s%d, 4' % sI); a('s_lshl_b32 s32, s32, 2'); a('s_and_b32 s33, s3, 3'); a('s_add_u32 s32, s32, s33'); a('s_lshl_b32 s32, s32, 18'); a('s_lshl_b32 s33, s%d, 8' % sH); a('s_add_u32 s32, s32, s33')
        a('v_lshrrev_b32 v42, 1, v1'); a('v_lshlrev_b32 v42, 13, v42'); a('v_and_b32 v43, 1, v1'); a('v_lshl_add_u32 v42, v43, 7, v42')
        vmi('buffer_load_dword v%d, v42, %s, s32 offen' % (vPf, sr(sW, 4)))(a)
    if 'notlb' not in XO:
        a('s_sub_u32 s32, s3, 5'); a('s_cmp_gt_u32 s32, 1'); a('s_cbranch_scc1 f%s_nt' % role)
        a('s_lshr_b32 s33, s2, 3'); a('v_and_b32 v42, 1, v1'); a('v_lshl_add_u32 v42, s33, 1, v42'); a('s_min_u32 s33, s33, 4')
        a('s_cmp_eq_u32 s32, 0'); a('s_cselect_b32 s100, s%d, s%d' % (P['ws'], P['out'])); a('s_cselect_b32 s101, s%d, s%d' % (P['ws'] + 1, P['out'] + 1))
        a('s_cbranch_scc1 f%s_nt1' % role); a('v_mov_b32 v42, s33'); a.label('f%s_nt1' % role)
        a('v_lshlrev_b32 v42, 21, v42'); a('global_load_dword v%d, v42, s[100:101]' % vPf)
        a.label('f%s_nt' % role)
    a('v_lshlrev_b32 v%d, 4, v1' % vL16)
    a('v_bfe_u32 v32, v1, 2, 2'); a('v_lshl_add_u32 v33, v34, 3, v32')
    a('v_and_b32 v35, 3, v1'); a('v_lshlrev_b32 v35, 3, v35'); a('v_add_u32 v35, 0x%x, v35' % WR)
    a('v_lshl_add_u32 v36, v33, 8, v35')
    a('v_and_b32 v37, 1, v34'); a('v_lshl_add_u32 v38, v37, 2, v32')
    for dt in range(4):
        a('v_xor_b32 v39, %d, v38' % dt); a('v_lshl_add_u32 v%d, v39, 5, v36' % (vT + dt))
    a('s_lshr_b32 s%d, s3, 2' % sD); a('s_lshl_b32 s%d, s%d, 7' % (sD, sD))
    for dt in range(4): a('v_xor_b32 v%d, s%d, v%d' % (vT + dt, sD, vT + dt))
    a('v_and_b32 v39, 15, v1'); a('v_lshrrev_b32 v40, 1, v39'); a('v_xor_b32 v40, v40, v34'); a('v_lshlrev_b32 v39, 7, v39')
    a('v_lshl_add_u32 v%d, v40, 4, v39' % vL0); a('v_xor_b32 v%d, 64, v%d' % (vL0 + 1, vL0))
    a('s_and_b32 s32, s3, 3'); a('s_lshl_b32 s32, s32, 13'); a('s_add_u32 s33, s32, 0x10000')
    for k in range(4): a('v_add_u32 v%d, s%d, v%d' % (vAr + k, 32 + (k >> 1), vL0 + (k & 1)))
    a('s_lshl_b32 s32, s%d, 3' % sH); a('s_add_u32 s32, s32, s%d' % sN); a('s_lshl_b32 s32, s32, 2'); a('s_and_b32 s33, s3, 3'); a('s_add_u32 s32, s32, s33'); a('s_lshl_b32 s32, s32, 15')
    a('s_add_u32 s%d, s%d, s32' % (sKVO, P['ws'])); a('s_addc_u32 s%d, s%d, 0' % (sKVO + 1, P['ws'] + 1)); a('s_and_b32 s%d, s%d, 0xffff' % (sKVO + 1, sKVO + 1))
    a('s_mov_b32 s%d, 0x8000' % (sKVO + 2)); a('s_mov_b32 s%d, 0x00020000' % (sKVO + 3))
    a('s_lshl_b32 s%d, s%d, 4' % (sK0, sD)); a('s_lshl_b32 s%d, s%d, 5' % (sV0, sD)); a('s_add_u32 s%d, s%d, 0x2000' % (sV0, sV0))
    mk_srd(a, sDB, P['ws'], 224 << 10, WS_B + FL0)
    if isU:
        a('s_lshl_b32 s33, s%d, 2' % sCB); a('s_and_b32 s%d, s3, 3' % sHo); a('s_add_u32 s%d, s%d, s33' % (sHo, sHo))
        a('s_lshl_b32 s33, s%d, 12' % sHo); a('s_add_u32 s33, s33, 0x%x' % WS_ES)
        a('s_add_u32 s%d, s%d, s33' % (sES, P['ws'])); a('s_addc_u32 s%d, s%d, 0' % (sES + 1, P['ws'] + 1)); a('s_and_b32 s%d, s%d, 0xffff' % (sES + 1, sES + 1))
        a('s_movk_i32 s%d, 0x1000' % (sES + 2)); a('s_mov_b32 s%d, 0x00020000' % (sES + 3))
        a('s_lshl_b32 s32, s%d, 1' % sTT); a('s_lshr_b32 s33, s3, 2'); a('s_add_u32 s32, s32, s33'); a('s_sub_u32 s32, 31, s32'); a('s_lshl_b32 s%d, s32, 7' % sEo)
    else:
        for k in range(4): a('v_mov_b32 v%d, -1' % (44 + k))
        a('s_sub_u32 s32, s2, 242'); a('s_cselect_b32 s32, 64, s32'); a('s_lshl_b32 s32, s32, 14'); a('s_add_u32 s32, s32, s%d' % sWl)
        for k in range(2): vmi('buffer_store_dwordx4 v[44:47], v%d, %s, s32 offen offset:%d sc1' % (vL16, sr(sDB, 4), k * 1024), 'sent')(a)

    S = Sched()
    tR = {}
    def rd(key, txt):
        def f(a):
            a(txt); tR[key] = lg.issue()
        return f
    def lw(key): return lambda a: lg.wait_for(a, tR[key])
    def mkbar(tags, stamp=None):
        def f(a):
            a('s_waitcnt lgkmcnt(0)'); lg.done = lg.n
            if tags: vm.wait_for(a, max(t() for t in tags))
            a('s_barrier'); a('s_setprio 3')
            if dbg > 1 and stamp is not None: ts(a, stamp)
        return f
    UB = [[32, 36, 40, 44] + list(range(128, 160, 4)), [48, 52, 56, 60] + list(range(160, 192, 4))]
    def uf(n, ks, q): return UB[n & 1][ks * 6 + q]
    def ua(c, tt): return UACC + (c * 4 + tt) * 4
    def rdU(n, ks, q):
        return rd(('U', n, ks, q), 'ds_read_b128 %s, v%d offset:%d' % (vr(uf(n, ks, q), 4), UAD + ks + (2 if q >= 4 else 0), q * 2048 if q < 4 else (q - 4) * 8192))
    def uaddr(n):
        return ['s_add_u32 s33, s%d, 0x%x\nv_add_u32 v%d, s33, v%d\nv_add_u32 v%d, s33, v%d' % (sb, USLOT[n % 5], UAD + o, vL0, UAD + o + 1, vL0 + 1) for sb, o in ((sUx, 0), (sUb, 2))]
    if isU:
        for n in range(10):
            for ks in range(2):
                for c in range(2):
                    for tt in range(4):
                        d = vr(ua(c, tt), 4)
                        S.mfma(MF % (d, vr(uf(n, ks, tt), 4), vr(uf(n, ks, 4 + c), 4), '0' if (n == 0 and ks == 0) else d))
    BK = 160 if isU else 0
    def tK(kt, d): return ACC + ((d >> 1) * 4 + kt) * 8 + (d & 1) * 4
    def tV(kt, d): return 128 + (d * 2 + (kt >> 1)) * 8 + (kt & 1) * 4
    def af(kt): return XF + kt * 4
    def rdW(s, g, d, hf): return rd(('W', s, g, d), 'ds_read_b64_tr_b16 %s, v%d offset:%d' % (vr(FR + g * 16 + d * 4 + hf * 2, 2), vT + d, wslot(s) + g * 8192 + hf * 1024))
    def rdA(s, kt):
        sl = (s >> 1) % 3
        return rd(('A', s, kt), 'ds_read_b128 %s, v%d offset:%d' % (vr(af(kt), 4), vAr + (s & 1) + (2 if sl == 2 else 0), (sl & 1) * 32768 + kt * 2048))
    for s in range(16):
        for g in range(2):
            for kt in range(4):
                for d in range(4):
                    w = vr(FR + g * 16 + d * 4, 4); x = vr(af(kt), 4)
                    t = vr(tK(kt, d) if g == 0 else tV(kt, d), 4)
                    i = S.mfma(MF % ((t, w, x, '0' if s == 0 else t) if g == 0 else (t, x, w, '0' if s == 0 else t)))
                    if kt == 0: S.add_pre(i, lw(('W', s, g, d)))
                    if g == 0 and d == 0: S.add_pre(i, lw(('A', s, kt)))
    kvfirst = [rdA(0, 0)] + [rdW(0, 0, d, hf) for d in range(4) for hf in range(2)] + [rdA(0, kt) for kt in (1, 2, 3)]
    BQ = BK + 512
    def tile(qt, dt): return ACC + (dt * 2 + qt) * 4
    def qf(s, qt): return Q + (s * 2 + qt) * 4
    def xf(s, ks, qt): return XF + ((((s + 1) & 1) * 2 + ks) * 2 + qt) * 4
    def rdQW(s, g, q, hf): return rd(('QW', s, g, q), 'ds_read_b64_tr_b16 %s, v%d offset:%d' % (vr(FR + (g & 1) * 16 + q * 4 + hf * 2, 2), vT + 2 * g + (q >> 1), wslot(s) + (q & 1) * 8192 + hf * 1024))
    def rdX(s, ks, qt): return rd(('X', s, ks, qt), 'ds_read_b128 %s, v%d offset:%d' % (vr(xf(s, ks, qt), 4), vAr + ks + (2 if xreg(s) == 2 else 0), (xreg(s) & 1) * 32768 + qt * 2048))
    for s in range(10):
        for g in range(4):
            for q in range(4):
                for qt in range(2):
                    d = vr(tile(qt, 2 * g + (q >> 1)), 4)
                    i = S.mfma(MF % (d, vr(FR + (g & 1) * 16 + q * 4, 4), vr(xf(s, q & 1, qt), 4), '0' if (s == 0 and (q & 1) == 0) else d))
                    if qt == 0: S.add_pre(i, lw(('QW', s, g, q)))
                    if g == 0 and q < 2: S.add_pre(i, lw(('X', s, q, qt)))
    def qfirst(s):
        L = [rdQW(s, 0, q, hf) for q in range(4) for hf in range(2)]
        return L[:2] + [rdX(s, 0, 0), rdX(s, 0, 1)] + L[2:4] + [rdX(s, 1, 0), rdX(s, 1, 1)] + L[4:]
    BY = BQ + 320
    BFy = [240, 244, 248, 252, 20]; YA = [7, 8, 9]; YB = [10, 11, 24]
    def AF(n): return 32 + 16 * (n & 1)
    def YP(p): return 160 + 8 * p
    def yacc(c, q): return YP(2 * c + (q >> 1)) + (q & 1) * 4
    def rdYA(n, q, hf):
        r = YR[n % 5]
        return rd(('YA', n, q), 'ds_read_b64_tr_b16 %s, v%d offset:%d' % (vr(AF(n) + 4 * q + 2 * hf, 2), YA[r >> 1], (r & 1) * 32768 + hf * 2048 + q * 256))
    def rdYB(n, c):
        r = YR[n % 5]
        return rd(('YB', n, c), 'ds_read_b128 %s, v%d offset:%d' % (vr(BFy[c], 4), YB[r >> 1], (r & 1) * 32768 + c * 1024))
    if not isU:
        for n in range(14):
            for c in range(5):
                for q in range(4):
                    d = vr(yacc(c, q), 4)
                    i = S.mfma(MF % (d, vr(AF(n) + 4 * q, 4), vr(BFy[c], 4), '0' if n == 0 else d))
                    if c == 0: S.add_pre(i, lw(('YA', n, q)))
                    if q == 0: S.add_pre(i, lw(('YB', n, c)))
    BE = BY + (0 if isU else 280)
    tS = sKV
    def pfb(w, base, lim, idx, wq=False):
        vP = vKS0
        v = ['v_lshrrev_b32 v%d, 3, v1\nv_lshlrev_b32 v%d, 13, v%d' % (vP, vP, vP), 'v_and_b32 v%d, 7, v1\nv_lshl_add_u32 v%d, v%d, 7, v%d' % (vKS, vP, vKS, vP)] if wq else ['v_lshlrev_b32 v%d, 7, v1' % vP]
        return [base + '\ns_and_b32 s%d, s%d, 0xffff\ns_mov_b32 s%d, 0x00020000' % (tS + 1, tS + 1, tS + 3), lim + '\ns_cmp_eq_u32 s3, %d\ns_cselect_b32 s%d, s33, 0' % (w, tS + 2)] + v + \
               [vmi(idx + '\nv_add_u32 v%d, s32, v%d\nbuffer_load_dword v%d, v%d, %s, 0 offen' % (vP, vP, vPf, vP, sr(tS, 4)))]
    def pb(k): return 's_mov_b32 s%d, s%d\ns_mov_b32 s%d, s%d' % (tS, P[k], tS + 1, P[k] + 1)
    def xpart(sz, o): return 's_lshr_b32 s32, s2, 3\ns_add_u32 s32, s32, %d\ns_lshl_b32 s32, s32, 13\ns_mul_i32 s33, s%d, %d\ns_add_u32 s32, s32, s33' % (o, sX_, sz)
    def xlim(sz): return 's_add_u32 s33, s%d, 1\ns_mul_i32 s33, s33, %d' % (sX_, sz)
    def cl(v): return 's_mov_b32 s33, 0x%x' % v
    PF1 = [pfb(1, pb('B_x'), cl(2048 * 1280), 's_lshl_b32 s32, s2, 13')]
    for k in range(3):
        PF1.append(pfb(3 + k, pb('wq'), cl(640 * 8192), 's_lshr_b32 s32, s2, 3\ns_add_u32 s32, s32, %d\ns_lshl_b32 s32, s32, 16\ns_lshl_b32 s33, s%d, 10\ns_add_u32 s32, s32, s33' % (32 * k, sX_), True))
    PF1.append(pfb(7, pb('B_x'), cl(2048 * 1280), 's_lshl_b32 s32, s2, 13\ns_add_u32 s32, s32, 0x200000'))
    PF = {10 + k: pfb(2 + k, pb('wo'), xlim(655360), xpart(655360, 32 * k)) for k in range(3)}
    if not isU:
        for k in range(5): PF[2 + k] = PF1[k]
    BP = 12
    SSMP = 13 if 'ssm13' in XO else 14
    for s in range(16):
        b = BK + 32 * s
        S.spread([rdW(s, 1, d, hf) for d in range(4) for hf in range(2)], b, b + 8)
        if s < 15: tags = [lambda s=s: tagW[s + 1], lambda s=s: tagA[(s + 1) >> 1]]
        else: tags = [lambda: tagQW[0], lambda: tagX[0]]
        if s == SSMP: tags.append(lambda: tg['ssm'])
        if s == 2 and not isU: tags.append(lambda: tg['sent'])
        S.add_post(b + BP, mkbar(tags, 2 + s))
        for q, p in enumerate((20, 28, 36)): S.add_post(b + p, 's_setprio %d' % (2 - q))
        if s == SSMP: S.add_post(b + BP, vmi(publish('x' if isU else 'cc')))
        if s == 2 and not isU: S.add_post(b + BP, vmi('s_sub_u32 s33, s2, 242\ns_cselect_b32 s33, 64, s33\ns_lshl_b32 s33, s33, 4\nv_mov_b32 v%d, 1\nbuffer_store_dword v%d, v%d, %s, s33 offen sc1' % (vTm, vTm, vFo, sr(sDG, 4))))
        if s < 15:
            for k, p in enumerate((13, 14, 15, 16, 17, 18, 20, 21)): S.add_post(b + p, rdW(s + 1, 0, k >> 1, k & 1))
            for kt in range(4): S.add_post(b + 19 + 4 * kt, rdA(s + 1, kt))
        D = []
        if s + 4 < 16: D += [dmaW(s + 4, 0), dmaW(s + 4, 1)]
        if 1 <= s <= 10:
            Dn = ((s - 1) >> 1) + 3; o = 2 * ((s - 1) & 1)
            D += [dmaA(Dn, o), dmaA(Dn, o + 1)]
        if s >= 12: D += [dmaQW(s - 12, 0), dmaQW(s - 12, 1)]
        if s >= 11:
            n = (s - 11) >> 1; o = 2 * ((s - 11) & 1)
            D += [dmaX(n, o), dmaX(n, o + 1)]
        for k, dd in enumerate(D): S.add_post(b + BP + 2 + 5 * k, dd)
        if s in PF and 'nopf' not in XO:
            S.spread(PF[s][:-1], b + 20, b + 29)
            S.add_post(b + 31, PF[s][-1])
    xset = ['s_sub_u32 s32, 15, s%d\ns_and_b32 s33, s3, 3\ns_lshl_b32 s%d, s32, 2\ns_add_u32 s%d, s%d, s33' % (sI, sDq, sDq, sDq),
            's_lshl_b32 s%d, s%d, 2\ns_and_b32 s33, s3, 3\ns_add_u32 s%d, s%d, s33' % (sN, sI, sN, sN),
            's_lshl_b32 s%d, s%d, 18\ns_lshl_b32 s%d, s%d, 18' % (sCtA, sN, sCtB, sDq),
            's_cmp_ge_u32 s3, 4\ns_cselect_b32 s%d, s%d, s%d' % (sJ1, sN, sDq),
            's_lshl_b32 s32, s%d, 5\nv_lshrrev_b32 v%d, 3, v1\nv_add_u32 v%d, s32, v%d' % (sJ1, vTm, vTm, vTm), 'v_mul_u32_u24 v%d, 1280, v%d' % (vTm, vTm),
            'v_and_b32 v%d, 0x70, v%d' % (vX, vX), 'v_and_b32 v%d, 0x70, v%d' % (vX + 1, vX + 1),
            'v_add_u32 v%d, v%d, v%d' % (vX, vX, vTm), 'v_add3_u32 v%d, v%d, v%d, s%d' % (vX + 1, vX + 1, vTm, sThr),
            srd_l(sA, P['B_x'], 2048 * 1280)]
    S.add_post(BK + 32 * 10 + 30, 's_movk_i32 s%d, 10240' % sThr)
    S.spread(xset, BK + 32 * 10 + 31, BK + 32 * 11 + 12)
    wset = ['s_lshr_b32 s32, s3, 2\ns_lshl_b32 s32, s32, 18\nv_add_u32 v%d, s32, v%d' % (vW, vW), srd_l(sW, P['wq'], 640 * 8192)]
    S.spread(wset, BK + 32 * 12 + 2, BK + 32 * 12 + 8)
    b = BK + 32 * 15
    S.spread(['s_add_u32 s33, s%d, 0x10000\nv_add_u32 v%d, s33, v%d\nv_add_u32 v%d, s33, v%d' % (sXl, vAr + 2, vL0, vAr + 3, vL0 + 1),
              'v_add_u32 v%d, s%d, v%d' % (vAr, sXl, vL0), 'v_add_u32 v%d, s%d, v%d' % (vAr + 1, sXl, vL0 + 1)], b + 1, b + 6)
    S.spread(['v_xor_b32 v%d, s%d, v%d' % (vT + dt, sD, vT + dt) for dt in range(4)], b + 8, b + 12)
    S.spread(['v_xor_b32 v%d, 0x80, v%d' % (vT + 4 + dt, vT + dt) for dt in range(4)], b + 13, b + 17)
    S.add_post(b + 12, 's_mov_b32 s%d, s%d' % (sD, sJ1))
    KP = 224
    S.spread(sum([pack8(KP + 4 * f, ACC + 8 * f) for f in (0, 4, 1, 5, 2, 6, 3, 7)], []), b + 7, b + 27)
    S.spread(sum([pack8(128 + 8 * f, 128 + 8 * f) for f in (0, 2, 4, 6, 1, 3, 5, 7)], []), b + 27, b + 47)
    def stK(f):
        kt, s_ = f & 3, f >> 2
        return vmi('s_add_u32 s33, s%d, 0x%x\nbuffer_store_dwordx4 %s, v%d, %s, s33 offen offset:%d sc1' % (sK0, (kt >> 1) * 16384 + (kt & 1) * 4096, vr(KP + 4 * f, 4), vL16, sr(sKVO, 4), s_ * 1024), 'kv')
    def stV(f):
        d, kb = f >> 1, f & 1
        return vmi('s_add_u32 s33, s%d, 0x%x\nbuffer_store_dwordx4 %s, v%d, %s, s33 offen offset:%d sc1' % (sV0, kb * 16384, vr(128 + 8 * f, 4), vL16, sr(sKVO, 4), d * 1024), 'kv')
    ST = [stK(f) for f in range(2)] + [stV(f) for f in range(8)] + [stK(f) for f in range(2, 8)]
    S.spread(qfirst(0), b + 16, b + 31)
    S.spread([dmaX(2, 2), dmaX(2, 3)], BQ + 1, BQ + 7)
    S.spread(ST, BQ + 7, BQ + (STE if isU else STN))
    def cis(m_mag, m_ang, re, im, tmp):
        return ['v_fract_f32 v%d, v%d' % (im, m_ang), 'v_exp_f32 v%d, v%d' % (tmp, m_mag), 'v_cos_f32 v%d, v%d' % (re, im), 'v_sin_f32 v%d, v%d' % (im, im),
                'v_mul_f32 v%d, v%d, v%d' % (re, re, tmp), 'v_mul_f32 v%d, v%d, v%d' % (im, im, tmp)]
    def allchk(name, adr, srd, vd, va, p0, p1):
        ld = 'buffer_load_dword v%d, v%d, %s, 0 offen sc1' % (vd, va, sr(srd, 4))
        S.spread(adr + ['s_lshl_b32 s32, s3, 20\nv_add_u32 v%d, s32, v%d' % (va, va), vmi(ld, name)], p0 - len(adr) - 1, p0 + 1)
        chk = 'v_cmp_ne_u32 vcc, 1, v%d' % vd
        S.spread([vmw(name), chk + '\ns_cmp_lg_u32 s3, 0\ns_cbranch_scc1 %s_ret\ns_cbranch_vccnz %s\n%s_ret:' % (name, name, name)], p1, p1 + 2)
        t = tail
        t.label(name); t('s_mov_b32 s32, %d' % SPIN); t.label(name + '_l'); t('s_sleep 8')
        t(ld); t('s_waitcnt vmcnt(0)'); t(chk)
        t('s_cbranch_vccz %s_ret' % name); t('s_sub_u32 s32, s32, 1'); t('s_cmp_lg_u32 s32, 0'); t('s_cbranch_scc1 %s_l' % name); t('s_branch %s_ret' % name)
    S.add_post(50, srd_l(sDG, P['dbg'], 256))
    allchk('f%s_in' % role, ['v_min_u32 v22, 13, v1', 'v_lshlrev_b32 v22, 4, v22'], sDG, 23, 22, *((100, 140) if isU else (260, 326)))
    if isU:
        for n in range(10):
            u = 16 * n
            tags = [lambda n=n: tagU[n + 1]] if n < 9 else [lambda: tagW[0], lambda: tagA[0]]
            S.add_pre(u, mkbar(tags, 20 + n))
            for q, p in enumerate((4, 8, 12)): S.add_post(u + p, 's_setprio %d' % (2 - q))
            if n < 9: S.spread(uaddr(n + 1) + [rdU(n + 1, ks, q) for ks in range(2) for q in range(6)], u, u + 12)
            else: S.spread(kvfirst, u, u + 12)
            if n < 5: D = [dmaU(n + 5, i) for i in range(4)]
            elif n in (5, 7): D = [dmaW(n - 5 + (i >> 1), i & 1) for i in range(4)]
            else: D = [dmaA((0, 0, 1, 2)[n - 6], i) for i in range(4)]
            S.spread(D, u + 1, u + 13)
            if 3 <= n <= 7 and 'nopf' not in XO:
                S.spread(PF1[n - 3][:-1], u + 6, u + 14); S.add_post(u + 15, PF1[n - 3][-1])
            if n == 2: S.add_post(u + 15, pfc)
        LR, L16, L32, PA, PB, EL, L256, EO, LO, G64, X_ = 208, 210, 212, 214, 216, 216, 6, 8, 10, 20, 22
        A_ = 216; PR = 218; TR = vPub
        SC = ['v_and_b32 v%d, 3, v1\nv_bfe_u32 v%d, v1, 2, 2' % (PR, TR), 'v_lshl_add_u32 v%d, v%d, 4, v%d' % (TR, TR, PR),
              's_lshl_b32 s32, s%d, 6\ns_and_b32 s33, s3, 3\ns_lshl_b32 s33, s33, 2\ns_add_u32 s32, s32, s33\nv_add_lshl_u32 v%d, v%d, s32, 1' % (sCB, TR, TR)]
        SC += [vmi('global_load_ushort v%d, v%d, %s' % (PR + p, TR, sr(P[k], 2)), 'par') for p, k in enumerate(('Lre', 'Lim', 'logdt'))]
        S.spread(SC, 2, 14)
        SC = [vmw('par')] + ['v_lshlrev_b32 v%d, 16, v%d' % (PR + p, PR + p) for p in range(3)] + lam_params(A_, PR, PR + 1, PR + 2)
        SC += cis(A_, A_ + 1, LR, LR + 1, TR)
        for W, m in ((L16, 16.0), (L32, 32.0), (L256, 256.0)):
            SC += ['v_mul_f32 v%d, %s, v%d' % (W + 1, f32(m), A_ + 1), 'v_mul_f32 v%d, %s, v%d' % (TR, f32(m), A_)] + cis(TR, W + 1, W, W + 1, TR)
        SC += ['v_lshrrev_b32 v%d, 4, v1' % TR, 'v_lshlrev_b32 v%d, 6, v%d' % (TR, TR), 'v_cvt_f32_u32 v%d, v%d' % (TR, TR),
               'v_mul_f32 v%d, v%d, v%d' % (G64 + 1, TR, A_ + 1), 'v_mul_f32 v%d, v%d, v%d' % (TR, TR, A_)] + cis(TR, G64 + 1, G64, G64 + 1, TR)
        S.spread(SC, 82, 156)
        def cfma(d, m, x, y):
            return ['v_fma_f32 v%d, v%d, v%d, v%d' % (d, m, x, y), 'v_fma_f32 v%d, v%d, v%d, v%d' % (d + 1, m, x + 1, y + 1),
                    'v_fma_f32 v%d, -v%d, v%d, v%d' % (d, m + 1, x + 1, d), 'v_fmac_f32 v%d, v%d, v%d' % (d + 1, m + 1, x)]
        def ur(k): return UACC + k
        def ui(k): return UACC + 16 + k
        SC = []
        for k in range(1, 16):
            d = PA if k & 1 else PB
            er, ei = (ur(0), ui(0)) if k == 1 else ((PB, PB + 1) if k & 1 else (PA, PA + 1))
            SC += ['v_fma_f32 v%d, v%d, v%d, v%d' % (d, LR, er, ur(k)), 'v_fma_f32 v%d, v%d, v%d, v%d' % (d + 1, LR, ei, ui(k)),
                   'v_fma_f32 v%d, -v%d, v%d, v%d' % (d, LR + 1, ei, d), 'v_fmac_f32 v%d, v%d, v%d' % (d + 1, LR + 1, er)]
        SC += ['v_mov_b32 v%d, v%d' % (EO + c, PA + c) for c in range(2)] + ['v_permlane16_swap_b32 v%d, v%d' % (EO + c, PA + c) for c in range(2)]
        SC += cfma(PA, L16, EO, PA)
        SC += ['v_mov_b32 v%d, v%d' % (LO + c, PA + c) for c in range(2)] + ['v_permlane32_swap_b32 v%d, v%d' % (LO + c, PA + c) for c in range(2)]
        SC += cfma(PA, L32, LO, PA)
        SC += ['v_min_u32 v%d, -2, v%d' % (PA + c, PA + c) for c in range(2)]
        SC += ['v_lshrrev_b32 v%d, 4, v1\nv_lshlrev_b32 v%d, 3, v1' % (TR, PB), 'v_lshl_add_u32 v%d, v%d, 12, v%d' % (PB, TR, PB)]
        SC += [vmi('buffer_store_dwordx2 %s, v%d, %s, s%d offen sc1' % (vr(PA, 2), PB, sr(sES, 4), sEo))]
        S.spread(SC, BK + 4, BK + 48)
        vE = X_
        emax = ['v_max3_u32 v%d, v%d, v%d, v%d' % (TR, EL, EL + 1, EL + 2)] + ['v_max3_u32 v%d, v%d, v%d, v%d' % (TR, TR, EL + k, EL + k + 1) for k in (3, 5)] + \
               ['v_max_u32 v%d, v%d, v%d' % (TR, TR, EL + 7), 'v_cmp_eq_u32 vcc, -1, v%d' % TR]
        t = tail
        def round_(r):
            eld = ['buffer_load_dwordx2 %s, v%d, %s, 0 offen offset:%d sc1' % (vr(EL + 2 * m, 2), vE, sr(sES, 4), 128 + 512 * (m + 4 - 4 * r)) for m in range(4)]
            nm = 'fU_es%d' % r
            t.label(nm); t('s_mov_b32 s32, %d' % SPIN); t.label(nm + '_l'); t('s_sleep 8')
            t.extend(eld); t('s_waitcnt vmcnt(0)'); t.extend(emax)
            t('s_cbranch_vccz %s_ret' % nm); t('s_sub_u32 s32, s32, 1'); t('s_cmp_lg_u32 s32, 0'); t('s_cbranch_scc1 %s_l' % nm); t('s_branch %s_ret' % nm)
            return [vmi(e, nm) for e in eld], [vmw(nm)] + emax[:-1] + [emax[-1] + '\ns_nop 0\ns_cbranch_vccnz %s\n%s_ret:' % (nm, nm)]
        l0, c0 = round_(0); l1, c1 = round_(1)
        S.spread(['v_lshl_add_u32 v%d, v1, 3, s%d' % (vE, sEo)] + l0, BK + 110, BK + 120)
        SC = c0 + cfma(EL + 4, L256, EL + 6, EL + 4) + cfma(EL + 2, L256, EL + 4, EL + 2) + cfma(PA, L256, EL + 2, EL) + l1
        S.spread(SC, BK + 160, BK + 184)
        SC = c1 + cfma(EL + 6, L256, PA, EL + 6)
        for m in range(2, -1, -1): SC += cfma(EL + 2 * m, L256, EL + 2 * m + 2, EL + 2 * m)
        C_ = EL + 2
        SC += ['v_mul_f32 v%d, v%d, v%d' % (C_, G64, EL), 'v_mul_f32 v%d, v%d, v%d' % (C_ + 1, G64, EL + 1),
               'v_fma_f32 v%d, -v%d, v%d, v%d' % (C_, G64 + 1, EL + 1, C_), 'v_fmac_f32 v%d, v%d, v%d' % (C_ + 1, G64 + 1, EL)]
        for sw in ('16', '32'):
            SC += ['v_mov_b32 v%d, v%d' % (X_ + c, C_ + c) for c in range(2)] + ['v_permlane%s_swap_b32 v%d, v%d' % (sw, C_ + c, X_ + c) for c in range(2)]
            SC += ['v_add_f32 v%d, v%d, v%d' % (C_ + c, C_ + c, X_ + c) for c in range(2)]
        SC += cfma(LO, L32, C_, LO)
        SC += ['v_cmp_lt_u32 vcc, 31, v1\nv_cndmask_b32 v%d, v%d, v%d, vcc\nv_cndmask_b32 v%d, v%d, v%d, vcc' % (C_, C_, LO, C_ + 1, C_ + 1, LO + 1)]
        SC += cfma(EO, L16, C_, EO)
        SC += ['v_and_b32 v%d, 16, v1' % TR, 'v_cmp_ne_u32 vcc, 0, v%d\nv_cndmask_b32 v%d, v%d, v%d, vcc\nv_cndmask_b32 v%d, v%d, v%d, vcc' % (TR, C_, C_, EO, C_ + 1, C_ + 1, EO + 1)]
        SC += [srd_l(sUS, P['ws'], 5 << 20, WS_HT),
               's_mul_i32 s32, s%d, 40\ns_add_u32 s32, s32, s%d\ns_lshl_b32 s32, s32, 1\ns_and_b32 s33, s%d, 1\ns_add_u32 s32, s32, s33\n' % (sX_, sHo, sTT) +
               's_lshl_b32 s32, s32, 1\ns_lshr_b32 s33, s3, 2\ns_add_u32 s32, s32, s33\ns_lshl_b32 s%d, s32, 12' % sHo,
               'v_xor_b32 v%d, 0x80, v%d' % (vE, vL16)]
        for k in range(16):
            pr, pi = (C_, C_ + 1) if k == 0 else (ur(k - 1), ui(k - 1))
            SC += ['v_fmac_f32 v%d, v%d, v%d' % (ur(k), LR, pr), 'v_fmac_f32 v%d, v%d, v%d' % (ui(k), LR, pi),
                   'v_fma_f32 v%d, -v%d, v%d, v%d' % (ur(k), LR + 1, pi, ur(k)), 'v_fmac_f32 v%d, v%d, v%d' % (ui(k), LR + 1, pr)]
            if k in (8, 15):
                hh = 0 if k == 8 else 1
                for c, base in enumerate((ur(8 * hh), ui(8 * hh))):
                    SC += pack8(base, base)
                    SC += [vmi('buffer_store_dwordx4 %s, v%d, %s, s%d offen offset:%d sc1' % (vr(base, 4), vE if hh else vL16, sr(sUS, 4), sHo, c * 2048 + hh * 1024), 'ssm')]
        S.spread(SC, BK + 226, BK + 370)
    else:
        T = 224
        sWid, sDbk, sU_ = sUx, sUb, sTT
        C0 = T; CP = T + 16; TT = 6
        vC = vTm
        SC = ['s_sub_u32 s32, s2, 160\ns_lshl_b32 s32, s32, 3\ns_add_u32 s%d, s32, s3' % sWid,
              srd_l(sES, P['ws'], 1600 * 1024, WS_CC), 's_cmp_lt_u32 s%d, 400\ns_cselect_b32 s%d, s%d, 0\ns_cselect_b32 s%d, s%d, 0' % (sWid, sES + 2, sES + 2, sWid, sWid),
              's_mul_i32 s%d, s%d, 6554\ns_lshr_b32 s%d, s%d, 16' % (sDbk, sWid, sDbk, sDbk), 's_mul_i32 s32, s%d, 10\ns_sub_u32 s%d, s%d, s32' % (sDbk, sU_, sWid),
              's_lshl_b32 s32, s%d, 7\nv_lshl_add_u32 v%d, v1, 1, s32' % (sU_, vC)]
        SC += [vmi('global_load_ushort v%d, v%d, %s' % (CP + p, vC, sr(P[k], 2))) for p, k in enumerate(('Lre', 'Lim', 'logdt'))]
        SC += ['v_and_b32 v%d, 15, v1\ns_lshl_b32 s33, s%d, 4\nv_add_u32 v%d, s33, v%d' % (vC, sDbk, vC, vC), 'v_mul_u32_u24 v%d, 1280, v%d' % (vC, vC),
               'v_lshrrev_b32 v%d, 4, v1\nv_lshl_add_u32 v%d, v%d, 5, v%d' % (TT, vC, TT, vC), 's_lshl_b32 s32, s%d, 7\nv_add_u32 v%d, s32, v%d' % (sU_, vC, vC)]
        for p, k in enumerate(('Cre', 'Cim')):
            for o in range(2): SC.append(vmi('global_load_dwordx4 %s, v%d, %s offset:%d' % (vr(C0 + 8 * p + 4 * o, 4), vC, sr(P[k], 2), 16 * o), 'cc'))
        S.spread(SC, 14, 44)
        E = CP + 3
        SC = [vmw('cc')] + ['v_lshlrev_b32 v%d, 16, v%d' % (CP + p, CP + p) for p in range(3)] + lam_params(E, CP, CP + 1, CP + 2)
        SC += ['v_exp_f32 v%d, v%d' % (E, E), 'v_cos_f32 v%d, v%d' % (E + 2, E + 1), 'v_sin_f32 v%d, v%d' % (E + 1, E + 1),
               'v_fma_f32 v%d, v%d, v%d, -1.0' % (E + 2, E, E + 2), 'v_mul_f32 v%d, v%d, v%d' % (E + 1, E, E + 1),
               'v_mul_f32 v%d, v%d, v%d' % (E + 3, CP, CP), 'v_fmac_f32 v%d, v%d, v%d' % (E + 3, CP + 1, CP + 1),
               'v_rcp_f32 v%d, v%d' % (E + 3, E + 3), 'v_add_f32 v%d, v%d, v%d' % (E + 3, E + 3, E + 3),
               'v_mul_f32 v%d, v%d, v%d' % (E + 4, E + 2, CP), 'v_fmac_f32 v%d, v%d, v%d' % (E + 4, E + 1, CP + 1),
               'v_mul_f32 v%d, v%d, v%d' % (E, E + 1, CP), 'v_fma_f32 v%d, -v%d, v%d, v%d' % (E, E + 2, CP + 1, E)]
        AR, NAR, NAI = CP, CP + 1, CP + 2
        SC += ['v_mul_f32 v%d, v%d, v%d' % (AR, E + 4, E + 3), 'v_mul_f32 v%d, -v%d, v%d' % (NAR, E + 4, E + 3), 'v_mul_f32 v%d, -v%d, v%d' % (NAI, E, E + 3)]
        SC += ['s_mul_i32 s32, s%d, 6554\ns_lshr_b32 s32, s32, 16\ns_mul_i32 s33, s32, 390\ns_add_u32 s33, s33, s%d\ns_mul_i32 s32, s%d, 40\ns_add_u32 s33, s33, s32\ns_lshl_b32 s%d, s33, 10' % (sDbk, sDbk, sU_, sWid)]
        OB = (T + 24, T + 28); X = TT
        for n in range(16):
            re = C0 + (n >> 1); im = re + 8
            y0 = X + 2 + (n & 1); y1 = X + 4 + (n & 1)
            if n & 1: SC += ['v_and_b32 v%d, 0xffff0000, v%d' % (X, re), 'v_and_b32 v%d, 0xffff0000, v%d' % (X + 1, im)]
            else: SC += ['v_lshlrev_b32 v%d, 16, v%d' % (X, re), 'v_lshlrev_b32 v%d, 16, v%d' % (X + 1, im)]
            D = ' row_newbcast:%d row_mask:0xf bank_mask:0xf' % n
            SC += ['v_mul_f32_dpp v%d, v%d, v%d' % (y0, AR, X) + D, 'v_mul_f32_dpp v%d, v%d, v%d' % (y1, NAR, X + 1) + D,
                   'v_fmac_f32_dpp v%d, v%d, v%d' % (y0, NAI, X + 1) + D, 'v_fmac_f32_dpp v%d, v%d, v%d' % (y1, NAI, X) + D]
            if n & 1:
                O = OB[(n >> 2) & 1]
                SC += [cvt(O + ((n >> 1) & 1), X + 2, X + 3), cvt(O + 2 + ((n >> 1) & 1), X + 4, X + 5)]
            if n & 3 == 3:
                SC.append(vmi('s_add_u32 s33, s%d, %d\nbuffer_store_dwordx4 %s, v%d, %s, s33 offen sc1' % (sWid, (n >> 2) * 10240, vr(O, 4), vL16, sr(sES, 4)), 'ssm'))
        S.spread(SC, 150, 370)
    for s in range(10):
        b = BQ + 32 * s
        for g in range(3):
            S.spread([rdQW(s, g + 1, q, hf) for q in range(4) for hf in range(2)], b + 8 * g, b + 8 * g + 6)
        if isU or s < 7: S.spread([dmaX(s + 3, i) for i in range(4)], b + 8, b + 24)
        else: S.spread([dmaY((0, 2, 3)[s - 7], i) for i in range(4)], b + 8, b + 24)
        if s == 9 and isU: break
        tags = [lambda s=s: tagQW[s + 1], lambda s=s: tagX[s + 1]] if s < 9 else [lambda: tagY[0]]
        S.add_post(b + 25, mkbar(tags, 32 + s))
        for q, p in enumerate((33, 41, 49) if s < 9 else (29,)): S.add_post(b + p, 's_setprio %d' % (2 - q))
        if s < 9: S.spread(qfirst(s + 1), b + 25, b + 31)
        if s + 4 < 10: S.spread([dmaQW(s + 4, 0), dmaQW(s + 4, 1)], b + 28, b + 36)
        if not isU and s == 7: S.spread([dmaY(1, i) for i in range(4)], b + 27, b + 39)
    aset = ['s_lshl_b32 s32, s%d, 20\ns_add_u32 s%d, s%d, s32\ns_addc_u32 s%d, s%d, 0\ns_and_b32 s%d, s%d, 0xffff' % (sH, sKV, P['ws'], sKV + 1, P['ws'] + 1, sKV + 1, sKV + 1),
            's_sub_u32 s32, 16, s%d\ns_lshl_b32 s%d, s32, 16\ns_mov_b32 s%d, 0x00020000\ns_mov_b32 s%d, s%d' % (sI, sKV + 2, sKV + 3, sLim, sKV + 2),
            's_lshl_b32 s32, s%d, 13\ns_add_u32 s%d, s%d, s32\ns_add_u32 s%d, s%d, s32' % (sH, sCtA, sCtA, sCtB, sCtB),
            's_lshr_b32 s32, s3, 1\ns_lshl_b32 s32, s32, 14\ns_and_b32 s33, s3, 1\ns_lshl_b32 s33, s33, 12\ns_add_u32 s32, s32, s33\nv_add_u32 v%d, s32, v%d' % (vKS0, vL16),
            's_lshr_b32 s32, s3, 2\ns_lshl_b32 s32, s32, 14\ns_and_b32 s33, s3, 3\ns_lshl_b32 s33, s33, 11\ns_add_u32 s32, s32, s33\nv_add_u32 v%d, s32, v%d' % (vKS, vL16),
            's_mov_b32 s%d, s%d\ns_add_u32 s%d, s%d, 0x8000' % (sKm0, sWl, sVm0, sWl), 's_mov_b32 s%d, 0x20000\ns_mov_b32 s%d, 0x12000' % (sKsrc, sVsrc),
            's_lshl_b32 s32, s%d, 1\ns_add_u32 s%d, s32, 2' % (sI, sJ1), 's_mov_b32 s%d, 0\ns_mov_b32 s%d, 0' % (sJ, sN), 's_mov_b32 s%d, %s' % (sThr, f32(2.0 ** 30)),
            's_cmp_eq_u32 s3, 0\ns_cselect_b32 s%d, 0x6003, 0' % sHook]
    S.spread(aset, BQ + 100, BQ + 133)
    pr = (BQ + 184, BQ + 212) if isU else (BY + 130, BY + 190)
    S.add_post(pr[0], vmi(rdy_load(vPf, vPub), 'rdy'))
    S.spread([vmw('rdy'), '\n'.join(rdy_calc(vPf)) + '\ns_add_u32 s32, s%d, s3\ns_cmp_eq_u32 s32, 0\ns_cbranch_scc1 f%s_kv\nf%s_kv_ret:' % (sRdy, role, role)], pr[1], pr[1] + 4)
    t = tail
    t.label('f%s_kv' % role); t('s_mov_b32 s100, %d' % SPIN); t.label('f%s_kv_l' % role); t('s_sleep 8')
    t(rdy_load(vPf, vPub)); t('s_waitcnt vmcnt(0)'); t.extend(rdy_calc(vPf)); t('s_cmp_lg_u32 s%d, 0' % sRdy); t('s_cbranch_scc1 f%s_kv_ret' % role)
    t('s_sub_u32 s100, s100, 1'); t('s_cmp_lg_u32 s100, 0'); t('s_cbranch_scc1 f%s_kv_l' % role); t('s_branch f%s_kv_ret' % role)
    def fin(g):
        o = []
        for qt in range(2):
            for h2 in range(2):
                tt = tile(qt, 2 * g + h2)
                o += ['v_mul_f32 v%d, %s, v%d' % (tt + r, f32(QSCALE), tt + r) for r in range(4)]
                o += [cvt(qf(g, qt) + 2 * h2 + r, tt + 2 * r, tt + 2 * r + 1) for r in range(2)]
        return o
    e = BQ + 288
    if isU:
        for g in range(2): S.spread(fin(g), e + 8 * g + 11, e + 8 * g + 19)
        S.spread(fin(2)[:12], e + 27, e + 32)
    else:
        S.spread(fin(0) + fin(1) + fin(2) + fin(3), BY + 4, BY + 76)
        allchk('fN_ht', ['v_and_b32 v%d, 31, v1\ns_mul_i32 s32, s%d, 25\ns_lshr_b32 s32, s32, 1\nv_min_u32 v%d, 12, v%d\nv_add_lshl_u32 v%d, v%d, s32, 5' % (vTm, sHL, vTm, vTm, vTm, vTm),
                         'v_min_u32 v%d, 19, v1\ns_lshl_b32 s32, s%d, 5\nv_add_lshl_u32 v%d, v%d, s32, 2' % (vPub, sX_, vPub, vPub), 'v_add_u32 v%d, 0x%x, v%d' % (vTm, CCF - XFL, vTm),
                         'v_cmp_lt_u32 vcc, 31, v1\nv_cndmask_b32 v%d, v%d, v%d, vcc' % (vPub, vPub, vTm), 'v_add_u32 v%d, 0x%x, v%d' % (vPub, XFL, vPub)], sDB, vTm, vPub, BQ + 170, BQ + 212)
        yset = ['s_movk_i32 s32, 10240\ns_cmp_lt_u32 s3, 4\ns_cselect_b32 s%d, 0x4000, s32\ns_cselect_b32 s%d, s%d, s%d' % (sYs, sYo, sX_, sHL),
                's_mul_i32 s%d, s%d, 40\ns_sub_u32 s32, s%d, 5\ns_mul_i32 s32, s32, 14\ns_add_u32 s%d, s%d, s32\ns_mul_i32 s%d, s%d, s%d' % (sYo, sYo, sI, sYo, sYo, sYo, sYo, sYs),
                's_mov_b32 s32, 0x%x\ns_cmp_lt_u32 s3, 4\ns_cselect_b32 s32, 0x%x, s32\ns_add_u32 s32, s32, s%d\ns_add_u32 s%d, s%d, s32\ns_addc_u32 s%d, s%d, 0\ns_and_b32 s%d, s%d, 0xffff' % (WS_CC, WS_HT, sYo, sY, P['ws'], sY + 1, P['ws'] + 1, sY + 1, sY + 1),
                's_mov_b32 s%d, s%d\ns_mov_b32 s%d, 0x00020000' % (sY + 2, sYs, sY + 3),
                's_and_b32 s32, s%d, 0x3fff\nv_add_u32 v%d, s32, v%d' % (sXl, vY, vL16),
                'v_and_b32 v8, 3, v1', 'v_lshrrev_b32 v9, 2, v1', 'v_lshrrev_b32 v10, 1, v8', 'v_lshlrev_b32 v11, 3, v10', 'v_xor_b32 v9, v9, v11', 'v_lshlrev_b32 v9, 4, v9', 'v_lshl_add_u32 v9, v10, 10, v9',
                'v_and_b32 v8, 1, v8', 'v_lshl_add_u32 v9, v8, 3, v9', 's_lshr_b32 s32, s3, 1\ns_lshl_b32 s32, s32, 12\nv_add_u32 v%d, s32, v9' % YA[0],
                'v_add_u32 v%d, 0x10000, v%d' % (YA[1], YA[0]), 'v_add_u32 v%d, 0x20000, v%d' % (YA[2], YA[0]),
                's_and_b32 s33, s3, 1\ns_mul_i32 s33, s33, 5120\ns_add_u32 s33, s33, 0x4000\nv_add_u32 v%d, s33, v%d' % (YB[0], vL16), 'v_add_u32 v%d, 0x10000, v%d' % (YB[1], YB[0]),
                srd_l(sES, P['ws'], 8 << 20, WS_B + PY0),
                's_lshl_b32 s32, s%d, 3\ns_add_u32 s32, s32, s3\ns_mul_i32 s32, s32, 3\ns_add_u32 s32, s32, s%d\ns_sub_u32 s32, s32, 5\ns_mul_i32 s%d, s32, 10240' % (sH, sI, sEo)]
        S.spread(yset, BQ + 136, BQ + 200)
        S.add_post(BQ + 230, 'v_add_u32 v%d, 0x20000, v%d' % (YB[2], YB[0]))
        S.spread([rdYA(0, 0, 0), rdYA(0, 0, 1), rdYB(0, 0)] + [rdYA(0, q, hf) for q in range(1, 4) for hf in range(2)] + [rdYB(0, c) for c in range(1, 5)], e + 25, e + 32)
        S.spread([dmaY(4, i) for i in range(4)], e + 27, e + 35)
        for n in range(14):
            y = BY + 20 * n
            S.add_post(y + 3, mkbar(([lambda n=n: tagY[n + 1]] if n < 13 else []) + ([lambda: tg['kv']] if n == 1 else []), 18 + n if n in (0, 1) else (28 + n - 11 if n > 10 else None)))
            if n == 1: S.add_post(y + 3, vmi(publish('kv', vPf)))
            for k, p in enumerate((8, 13, 18)): S.add_post(y + p, 's_setprio %d' % (2 - k))
            if n < 13:
                S.spread([rdYB(n + 1, 0)] + [rdYA(n + 1, q, hf) for q in range(4) for hf in range(2)], y + 3, y + 12)
                for c in range(1, 5): S.add_post(y + 4 * c + 3, rdYB(n + 1, c))
            D = []
            if n < 9: D = [dmaY(n + 5, i) for i in range(4)]
            if n in (10, 12, 13): D = [dmaX({10: 10, 12: 11, 13: 12}[n], i) for i in range(4)]
            for p, x in zip((5, 8, 11, 14), D): S.add_post(y + p, x)
        def pys(p): return pack8(YP(p), YP(p)) + [vmi('s_add_u32 s33, s%d, %d\nbuffer_store_dwordx4 %s, v%d, %s, s33 offen offset:%d sc1' % (sEo, (p >> 2) * 4096, vr(YP(p), 4), vL16, sr(sES, 4), (p & 3) * 1024))]
        y = BY + 260
        for c in range(3): S.spread(pys(2 * c) + pys(2 * c + 1), y + 4 * c + 7, y + 4 * c + 11)
    vm.wait_for(a, tagU[0] if isU else tagA[0]); a('s_barrier')
    if dbg: ts(a, 1)
    if isU: first = uaddr(0) + [rdU(0, ks, q) for ks in range(2) for q in range(6)]
    else: first = kvfirst
    for f in first: f(a) if callable(f) else a(f)
    S.emit(a, 0, BE)
    assert max(list(S.post) + list(S.pre)) < BE, (max(list(S.post) + list(S.pre)), BE)
    if isU: a.extend(fin(2)[12:]); a.extend(fin(3))
    else:
        for p in range(6, 10):
            for f in pys(p): f(a) if callable(f) else a(f)
    a(rdy_load(vFl, vPub)); vm.issue()
    vm.wait_for(a, tagX[10])
    return a.lines
```

```python
from h_back import *
def gen_f(dbg=0):
    a = Asm(); tail = Asm()
    front_start(a, dbg)
    U = front_role('U', dbg, tail); N = front_role('N', dbg, tail)
    a('s_cmp_lt_u32 s2, 160'); a('s_cbranch_scc1 f_U')
    a.extend(N); a('s_branch f_join')
    a.label('f_U'); a.extend(U)
    a.label('f_join')
    attention(a, tail, dbg, setup, hooks, epi0)
    back(a, tail, dbg)
    if dbg:
        ts(a, 62); a('s_waitcnt vmcnt(0)'); ts(a, 63); tsr(a, 61)
        ts_store(a, 0, 3, 64, 32, 'f_ts'); ts_store(a, 1, 3, 64, 32, 'f_ts4', wave=4)
    a.label('f_end')
    a('s_endpgm')
    a.extend(tail.lines)
    a.label('f_last'); a('s_endpgm')
    return dict(name='f_kernel', grid=256, block=512, lds=163840, asm=a, nvgpr=256, accum=256, nsgpr=102)
if __name__ == '__main__':
    import sys
    d = int(sys.argv[1]) if len(sys.argv) > 1 else 1
    txt = build_file([gen_f(d)])
    if 'nosc1' in XO:
        import re
        txt = re.sub(r'(buffer_store_dwordx4 .*) sc1', r'\1', txt)
    if 'rt' in XO: txt = txt.replace('s_memtime', 's_memrealtime')
    open(sys.argv[2] if len(sys.argv) > 2 else 'h.s', 'w').write(txt)
```

```python
from h_att import *
RG = 32768
sBA, sBB, sOUT, sWS, sWO = 8, 12, 16, 20, 28
sSt, sEv, sSlR, sSlW, sA0, sB0, sAs, sBs, sDl = 66, 67, 68, 69, 70, 71, 72, 73, 74
sT0, sT1, sFl1, sFw = 76, 77, 78, 79
sPo, sQ, sFY, sOK, sXb, sIt, sMk, sVal, sBlk = 82, 83, 84, 85, 86, 87, 88, 89, 90
vD = 5
DUMMY = 0x21000
BG = int(os.environ.get('BG', 1))
PR = [int(c) for c in os.environ.get('PR', '120')]
def isN(lbl): return ['s_cmp_ge_u32 s2, 160', 's_cbranch_scc1 ' + lbl]
def notOK(lbl): return ['s_cmp_eq_u32 s%d, 0' % sOK, 's_cbranch_scc1 ' + lbl]
def isA(lbl): return ['s_cmp_lt_u32 s3, 4', 's_cbranch_scc1 ' + lbl]
def isB(lbl): return ['s_cmp_ge_u32 s3, 4', 's_cbranch_scc1 ' + lbl]
def srd_off(s, ptr, size, soff):
    return ['s_add_u32 s%d, s%d, %s' % (s, ptr, soff), 's_addc_u32 s%d, s%d, 0' % (s + 1, ptr + 1), 's_and_b32 s%d, s%d, 0xffff' % (s + 1, s + 1),
            's_mov_b32 s%d, 0x%x' % (s + 2, size), 's_mov_b32 s%d, 0x00020000' % (s + 3)]
def F(p, qt): return (224 + 8 * p if p < 4 else 128 + 8 * (p - 4)) + 4 * qt
def ldgrp(G, sc=''):
    o = ['s_add_u32 s32, s%d, %d' % (sHL, G), 's_and_b32 s32, s32, 3', 's_lshl_b32 s32, s32, 13', 's_add_u32 s32, s32, s%d' % sQ, 's_add_u32 s33, s32, 0x1000']
    for s in range(4):
        for qt in range(2):
            o.append('buffer_load_dwordx4 %s, v%d, %s, s%d offen offset:%d%s' % (vr(F(4 * G + s, qt), 4), vL16, sr(sCT, 4), 32 + (s >> 1), (s & 1) * 2048 + qt * 1024, sc))
    return o
def chkgrp(G):
    b = F(4 * G, 0)
    o = ['v_max3_u32 v8, v%d, v%d, v%d' % (b, b + 1, b + 2), 'v_max3_u32 v9, v%d, v%d, v%d' % (b + 3, b + 4, b + 5)]
    for k in range(13): o.append('v_max3_u32 v%d, v%d, v%d, v%d' % (8 + (k & 1), 8 + (k & 1), b + 6 + 2 * k, b + 7 + 2 * k))
    return o + ['v_max_u32 v8, v8, v9', 'v_cmp_eq_u32 vcc, -1, v8']
def wo_params():
    o = ['s_mov_b64 s[%d:%d], s[%d:%d]' % (d + k, d + k + 1, sWO + k, sWO + k + 1) for d in (sBA, sBB) for k in (0, 2)]
    o += ['s_lshl_b32 s32, s%d, 2' % sHL, 's_add_u32 s32, s32, s3', 's_and_b32 s33, s32, 15', 's_mul_i32 s%d, s33, 40960' % sA0, 's_xor_b32 s33, s33, 8', 's_mul_i32 s%d, s33, 40960' % sB0,
          's_mul_i32 s32, s%d, 320' % sHL, 's_add_u32 s%d, s%d, s32' % (sA0, sA0), 's_add_u32 s%d, s%d, s32' % (sB0, sB0),
          's_movk_i32 s%d, 64' % sAs, 's_movk_i32 s%d, 64' % sBs, 's_movk_i32 s%d, 19456' % sDl]
    return o
def wo_voff(t):
    if 'e3' in XO: return ['v_lshlrev_b32 v%d, 4, v1' % vD]
    return ['v_lshrrev_b32 v%d, 3, v1' % t, 'v_and_b32 v%d, 2, v%d' % (t, t), 'v_xor_b32 v%d, v%d, v1' % (t, t), 'v_and_b32 v%d, 3, v%d' % (t, t),
            'v_lshrrev_b32 v%d, 2, v1' % vD, 'v_mul_u32_u24 v%d, 1280, v%d' % (vD, vD), 'v_lshl_add_u32 v%d, v%d, 4, v%d' % (vD, t, vD)]
def ring(s): return 's_sub_u32 s%d, s%d, 0x%x\ns_cselect_b32 s%d, 0x%x, s%d' % (s, s, RG, s, 4 * RG, s)
def stage_dma():
    ld = 'buffer_load_dwordx4 v%d, %s, s%d offen offset:%d lds'
    return ['s_add_u32 m0, s%d, s%d\n' % (sSlW, sWl) + ld % (vD, sr(sBA, 4), sA0, 0),
            's_add_u32 s%d, s%d, s%d\n' % (sT0, sA0, sDl) + ld % (vD, sr(sBA, 4), sT0, 1024),
            's_add_u32 m0, m0, 0x4000\n' + ld % (vD, sr(sBB, 4), sB0, 0),
            's_add_u32 s%d, s%d, s%d\n' % (sT0, sB0, sDl) + ld % (vD, sr(sBB, 4), sT0, 1024),
            's_add_u32 s%d, s%d, s%d\ns_add_u32 s%d, s%d, s%d\n' % (sA0, sA0, sAs, sB0, sB0, sBs) + ring(sSlW)]
def quarter_dma():
    o = []
    for d in range(8):
        pre = ''
        if d == 0: pre = 's_add_u32 m0, s%d, s%d\n' % (sSlW, sB0)
        if d == 4: pre = 's_add_u32 m0, m0, 0x1000\n'
        if d: pre += 's_add_u32 s%d, s%d, %d\n' % (sT0, sA0, d * 20480 - (d & 3) * 1024)
        o.append(pre + 'buffer_load_dwordx4 v%d, %s, s%d offen offset:%d lds' % (vD, sr(sBA, 4), sT0 if d else sA0, (d & 3) * 1024))
    return o + ['s_add_u32 s%d, s%d, 64\n' % (sA0, sA0) + ring(sSlW)]
def flag_st(val, saddr, va, vb):
    return ['v_lshlrev_b32 v%d, 26, v1' % va, 'v_mov_b32 v%d, %s' % (vb, val), 'buffer_store_dword v%d, v%d, %s, s%d offen sc1' % (vb, va, sr(sWS, 4), saddr)]
def flag_ld(vf, saddr):
    return ['v_and_b32 v%d, 7, v1' % vf, 'v_lshlrev_b32 v%d, 2, v%d' % (vf, vf), 'buffer_load_dword v%d, v%d, %s, s%d offen sc1' % (vf, vf, sr(sWS, 4), saddr)]
def flag_ldB(vf, saddr):
    return ['v_and_b32 v%d, 3, v1' % vf, 'v_lshlrev_b32 v%d, 9, v%d' % (vf, vf), 'buffer_load_dword v%d, v%d, %s, s%d offen sc1' % (vf, vf, sr(sWS, 4), saddr)]
def flag_chk(vf, val, mask):
    return ['v_cmp_gt_i32 vcc, %s, v%d' % (val, vf), 's_and_b32 s33, vcc_lo, %s' % mask]
def flag_spin(t, name, vf, saddr, val, mask, loaded=False, flag_ld=flag_ld):
    t('s_mov_b32 s32, %d' % SPIN)
    if loaded: t('s_branch %s_c' % name)
    t.label(name + '_l')
    t.extend(flag_ld(vf, saddr)); t('s_waitcnt vmcnt(0)')
    t.label(name + '_c')
    t.extend(flag_chk(vf, val, mask)); t('s_cbranch_scc0 %s_d' % name)
    t('s_sleep 2')
    t('s_sub_u32 s32, s32, 1'); t('s_cmp_lg_u32 s32, 0'); t('s_cbranch_scc1 %s_l' % name)
    t.label(name + '_d')
SV, SM = 's%d' % sVal, 's%d' % sMk

def setup(a):
    a.extend(srd_off(sWS, P['ws'], 36 << 20, '0x%x' % WS_B))
    a('s_mul_i32 s32, s%d, %d' % (sX_, 512 * 1280)); a.extend(srd_off(sWO, P['wo'], 512 * 1280, 's32'))
    R, IH = sT0, sT1
    a('s_and_b32 s%d, s3, 3' % R)
    a('s_sub_u32 s%d, 7, s%d' % (sBlk, sI))
    a('s_sub_u32 s32, 15, s%d' % sI); a('s_cmp_lt_u32 s3, 4'); a('s_cselect_b32 s32, s%d, s32' % sBlk); a('s_cselect_b32 s33, s%d, s%d' % (sBlk, sI))
    a('s_mov_b32 s%d, 1' % sVal); a('s_cselect_b32 s%d, 0x%x, 0x%x' % (sPo, PA0, PB0))
    a('s_lshl_b32 s32, s32, 2'); a('s_add_u32 s32, s32, s%d' % R); a('s_lshl_b32 s32, s32, 3'); a('s_add_u32 s32, s32, s%d' % sX_); a('s_lshl_b32 s%d, s32, 15' % sQ)
    a('s_lshl_b32 s32, s%d, 3' % sX_); a('s_add_u32 s32, s32, s33'); a('s_lshl_b32 s32, s32, 2'); a('s_add_u32 s32, s32, s%d' % R); a('s_lshl_b32 s32, s32, 7'); a('s_add_u32 s%d, s32, 0x%x' % (sFw, FL0))
    a('s_lshr_b32 s%d, s2, 3' % IH); a('s_lshl_b32 s%d, s%d, 2' % (IH, IH)); a('s_add_u32 s%d, s%d, s%d' % (IH, IH, R))
    a('s_lshl_b32 s32, s%d, 5' % IH); a('s_add_u32 s32, s32, s%d' % sX_); a('s_lshl_b32 s32, s32, 2'); a('s_add_u32 s32, s32, 0x%x' % (FL0 + 32768))
    a('s_lshl_b32 s33, s%d, 2' % sHL); a('s_add_u32 s33, s33, s%d' % sFw); a('s_cmp_lt_u32 s3, 4'); a('s_cselect_b32 s%d, s32, s33' % sFl1)
    a('s_mov_b32 s%d, 15' % sMk)
    a('s_lshl_b32 s33, s%d, 9' % sHL); a('s_sub_u32 s32, s32, s33'); a('s_cmp_lt_u32 s3, 4'); a('s_cselect_b32 s%d, s%d, s32' % (sFw, sFw))
    a('s_lshl_b32 s32, s%d, 4' % IH); a('s_add_u32 s32, s32, s%d' % sX_); a('s_mul_i32 s32, s32, 5120'); a('s_add_u32 s%d, s%d, s32' % (sPo, sPo))
    a('s_lshr_b32 s33, s3, 2'); a('s_mul_i32 s33, s33, 40960'); a('s_add_u32 s32, s32, s33'); a('s_add_u32 s%d, s32, 0x%x' % (sIt, PB0))
    a('s_bitcmp1_b32 s%d, 0' % sI); a('s_cselect_b32 s%d, 0x%x, 0' % (sSlW, 4 * RG)); a('s_cselect_b32 s%d, 0, 0x%x' % (sXb, RG)); a('s_mov_b32 s%d, s%d' % (sSlR, sSlW))
    a('s_cmp_lt_u32 s3, 3'); a('s_cselect_b32 s32, 12, 16'); a('s_mov_b32 s%d, 0x100fe' % sPost); a('s_bitset1_b32 s%d, s32' % sPost)
    a('s_add_u32 s32, s%d, 1' % sJ1); a('s_cmp_lt_u32 s3, 4'); a('s_cselect_b32 s%d, 9, s32' % sSt); a('s_cselect_b32 s32, 15, s32'); a('s_bitset1_b32 s%d, s32' % sPost); a('s_bitset1_b32 s%d, s%d' % (sPost, sSt))
    a('s_lshr_b32 s32, s2, 1'); a('s_lshl_b32 s32, s32, 7'); a('s_add_u32 s%d, s32, 0x%x' % (sFY, FL0 + 32768))
    a('s_mov_b32 s%d, 0' % sOK)
    a.extend(wo_params())

def hooks(t):
    t('s_cmp_lg_u32 s%d, 1' % sJ); t('s_cbranch_scc1 f_hk7'); t('v_lshlrev_b32 v%d, 20, v1' % T1); t(publish('x', T0, T1)); t(publish('kv', T0, T1)); t.label('f_hk7')
    t('s_cmp_lt_u32 s%d, 13' % sJ); t('s_cbranch_scc1 f_hkE'); t('s_cmp_gt_u32 s%d, 14' % sJ); t('s_cbranch_scc1 f_hkE')
    t('s_mov_b32 s32, %d' % SPIN); t('v_and_b32 v%d, 31, v1' % T0); t('v_lshlrev_b32 v%d, 2, v%d' % (T0, T0)); t('s_lshl_b32 s33, s%d, 7' % sX_); t('s_add_u32 s33, s33, 0x%x' % XFL)
    t('s_cmp_eq_u32 s%d, 14' % sJ); t('s_cbranch_scc1 f_hk14')
    t('buffer_load_dword v255, v%d, %s, s33 offen sc1' % (T0, sr(sDB, 4))); t('s_branch f_hkE')
    t.label('f_hk14')
    t('v_cmp_ne_u32 vcc, 1, v255')
    t('s_cbranch_vccz f_hkE')
    t('s_sleep 8'); t('buffer_load_dword v255, v%d, %s, s33 offen sc1' % (T0, sr(sDB, 4))); t('s_waitcnt vmcnt(0)')
    t('s_sub_u32 s32, s32, 1'); t('s_cmp_lg_u32 s32, 0'); t('s_cbranch_scc1 f_hk14')
    t.label('f_hkE')

def post(t):
    t.label('f_post')
    t('s_cmp_gt_u32 s%d, 7' % sJ); t('s_cbranch_scc1 f_po1')
    for k in range(4): t('v_mov_b32 v%d, -1' % (TMP + k))
    t('s_cmp_gt_u32 s%d, 5' % sJ); t('s_cbranch_scc1 f_po0')
    t('buffer_store_dwordx4 %s, v%d, %s, s%d offen sc1' % (vr(TMP, 4), vL16, sr(sWS, 4), sIt)); t('s_add_u32 s%d, s%d, 1024' % (sIt, sIt))
    t('s_branch f_po1')
    t.label('f_po0')
    t('s_lshr_b32 s32, s3, 2'); t('s_lshl_b32 s32, s32, 1'); t('s_add_u32 s32, s32, s%d' % sJ); t('s_sub_u32 s32, s32, 6'); t('s_lshl_b32 s32, s32, 11'); t('s_add_u32 s32, s32, s%d' % sCtB)
    for k in range(2): t('buffer_store_dwordx4 %s, v%d, %s, s32 offen offset:%d sc1' % (vr(TMP, 4), vL16, sr(sCT, 4), k * 1024))
    t.label('f_po1')
    t('s_cmp_lg_u32 s%d, s%d' % (sJ, sSt)); t('s_cbranch_scc1 f_po2')
    t.extend(flag_st(1, sFl1, T0, T1))
    t.label('f_po2')
    t('s_cmp_lt_u32 s%d, 12' % sJ); t('s_cbranch_scc1 f_poE')
    t('s_cmp_eq_u32 s%d, 16' % sJ); t('s_cbranch_scc1 f_po16')
    t('s_mov_b32 m0, 0x%x' % DUMMY)
    pf = 'buffer_load_dword v%d, %s, 0 offen lds'
    t('s_cmp_lg_u32 s%d, 12' % sJ); t('s_cbranch_scc1 f_po3')
    t('s_lshr_b32 s32, s2, 3'); t('s_lshl_b32 s33, s3, 5'); t('s_add_u32 s32, s32, s33'); t('s_lshl_b32 s32, s32, 13'); t('v_lshl_add_u32 v%d, v1, 7, s32' % T0)
    if 'nopf2' not in XO: t(pf % (T0, sr(sWO, 4)))
    t('s_branch f_poE')
    t.label('f_po3')
    t.label('f_po4')
    t('s_cmp_lg_u32 s%d, 15' % sJ); t('s_cbranch_scc1 f_poE')
    t.extend(isB('f_poE'))
    t.extend(flag_ld(255, sFw)); t('s_branch f_poE')
    t.label('f_po16')
    t.extend(wo_voff(T0))
    for k in range(2): t.extend(stage_dma())
    t.extend(isB('f_poE'))
    t.extend(flag_chk(255, SV, SM)); t('s_cbranch_scc1 f_po17')
    t('s_mov_b32 s%d, 1' % sOK)
    t.extend(ldgrp(0)); t('s_branch f_poE')
    t.label('f_po17')
    t.extend(flag_ld(255, sFw))
    t.label('f_poE')
    t('s_nop 4'); t('s_setpc_b64 s[100:101]')

def epi0(a):
    a('s_cmp_eq_u32 s%d, 17' % sSt); a('s_cbranch_scc1 f_e4')
    a.extend(isB('f_e0'))
    a('s_cmp_lg_u32 s%d, 0' % sOK); a('s_cbranch_scc0 f_e2')
    a.label('f_e1')
    a.extend(ldgrp(1))
    a.label('f_e0')
def epi_tail(t):
    t.label('f_e2')
    t('s_waitcnt vmcnt(0)')
    t.extend(flag_chk(255, SV, SM)); t('s_cbranch_scc1 f_e3')
    t('s_mov_b32 s%d, 1' % sOK)
    t.extend(ldgrp(0)); t('s_branch f_e1')
    t.label('f_e3')
    t.extend(flag_ld(255, sFw)); t('s_branch f_e0')
    t.label('f_e4')
    t('s_waitcnt vmcnt(0)'); t.extend(flag_st(1, sFl1, T0, T1)); t('s_branch f_e0')

def back(a, tail, dbg):
    post(tail); epi_tail(tail)
    vX_, vY_ = 3, 4
    mk_srd(a, sOUT, P['out'], 2048 * 5120)
    a('s_and_b32 s32, s3, 3'); a('s_lshl_b32 s%d, s32, 13' % sT1); a('s_add_u32 s32, s%d, s%d' % (sT1, sXb)); a('v_add_u32 v%d, s32, v%d' % (T0, vL16))
    a('s_add_u32 s32, s32, 0x1c00'); a('v_lshl_add_u32 v%d, v1, 3, s32' % T1); a('v_lshl_add_u32 v%d, v1, 2, s32' % vX_)
    a('v_and_b32 v%d, 0xf0, v%d' % (vY_, vL16)); a('v_add_u32 v%d, s32, v%d' % (vY_, vY_))
    def xoff(f): return RG + f * 1024 if f < 8 else (f - 8) * 1024
    a('s_add_u32 s32, s%d, s3' % sHL); a('s_and_b32 s32, s32, 3'); a('s_mul_i32 s32, s32, %d' % (8 * 20480)); a('s_mul_i32 s33, s%d, 320' % sHL); a('s_add_u32 s32, s32, s33')
    a('s_add_u32 s%d, s32, 128' % sA0); a('s_mov_b32 s%d, s%d' % (sB0, sT1))
    a.extend(isB('f_B'))
    a.extend(notOK('f_a1'))
    a.extend(ldgrp(2)); a.extend(ldgrp(3))
    a.label('f_a1')
    a('ds_write_b128 v%d, %s offset:768' % (vY_, vr(L, 4)))
    for f in range(15): a('ds_write_b128 v%d, %s offset:%d' % (T0, vr(ACC + 4 * f, 4), xoff(f)))
    a(cvt(ACC + 62, ACC + 62, ACC + 63))
    a('ds_write_b64 v%d, %s' % (T1, vr(ACC + 60, 2))); a('ds_write_b32 v%d, v%d offset:512' % (vX_, ACC + 62))
    a('s_mov_b32 s%d, 2' % sEv)
    a('s_waitcnt vmcnt(24) lgkmcnt(0)'); a('s_barrier')
    if dbg: ts(a, 44)
    a.extend(quarter_dma())
    a('s_cmp_lg_u32 s%d, 0' % sOK); a('s_cbranch_scc1 f_oent')
    a('s_waitcnt vmcnt(0)')
    a('s_barrier')
    a('s_branch f_b3')
    a.label('f_B')
    a.extend(flag_ldB(14, sFw))
    a('s_waitcnt vmcnt(1)')
    a('s_barrier'); a('s_setprio 3')
    if dbg: ts(a, 44)
    lg = LG(); tg = {}
    O = TMP; S_ = 128
    a('ds_read_b128 %s, v%d offset:768' % (vr(O, 4), vY_)); tg['x'] = lg.issue()
    for f in range(15):
        a('ds_read_b128 %s, v%d offset:%d' % (vr(S_ + 4 * f, 4), T0, xoff(f))); tg[f] = lg.issue()
    a('ds_read_b64 %s, v%d' % (vr(S_ + 60, 2), T1)); lg.issue(); a('ds_read_b32 v%d, v%d offset:512' % (S_ + 63, vX_)); tg[15] = lg.issue()
    a(quarter_dma()[-1])
    lg.wait_for(a, tg['x'])
    FA = ET; FB = ET + 2
    for qt in range(2):
        m = ET + 4 + qt
        a('v_min_f32 v%d, v%d, v%d' % (m, NM + qt, O + 2 + qt))
        a('v_sub_f32 v%d, v%d, v%d' % (FA + qt, m, NM + qt)); a('v_sub_f32 v%d, v%d, v%d' % (FB + qt, m, O + 2 + qt))
        a('v_exp_f32 v%d, v%d' % (FA + qt, FA + qt)); a('v_exp_f32 v%d, v%d' % (FB + qt, FB + qt))
        a('v_mul_f32 v%d, v%d, v%d' % (m, L + qt, FA + qt)); a('v_fmac_f32 v%d, v%d, v%d' % (m, O + qt, FB + qt))
        a('v_rcp_f32 v%d, v%d' % (m, m))
        a('v_mul_f32 v%d, v%d, v%d' % (FA + qt, FA + qt, m)); a('v_mul_f32 v%d, v%d, v%d' % (FB + qt, FB + qt, m))
    for r in range(8): a('v_mul_f32 v%d, v%d, v%d' % (ACC + (r >> 2) * 8 + (r & 3), ACC + (r >> 2) * 8 + (r & 3), FA))
    if 'dfirst' in XO:
        lg.wait_for(a, tg[15])
        for k in range(2): a.extend(quarter_dma())
    a('s_add_u32 s32, s%d, 0x1000' % sCtB)
    for s in range(4):
        for qt in range(2):
            o = F(s, qt)
            for h2 in range(2):
                f = (2 * s + h2) * 2 + qt; d = ACC + 4 * f
                if s or qt:
                    for r in range(4): a('v_mul_f32 v%d, v%d, v%d' % (d + r, d + r, FA + qt))
                lg.wait_for(a, tg[f])
                if f == 15: a('v_lshlrev_b32 v%d, 16, v%d' % (S_ + 62, S_ + 63)); a('v_and_b32 v%d, 0xffff0000, v%d' % (S_ + 63, S_ + 63))
                for r in range(4): a('v_fmac_f32 v%d, v%d, v%d' % (d + r, S_ + 4 * f + r, FB + qt))
                for r in range(2): a(cvt(o + 2 * h2 + r, d + 2 * r, d + 2 * r + 1))
            a('buffer_store_dwordx4 %s, v%d, %s, s%d offen offset:%d sc1' % (vr(o, 4), vL16, sr(sCT, 4), 32 if s >= 2 else sCtB, ((s & 1) * 2 + qt) * 1024))
    if dbg: ts(a, 45)
    a('s_mov_b32 s%d, 0' % sEv)
    if 'dfirst' in XO:
        a('s_waitcnt vmcnt(8)')
        a('s_barrier')
        if dbg: ts(a, 47)
        flag_spin(a, 'f_wb', 14, sFw, SV, SM, True, flag_ldB)
        a('s_waitcnt vmcnt(%d)' % int(os.environ.get('CW', 0)))
        if dbg: ts(a, 46)
        a('s_branch f_l2')
    else:
        for k in range(2): a.extend(quarter_dma())
        a('s_waitcnt vmcnt(%d)' % (16 + int(os.environ.get('CW', 0))))
        flag_spin(a, 'f_wb', 14, sFw, SV, SM, True, flag_ldB)
        if dbg: ts(a, 46)
        for G in range(1, BG + 1): a.extend(ldgrp(G))
        a('s_waitcnt vmcnt(%d)' % (8 * BG))
        a('s_barrier')
        if dbg: ts(a, 47)
        a('s_branch f_l2')
    a.label('f_b3')
    t = tail
    t.label('f_ldB')
    for G in range(BG + 1, 4): t.extend(ldgrp(G))
    t.extend(flag_ld(15, sFY)); t('s_mov_b32 s32, 0x2000000')
    for k in range(7): t('buffer_load_dword v14, v%d, %s, s32 offen' % (vL16, sr(sCT, 4)))
    t('s_setpc_b64 s[100:101]')
    a('s_mov_b32 s%d, 0' % sEv)
    flag_spin(a, 'f_wl', 14, sFw, SV, SM)
    if dbg: ts(a, 48)
    for G in range(BG + 1): a.extend(ldgrp(G))
    a.label('f_l2')
    a('s_call_b64 s[100:101], f_ldB')
    BF = 32; OA = 64; PK = 80; vB = 3; vC = 6
    a.label('f_oent')
    a('v_lshrrev_b32 v8, 2, v1'); a('v_lshlrev_b32 v8, 6, v8'); a('v_and_b32 v9, 3, v1'); a('v_lshl_add_u32 v8, v9, 3, v8'); a('v_and_b32 v9, 16, v1')
    a('v_lshl_add_u32 v%d, v9, 1, v8' % vB); a('v_xor_b32 v%d, 32, v%d' % (vB + 1, vB))
    for c in range(2): a('v_add_u32 v%d, s%d, v%d' % (vC + c, sSlR, vB + c))
    a(ring(sSlR))
    lg = LG(); tag = {}
    def rdW(n, hf):
        n &= 31
        def f(a):
            a('ds_read_b64_tr_b16 %s, v%d offset:%d' % (vr(BF + 4 * (n & 7) + 2 * hf, 2), vC + (n & 1), (n >> 1) * 2048 + hf * 1024)); tag[n] = lg.issue()
        return f
    for n in range(15): rdW(n >> 1, n & 1)(a)
    a('s_mov_b32 s%d, 0' % sIt); a('s_add_u32 s%d, s%d, %d' % (sT1, sPo, 40960 - 1024))
    if dbg: ts(a, 49); ts(a, 57)
    a('s_setprio %d' % PR[0]); a.extend(isB('f_oloop')); a('s_setprio %d' % PR[1]); a('s_waitcnt vmcnt(32)')
    S = Sched()
    st = 'buffer_store_dwordx4 %s, v%d, %s, s%d offen sc1'
    for n in range(32):
        c, p = n & 1, n >> 1
        for qt in range(2):
            d = vr(OA + 8 * c + 4 * qt, 4)
            i = S.mfma(MF % (d, vr(F(p, qt), 4), vr(BF + 4 * (n & 7), 4), '0' if p == 0 else d))
            if qt == 0:
                if n % 8 == 0 and n:
                    S.add_pre(i, 's_cmp_lg_u32 s%d, 0\ns_cbranch_scc1 f_ow%d\ns_waitcnt vmcnt(%d)\n' % (sIt, p, 32 - n) + '\n'.join(chkgrp(n >> 3)) + '\ns_cbranch_vccnz f_rl%d\nf_ow%d:' % (p, p))
                    t.label('f_rl%d' % p); t('s_mov_b32 s%d, %d' % (sT0, SPIN))
                    t.label('f_rm%d' % p)
                    if dbg: t('v_readlane_b32 s32, v0, 57'); t('s_add_u32 s32, s32, 100'); t('v_writelane_b32 v0, s32, 57')
                    t.extend(ldgrp(n >> 3, ' sc1')); t('s_waitcnt vmcnt(0)'); t.extend(chkgrp(n >> 3)); t('s_cbranch_vccz f_ow%d' % p)
                    t('s_sub_u32 s%d, s%d, 1' % (sT0, sT0)); t('s_cmp_lg_u32 s%d, 0' % sT0); t('s_cbranch_scc1 f_rm%d' % p); t('s_branch f_ow%d' % p)
                S.add_pre(i, lambda a, n=n: lg.wait_for(a, tag[n]))
            S.add_post(i, rdW(n + 7 + qt, 1 - qt))
    for x in pack8(PK + 4, OA + 8): S.add_post(1, x)
    S.add_post(4, 's_cmp_eq_u32 s%d, 0\ns_cbranch_scc1 f_ol1\n' % sIt + st % (vr(PK + 4, 4), vL16, sr(sWS, 4), sT1) + '\nf_ol1:')
    S.add_post(6, 's_add_u32 s%d, s%d, 1024' % (sT1, sT1))
    S.add_post(48, 's_bitcmp0_b32 s%d, s%d\ns_cbranch_scc1 f_ol2\ns_waitcnt vmcnt(2)\ns_barrier\nf_ol2:' % (sEv, sIt))
    S.add_post(47, 'v_add_u32 v%d, s%d, v%d' % (vC, sSlR, vB)); S.add_post(49, 'v_add_u32 v%d, s%d, v%d' % (vC + 1, sSlR, vB + 1)); S.add_post(52, ring(sSlR))
    S.add_post(56, 's_add_u32 s%d, s%d, 1' % (sIt, sIt))
    for x in pack8(PK, OA): S.add_post(63, x)
    S.add_post(63, st % (vr(PK, 4), vL16, sr(sWS, 4), sPo) + '\ns_add_u32 s%d, s%d, 1024' % (sPo, sPo))
    if dbg == 1 and 'lts' in XO:
        S.add_post(31, 's_memtime s[100:101]\ns_add_u32 m0, s%d, 20\ns_waitcnt lgkmcnt(0)\nv_writelane_b32 v0, s100, m0' % sIt)
        S.add_post(63, 's_memtime s[100:101]\ns_add_u32 m0, s%d, 29\ns_waitcnt lgkmcnt(0)\nv_writelane_b32 v0, s100, m0' % sIt)
    a.label('f_oloop')
    S.emit(a, 0, 64)
    a('s_cmp_lt_u32 s%d, 5' % sIt); a('s_cbranch_scc1 f_oloop')
    a.extend(pack8(PK + 4, OA + 8)); a(st % (vr(PK + 4, 4), vL16, sr(sWS, 4), sT1))
    if dbg: ts(a, 50)
    a('s_waitcnt vmcnt(10)')
    a.extend(isB('f_t2'))
    a('s_setprio %d' % PR[2])
    a('v_mov_b32 v15, -1')
    def acc2(d, s, t, first):
        if first: return ['v_lshlrev_b32 v%d, 16, v%d' % (d, s), 'v_and_b32 v%d, 0xffff0000, v%d' % (d + 1, s)]
        return ['v_lshlrev_b32 v%d, 16, v%d' % (t, s), 'v_and_b32 v%d, 0xffff0000, v%d' % (s, s), 'v_add_f32 v%d, v%d, v%d' % (d, d, t), 'v_add_f32 v%d, v%d, v%d' % (d + 1, d + 1, s)]
    YI = int(os.environ.get('YI', 6))
    a('s_movk_i32 s32, 0x%x' % (0x1e | (1 << YI))); a('s_bitcmp0_b32 s32, s%d' % sI); a('s_cbranch_scc1 f_t1')
    a('s_lshr_b32 s91, s2, 3'); a('s_cmp_eq_u32 s%d, %d' % (sI, YI)); a('s_cselect_b32 s91, s%d, s91' % sHL)
    sXS = sBA; sYa = (70, 71); sM, sYc, sYw, sYh = 72, 73, 74, 66
    mk_srd(a, sXS, P['A_x'], 2048 * 1280)
    XR = (96, 112); vXo = (16, 17); vDs = (18, 19); vYo = (20, 21); vFy = (22, 23)
    for e in range(2):
        a('s_lshl_b32 s32, s91, 2'); a('s_add_u32 s32, s32, s3'); a('s_lshl_b32 s32, s32, 1'); a('s_add_u32 s%d, s32, %d' % (sM, e))
        a('s_mul_i32 s32, s%d, 13108' % sM); a('s_lshr_b32 s32, s32, 16'); a('s_mul_i32 s33, s32, 5'); a('s_sub_u32 s%d, s%d, s33' % (sYc, sM))
        a('s_and_b32 s%d, s32, 7' % sYw); a('s_lshr_b32 s%d, s32, 3' % sYh)
        a('s_lshl_b32 s33, s%d, 5' % sX_); a('s_add_u32 s32, s32, s33')
        a('s_mul_i32 s32, s32, 30720'); a('s_lshl_b32 s33, s%d, 11' % sYc); a('s_add_u32 s32, s32, s33'); a('s_add_u32 s%d, s32, 0x%x' % (sYa[e], PY0))
        a('s_mul_i32 s32, s%d, 160' % sYh); a('s_and_b32 s33, s%d, 1' % sYw); a('s_mul_i32 s33, s33, 80'); a('s_add_u32 s32, s32, s33'); a('s_lshl_b32 s33, s%d, 4' % sYc); a('s_add_u32 s32, s32, s33')
        a('v_and_b32 v8, 15, v1'); a('v_add_u32 v8, s32, v8')
        a('s_lshl_b32 s32, s%d, 8' % sX_); a('s_lshr_b32 s33, s%d, 1' % sYw); a('s_lshl_b32 s33, s33, 6'); a('s_add_u32 s32, s32, s33')
        a('v_lshrrev_b32 v9, 4, v1'); a('v_lshl_add_u32 v9, v9, 2, s32'); a('v_mul_u32_u24 v9, 640, v9')
        a('v_add_lshl_u32 v%d, v9, v8, 1' % vXo[e]); a('v_lshl_add_u32 v9, v9, 1, v8'); a('v_lshlrev_b32 v%d, 2, v9' % vYo[e]); a('v_lshlrev_b32 v8, 1, v8')
        a('global_load_ushort v%d, v8, %s' % (vDs[e], sr(P['Dskip'], 2)))
        for q in range(4):
            a('s_mov_b32 s32, %d' % (q * 16 * 1280))
            for r in range(4): a('buffer_load_ushort v%d, v%d, %s, s32 offen offset:%d' % (XR[e] + 4 * q + r, vXo[e], sr(sXS, 4), r * 1280))
    YL = (128, 160); YS = (32, 48)
    for e in range(2):
        for p in range(3):
            for k in range(2): a('buffer_load_dwordx4 %s, v%d, %s, s%d offen offset:%d' % (vr(YL[e] + (p * 2 + k) * 4, 4), vL16, sr(sWS, 4), sYa[e], k * 1024))
            if p < 2: a('s_add_u32 s%d, s%d, 10240' % (sYa[e], sYa[e]))
    a('s_waitcnt vmcnt(46)')
    a.extend(flag_st(2, sFl1, 8, 9))
    a('s_waitcnt vmcnt(13)')
    for e in range(2):
        a('v_lshlrev_b32 v%d, 16, v%d' % (vDs[e], vDs[e]))
        for k in range(16): a('v_lshlrev_b32 v%d, 16, v%d' % (XR[e] + k, XR[e] + k)); a('v_mul_f32 v%d, v%d, v%d' % (XR[e] + k, XR[e] + k, vDs[e]))
        for k in range(8): a(cvt(XR[e] + k, XR[e] + 2 * k, XR[e] + 2 * k + 1)); a.extend(acc2(YS[e] + 2 * k, XR[e] + k, 8, True))
    for e in range(2):
        for p in range(3):
            a('s_waitcnt vmcnt(%d)' % ((11 - 2 * p) if e == 0 else (21 - 2 * p)))
            for k in range(8): a.extend(acc2(YS[e] + 2 * k, YL[e] + p * 8 + k, 8 + (k & 1), False))
        for q in range(4):
            for r in range(4):
                a('s_mov_b32 s32, %d' % ((q * 16 + r) * 5120)); a('buffer_store_dword v%d, v%d, %s, s32 offen' % (YS[e] + 4 * q + r, vYo[e], sr(sOUT, 4)))
    a('s_branch f_t2')
    a.label('f_t1')
    a('s_waitcnt vmcnt(0)')
    a.extend(flag_st(2, sFl1, 8, 9))
    a.label('f_t2')
    if dbg: ts(a, 54)
    sIn, sOb, sR = 66, 67, 68
    vO1, vO2, vG1, vG2 = 10, 11, 12, 13
    a('s_mul_i32 s%d, s2, 40960' % sIn); a('s_and_b32 s%d, s3, 3' % sR); a('s_cmp_lt_u32 s3, 4'); a('s_cselect_b32 s%d, 2, 1' % sVal)
    a('s_add_u32 s32, s%d, 0x%x' % (sIn, PB0)); a('s_sub_u32 s33, 15, s%d' % sI); a('s_cmp_lt_u32 s3, 4'); a('s_cselect_b32 s%d, s%d, s32' % (sIn, sIn)); a('s_cselect_b32 s%d, s%d, s33' % (sBlk, sBlk))
    a('s_lshl_b32 s32, s%d, 10' % sR); a('v_add_u32 v%d, s32, v%d' % (vG1, vL16))
    a('s_lshl_b32 s32, s%d, 8' % sR); a('s_add_u32 s32, s32, 0x1000'); a('v_lshl_add_u32 v%d, v1, 2, s32' % vG2)
    flag_spin(a, 'f_wa', 15, sFY, SV, 0xff, True)
    if dbg: ts(a, 55)
    G1 = 32; G2 = 64; R1 = 96
    a('s_mov_b32 s%d, %d' % (sT0, SPIN))
    a.label('f_ga')
    for s in range(8):
        a('s_add_u32 s32, s%d, %d' % (sIn, s * 5120))
        a('buffer_load_dwordx4 %s, v%d, %s, s32 offen sc1' % (vr(G1 + 4 * s, 4), vG1, sr(sWS, 4)))
        a('buffer_load_dword v%d, v%d, %s, s32 offen sc1' % (G2 + s, vG2, sr(sWS, 4)))
    a('v_lshrrev_b32 v8, 4, v1'); a('v_mul_u32_u24 v8, %d, v8' % (4 * 5120)); a('v_and_b32 v9, 15, v1'); a('s_lshl_b32 s32, s%d, 7' % sR); a('v_lshl_add_u32 v9, v9, 2, s32'); a('v_add_u32 v%d, v8, v9' % vO1)
    a('v_bfe_u32 v8, v1, 1, 1'); a('v_and_b32 v9, 1, v1'); a('v_lshl_add_u32 v8, v8, 3, v9'); a('s_lshl_b32 s32, s%d, 2' % sR); a('v_lshl_add_u32 v8, v8, 1, s32'); a('v_mul_u32_u24 v8, 5120, v8')
    a('v_and_b32 v9, 0xfc, v1'); a('s_movk_i32 s32, 512'); a('v_add3_u32 v%d, v8, v9, s32' % vO2)
    a('s_lshl_b32 s32, s%d, 2' % sBlk); a('s_lshr_b32 s33, s%d, 1' % sX_); a('s_add_u32 s32, s32, s33'); a('s_mul_i32 s%d, s32, %d' % (sOb, 32 * 5120))
    a('s_mul_i32 s32, s%d, 640' % sHL); a('s_and_b32 s33, s%d, 1' % sX_); a('s_lshl_b32 s33, s33, 6'); a('s_add_u32 s32, s32, s33'); a('s_add_u32 s32, s32, 2560'); a('s_add_u32 s%d, s%d, s32' % (sOb, sOb))
    for s in range(8):
        a('s_waitcnt vmcnt(%d)' % (14 - 2 * s))
        g = G1 + 4 * s
        a('v_max3_u32 v9, v%d, v%d, v%d' % (g, g + 1, g + 2)); a('v_max3_u32 v9, v9, v%d, v%d' % (g + 3, G2 + s))
        a('v_mov_b32 v8, v9' if s == 0 else 'v_max_u32 v8, v8, v9')
        for k in range(4): a.extend(acc2(R1 + 2 * k, g + k, 16 + (k & 1), s == 0))
        a.extend(acc2(R1 + 8, G2 + s, 18, s == 0))
    a('v_cmp_eq_u32 vcc, -1, v8'); a('s_cbranch_vccz f_ga_d')
    a('s_sleep 2')
    a('s_sub_u32 s%d, s%d, 1' % (sT0, sT0)); a('s_cmp_lg_u32 s%d, 0' % sT0); a('s_cbranch_scc1 f_ga')
    a.label('f_ga_d')
    if dbg: ts(a, 56)
    for k, row in enumerate([(k >> 2) * 16 + (k & 3) for k in range(8)] + [0, 1]):
        a('s_add_u32 s32, s%d, %d' % (sOb, row * 5120)); a('buffer_store_dword v%d, v%d, %s, s32 offen' % (R1 + k, vO1 if k < 8 else vO2, sr(sOUT, 4)))
```

```python
from h_front import *
PUB = 131072; XL = 159744
vK, vV, T0, T1, L, NM, BS = 3, 4, 6, 7, 8, 10, 12
ET = 16; TMP = 24; SS = 160; PP = 192; C = 208; QB = 224
sCT = 4
NINF = '0xff800000'
def tile(qt, dt): return ACC + (dt * 2 + qt) * 4
def qf(s, qt): return Q + (s * 2 + qt) * 4
sPost = 75
def attention(a, tail, dbg, setup, hooks, epi0):
    QA = TMP + 3
    a('s_and_b32 s32, s3, 3'); a('s_lshl_b32 s32, s32, 13'); a('s_add_u32 s32, s32, 0x%x' % WR); a('v_add_u32 v%d, s32, v%d' % (QA, vL16))
    a('s_cmp_ge_u32 s3, 4'); a('s_cbranch_scc1 k2_nopub')
    for f in range(8): a('ds_write_b128 v%d, %s offset:%d' % (QA, vr(Q + 4 * f, 4), f * 1024))
    a.label('k2_nopub')
    a('v_mov_b32 v%d, v%d' % (vK, vL16))
    def late(a):
        for r in range(16): a('v_mov_b32 v%d, 0' % (C + r))
        a('v_mov_b32 v%d, 0' % L); a('v_mov_b32 v%d, 0' % (L + 1))
        a('v_and_b32 v%d, 15, v1' % TMP); a('v_lshrrev_b32 v%d, 4, v1' % (TMP + 1)); a('v_lshlrev_b32 v%d, 2, v%d' % (TMP + 1, TMP + 1))
        for r in range(4):
            a('v_add_u32 v%d, %d, v%d' % (TMP + 2, r, TMP + 1)); a('v_cmp_gt_u32 %s, v%d, v%d' % (sr(sMsk + 2 * r, 2), TMP + 2, TMP))
        a('s_and_b32 s32, s3, 3'); a('s_lshl_b32 s32, s32, 9'); a('s_add_u32 s32, s32, 0x%x' % PUB)
        a('v_lshl_add_u32 v%d, v1, 3, s32' % vPub)
        mk_srd(a, sCT, P['ws'], 16 << 20, WS_CTX)
    a('s_waitcnt lgkmcnt(0)'); a('s_barrier')
    if dbg: ts(a, 42)

    def st(b, kt, qt): return SS + b * 16 + (kt * 2 + qt) * 4
    def ct(kt, qt): return C + (kt * 2 + qt) * 4
    def pf(b, qt): return PP + b * 8 + qt * 4
    def sm_items(b):
        o = []
        for p in range(8):
            kt, qt, hf = p >> 2, (p >> 1) & 1, p & 1
            sreg = st(b, kt, qt) + 2 * hf; e = ET + 2 * (p & 3); G = 10 + 4 * p; bs = BS + 2 * b + qt
            o += [(G, 'v_exp_f32 v%d, v%d' % (e, sreg)), (G + 2, 'v_exp_f32 v%d, v%d' % (e + 1, sreg + 1)),
                  (G + 3, cvt(pf(b, qt) + 2 * kt + hf, e, e + 1))]
            if p in (0, 2): o += [(G + 4, 'v_add_f32 v%d, v%d, v%d' % (bs, e, e + 1))]
            else: o += [(G + 4, 'v_add_f32 v%d, v%d, v%d' % (e, e, e + 1)), (G + 5, 'v_add_f32 v%d, v%d, v%d' % (bs, bs, e))]
        o.sort(key=lambda x: x[0])
        return o
    def sm(b, lo, hi): return [t for g, t in sm_items(b) if lo <= g < hi]
    def xg(op, x, t):
        return ['v_mov_b32 v%d, v%d' % (t, x), 'v_permlane16_swap_b32 v%d, v%d' % (x, t), '%s v%d, v%d, v%d' % (op, x, x, t),
                'v_mov_b32 v%d, v%d' % (t, x), 'v_permlane32_swap_b32 v%d, v%d' % (x, t), '%s v%d, v%d, v%d' % (op, x, x, t)]
    def blockmax(b, qt, x, t):
        s0, s1 = st(b, 0, qt), st(b, 1, qt)
        return ['v_max3_f32 v%d, v%d, v%d, v%d' % (x, s0, s0 + 1, s0 + 2), 'v_max3_f32 v%d, v%d, v%d, v%d' % (t, s0 + 3, s1, s1 + 1),
                'v_max3_f32 v%d, v%d, v%d, v%d' % (x, x, s1 + 2, s1 + 3), 'v_max_f32 v%d, v%d, v%d' % (x, x, t)] + xg('v_max_f32', x, t)
    def patch(name, sreg):
        t = tail
        t.label(name)
        t('s_cmp_eq_u32 %s, s%d' % (sreg, sD)); t('s_cbranch_scc1 %s_tri' % name)
        for r in range(16): t('v_mov_b32 v%d, %s' % (C + r, NINF))
        t('s_branch %s_ret' % name)
        t.label(name + '_tri')
        t('v_mov_b32 v%d, %s' % (T0, NINF))
        for r in range(4):
            t('v_mov_b32 v%d, %s' % (ct(1, 0) + r, NINF))
            for k in range(2): t('v_cndmask_b32 v%d, v%d, v%d, %s' % (ct(k, k) + r, ct(k, k) + r, T0, sr(sMsk + 2 * r, 2)))
        t('s_branch %s_ret' % name)
        return ['s_cmp_ge_u32 %s, s%d' % (sreg, sD), 's_cbranch_scc1 %s\n%s_ret:' % (name, name)]
    def slow(name, b, bnd=False):
        t = tail
        t.label(name)
        ND = TMP; F = TMP + 2
        for qt in range(2):
            t.extend(blockmax(b, qt, ND + qt, TMP + 4 + qt))
            t('v_max_f32 v%d, 0, v%d' % (ND + qt, ND + qt)); t('v_xor_b32 v%d, 0x80000000, v%d' % (ND + qt, ND + qt))
            t('v_exp_f32 v%d, v%d' % (F + qt, ND + qt))
        for kt in range(2):
            for qt in range(2):
                for r in range(4): t('v_add_f32 v%d, v%d, v%d' % (st(b, kt, qt) + r, st(b, kt, qt) + r, ND + qt))
        for dt in range(8):
            for qt in range(2):
                for r in range(4): t('v_mul_f32 v%d, v%d, v%d' % (tile(qt, dt) + r, tile(qt, dt) + r, F + qt))
        for qt in range(2):
            t('v_mul_f32 v%d, v%d, v%d' % (L + qt, L + qt, F + qt))
        t.extend(sm(b, 0, 99))
        if bnd: t('s_cmp_ge_u32 s3, 4'); t('s_cbranch_scc1 %s_r2' % name)
        for kt in range(2):
            for qt in range(2):
                for r in range(4):
                    t('v_add_f32 v%d, v%d, v%d' % (st(1 - b, kt, qt) + r, st(1 - b, kt, qt) + r, ND + qt))
                    t('v_add_f32 v%d, v%d, v%d' % (ct(kt, qt) + r, ct(kt, qt) + r, ND + qt))
        for qt in range(2): t('v_add_f32 v%d, v%d, v%d' % (NM + qt, NM + qt, ND + qt))
        t.label(name + '_r2')
        t.extend(sm(1 - b, 0, 16))
        t('s_branch %s_ret' % name)
        return (['v_add_f32 v%d, v%d, v%d' % (T1, BS + 2 * b, BS + 2 * b + 1), 'v_cmp_nge_f32 vcc, s%d, v%d' % (sThr, T1)], 's_cbranch_vccnz %s\n%s_ret:' % (name, name))
    def ladd(b): return ['v_add_f32 v%d, v%d, v%d' % (L + qt, L + qt, BS + 2 * b + qt) for qt in range(2)]
    def qk(b, s, kt, qt):
        d = vr(st(b, kt, qt), 4)
        return MF % (d, vr(FR + (kt * 4 + s) * 4, 4), vr(qf(s, qt), 4), vr(ct(kt, qt), 4) if s == 0 else d)
    def pv(b, dt, qt):
        d = vr(tile(qt, dt), 4)
        return MF % (d, vr(FR + dt * 4, 4), vr(pf(b, qt), 4), d)
    def rdtxt(isK, b, f):
        return 'ds_read_b128 %s, v%d offset:%d' % (vr(FR + 4 * f, 4), vK if isK else vV, b * 8192 + f * 1024)

    t = tail
    t.label('f_hook')
    t('s_cmp_ge_u32 s%d, s%d' % (sRdy, sLim)); t('s_cbranch_scc1 f_hk_kv')
    t.extend(rdy_calc(vFl))
    t('s_add_u32 s%d, s%d, 0x10000' % (sPub, sKsrc)); t('s_min_u32 s%d, s%d, s%d' % (sPub, sPub, sLim))
    t('s_cmp_ge_u32 s%d, s%d' % (sRdy, sPub)); t('s_cbranch_scc1 f_hk_ok')
    t('s_mov_b32 vcc_lo, %d' % SPIN)
    t.label('f_hk_l')
    t('s_sleep 8'); t(rdy_load(vFl, T0)); t('s_waitcnt vmcnt(0)'); t.extend(rdy_calc(vFl))
    t('s_cmp_ge_u32 s%d, s%d' % (sRdy, sPub)); t('s_cbranch_scc1 f_hk_ok')
    t('s_sub_u32 vcc_lo, vcc_lo, 1'); t('s_cmp_lg_u32 vcc_lo, 0'); t('s_cbranch_scc1 f_hk_l')
    t.label('f_hk_ok')
    t('s_cmp_ge_u32 s%d, s%d' % (sRdy, sLim)); t('s_cbranch_scc1 f_hk_kv')
    t('s_sub_u32 s32, s%d, s%d' % (sRdy, sKsrc)); t('s_lshr_b32 s32, s32, 16'); t('s_sub_u32 s32, s32, 2'); t('s_max_i32 s32, s32, 1')
    t('s_add_u32 s33, s%d, s32' % sJ); t('s_bitset1_b32 s%d, s33' % sHook)
    t('s_cmp_gt_u32 s32, 1'); t('s_cbranch_scc1 f_hk_kv')
    t(rdy_load(vFl, T0))
    t.label('f_hk_kv')
    hooks(t)
    t('s_nop 4')
    t('s_setpc_b64 s[100:101]')

    for f in range(8): a(rdtxt(True, 0, f))
    late(a)
    a.extend(patch('k2_p0', 's%d' % sN))
    su = Asm(); setup(su); su = list(su.lines)
    n0 = int(os.environ.get('SU0', 56))
    a.extend(su[:n0]); su = su[n0:]
    a('s_waitcnt lgkmcnt(0)')
    k = 0
    for kt in range(2):
        for s in range(4):
            for qt in range(2):
                a(qk(0, s, kt, qt))
                for r in range(4): a('v_mov_b32 v%d, 0' % (ACC + 4 * k + r))
                a.extend(su[len(su) * k // 16:len(su) * (k + 1) // 16])
                k += 1
            a(rdtxt(True, 1, kt * 4 + s))
    a('s_cmp_lt_u32 s3, 4'); a('s_cbranch_scc1 k2_noqb')
    for f in range(8): a('ds_read_b128 %s, v%d offset:%d' % (vr(QB + 4 * f, 4), QA, f * 1024))
    a.label('k2_noqb')
    for qt in range(2):
        a.extend(blockmax(0, qt, NM + qt, TMP + qt)); a('v_xor_b32 v%d, 0x80000000, v%d' % (NM + qt, NM + qt))
    a('s_cmp_ge_u32 s3, 4'); a('s_cbranch_scc1 k2_nopub2')
    a('ds_write_b64 v%d, %s' % (vPub, vr(NM, 2)))
    a.label('k2_nopub2')
    for qt in range(2):
        for kt in range(2):
            for r in range(4): a('v_add_f32 v%d, v%d, v%d' % (st(0, kt, qt) + r, st(0, kt, qt) + r, NM + qt))
    a.extend(sm(0, 0, 32))
    for qt in range(2):
        for kt in range(2):
            for r in range(4): a('v_add_f32 v%d, v%d, v%d' % (ct(kt, qt) + r, ct(kt, qt) + r, NM + qt))
    a('s_mov_b32 s33, 1')
    a.extend(patch('k2_p1', 's33'))
    a('s_waitcnt lgkmcnt(0)')
    a('s_branch k2_h3_1')

    lg = LG(); tagF = {}
    def x2(t):
        for qt in range(2):
            t.extend(xg('v_add_f32', L + qt, TMP + qt)); t('v_rcp_f32 v%d, v%d' % (TMP + 2 + qt, L + qt))
        for qt in range(2): t('v_mov_b32 v%d, 0' % (L + qt))
        t('s_add_u32 s32, s%d, 0x1000' % sCtA)
        for s in range(4):
            for qt in range(2):
                o = QB + (s * 2 + qt) * 4
                for h2 in range(2):
                    d = tile(qt, 2 * s + h2)
                    for r in range(4): t('v_mul_f32 v%d, v%d, v%d' % (d + r, d + r, TMP + 2 + qt))
                    for r in range(2): t(cvt(o + 2 * h2 + r, d + 2 * r, d + 2 * r + 1))
                    for r in range(4): t('v_mov_b32 v%d, 0' % (d + r))
                t('buffer_store_dwordx4 %s, v%d, %s, s%d offen offset:%d sc1' % (vr(o, 4), vL16, sr(sCT, 4), 32 if s >= 2 else sCtA, ((s & 1) * 2 + qt) * 1024))
    gid = [0]
    def unit(isV, guard=False):
        m0, src = (sVm0, sVsrc) if isV else (sKm0, sKsrc)
        ld = lambda i: 'buffer_load_dwordx4 v%d, %s, s%d offen offset:%d lds' % (vKS, sr(sKV, 4), src, i * 1024)
        pre = ['s_and_b32 m0, s%d, 0xffff' % m0] + (['s_bitset1_b32 m0, 16'] if isV else [])
        o = ['\n'.join(pre + ['s_add_u32 s%d, s%d, 0x4000' % (m0, m0), ld(0)]), ld(1) + '\ns_add_u32 s%d, s%d, 0x8000' % (src, src)]
        if guard or not isV:
            for k in range(2):
                gid[0] += 1
                o[k] = 's_cmp_ge_u32 s%d, s%d\ns_cbranch_scc1 f_g%d\n%s\nf_g%d:' % (src, sLim, gid[0], o[k], gid[0])
        return o
    def body(a, kind):
        S = Sched()
        def rd(isK, b, f):
            def g(a):
                a(rdtxt(isK, b, f)); tagF[f] = lg.issue()
            return g
        for H in range(4):
            for f in range(8):
                for qt in range(2):
                    i = S.mfma(qk(H >> 1, f & 3, f >> 2, qt) if H % 2 == 0 else pv(1 if H == 1 else 0, f, qt))
                    if qt == 0 and f % 4 == 0: S.add_pre(i, lambda a, f=f: lg.wait_for(a, tagF[f + 3]) if f + 3 in tagF else None)
        S.add_pre(32, 'k2_h3_%s:' % kind)
        def bar(a):
            a('s_waitcnt vmcnt(0) lgkmcnt(0)'); lg.done = lg.n
            a('s_bitcmp0_b32 s%d, s%d' % (sHook, sJ)); a('s_cbranch_scc1 f_hr_%s' % kind)
            a('s_call_b64 s[100:101], f_hook')
            a('f_hr_%s:' % kind)
            a('s_barrier'); a('s_setprio 3')
            a('s_bitcmp0_b32 s%d, s%d' % (sPost, sJ)); a('s_cbranch_scc1 f_pr_%s' % kind)
            a('s_call_b64 s[100:101], f_post')
            a('f_pr_%s:' % kind)
        S.add_post(35, bar)
        for q, g in enumerate((61, 17, 29)): S.add_post(g, 's_setprio %d' % (2 - q))
        for f in range(8):
            o = 2 * f + 1
            S.add_post(o, rd(False, 1, f)); S.add_post(16 + o, rd(True, 1, f))
            S.add_post(max(35, 32 + o), rd(False, 0, f)); S.add_post(48 + o, rd(True, 0, f) if kind != 'e' else rd(False, 1, f))
        for b in range(2):
            for g, t in sm_items(b): S.add_post((32 * b + g) % 64, t)
        S.add_post(52, ladd(0)[0]); S.add_post(52, ladd(0)[1])
        if kind == 'e':
            S.emit(a, 48, 64); return
        if kind == 'w':
            S.emit(a, 48, 64); S.emit(a, 0, 48); return
        pa = patch('k2_pa' + kind, 's%d' % sN); pb = patch('k2_pb' + kind, 's33')
        ca, bra = slow('k2_sa' + kind, 0); cb, brb = slow('k2_sb' + kind, 1, kind == '2f')
        S.add_post(48, 's_and_b32 s32, s%d, 7\ns_lshl_b32 s32, s32, 13\nv_add_u32 v%d, s32, v%d' % (sN, vK, vL16))
        S.add_post(56, pa[0]); S.add_post(56, pa[1])
        S.add_post(12, cb[0]); S.add_post(13, cb[1]); S.add_post(15, brb)
        S.add_post(16, ladd(1)[0]); S.add_post(16, ladd(1)[1])
        S.add_post(20, 's_add_u32 s33, s%d, 1' % sN); S.add_post(20, pb[0]); S.add_post(20, pb[1])
        S.add_post(33, 'v_add_u32 v%d, 0x10000, v%d' % (vV, vK))
        if kind == '2f':
            S.add_post(36, 's_cmp_lt_u32 s3, 4\ns_cbranch_scc1 k2_x2_skip'); S.add_post(36, x2); S.add_post(36, 'k2_x2_skip:')
        early = unit(True) + unit(False) + (unit(False) if kind == '2' else [])
        pos = (48, 54, 60, 0, 6, 12) if kind == '2' else (50, 58, 2, 10)
        for g, t in zip(pos, early): S.add_post(g, t)
        if kind != '1':
            for g, t in zip((37, 42), unit(True, True)): S.add_post(g, t)
        S.add_post(44, ca[0]); S.add_post(45, ca[1])
        S.add_post(46, 's_add_u32 s%d, s%d, %d' % (sN, sN, 2 if kind == '1' else 4)); S.add_post(46, 's_add_u32 s%d, s%d, 1' % (sJ, sJ))
        S.add_post(47, bra)
        S.emit(a, 48, 64); S.emit(a, 0, 48)
    body(Asm(), 'w')
    a.label('k2_loop1')
    body(a, '1')
    a('s_cmp_lt_u32 s%d, s%d' % (sJ, sJ1)); a('s_cbranch_scc1 k2_loop1')
    a('s_cmp_lt_u32 s3, 4'); a('s_cbranch_scc1 k2_x1_skip')
    a('ds_read_b64 %s, v%d' % (vr(NM, 2), vPub))
    a('s_add_u32 s%d, s%d, 2' % (sN, sN)); a('s_mov_b32 s%d, s%d' % (sD, sDq))
    for r in range(32): a('v_mov_b32 v%d, v%d' % (Q + r, QB + r))
    a('s_waitcnt lgkmcnt(0)')
    for kt in range(2):
        for qt in range(2):
            for r in range(4): a('v_mov_b32 v%d, v%d' % (ct(kt, qt) + r, NM + qt))
    a.label('k2_x1_skip')
    body(a, '2f')
    a('s_cmp_ge_u32 s%d, 17' % sJ); a('s_cbranch_scc1 k2_done')
    a.label('k2_loop2')
    body(a, '2')
    a('s_cmp_lt_u32 s%d, 17' % sJ); a('s_cbranch_scc1 k2_loop2')
    a.label('k2_done')
    body(a, 'e')
    if dbg: ts(a, 43)
    epi0(a)
    a.extend(sm(1, 32, 99))
    ce, bre = slow('k2_se', 1)
    a.extend(ce); a(bre)
    a('s_waitcnt lgkmcnt(0)')
    for dt in range(8):
        for qt in range(2): a(pv(1, dt, qt))
        if dt == 0: a.extend(ladd(1))
        if dt in (1, 2): a.extend(xg('v_add_f32', L + dt - 1, TMP + dt))
```

```python
from h_att import *
RG = 32768
sBA, sBB, sOUT, sWS, sWO = 8, 12, 16, 20, 28
sSt, sEv, sSlR, sSlW, sA0, sB0, sAs, sBs, sDl = 66, 67, 68, 69, 70, 71, 72, 73, 74
sT0, sT1, sFl1, sFw = 76, 77, 78, 79
sPo, sQ, sFY, sOK, sXb, sIt, sMk, sVal, sBlk = 82, 83, 84, 85, 86, 87, 88, 89, 90
vD = 5
DUMMY = 0x21000
BG = int(os.environ.get('BG', 1))
PR = [int(c) for c in os.environ.get('PR', '110')]
def isN(lbl): return ['s_cmp_ge_u32 s2, 160', 's_cbranch_scc1 ' + lbl]
def notOK(lbl): return ['s_cmp_eq_u32 s%d, 0' % sOK, 's_cbranch_scc1 ' + lbl]
def isA(lbl): return ['s_cmp_lt_u32 s3, 4', 's_cbranch_scc1 ' + lbl]
def isB(lbl): return ['s_cmp_ge_u32 s3, 4', 's_cbranch_scc1 ' + lbl]
def srd_off(s, ptr, size, soff):
    return ['s_add_u32 s%d, s%d, %s' % (s, ptr, soff), 's_addc_u32 s%d, s%d, 0' % (s + 1, ptr + 1), 's_and_b32 s%d, s%d, 0xffff' % (s + 1, s + 1),
            's_mov_b32 s%d, 0x%x' % (s + 2, size), 's_mov_b32 s%d, 0x00020000' % (s + 3)]
def F(p, qt): return (224 + 8 * p if p < 4 else 128 + 8 * (p - 4)) + 4 * qt
def ldgrp(G, sc=''):
    o = ['s_add_u32 s32, s%d, %d' % (sHL, G), 's_and_b32 s32, s32, 3', 's_lshl_b32 s32, s32, 13', 's_add_u32 s32, s32, s%d' % sQ, 's_add_u32 s33, s32, 0x1000']
    for s in range(4):
        for qt in range(2):
            o.append('buffer_load_dwordx4 %s, v%d, %s, s%d offen offset:%d%s' % (vr(F(4 * G + s, qt), 4), vL16, sr(sCT, 4), 32 + (s >> 1), (s & 1) * 2048 + qt * 1024, sc))
    return o
def chkgrp(G):
    b = F(4 * G, 0)
    o = ['v_max3_u32 v8, v%d, v%d, v%d' % (b, b + 1, b + 2), 'v_max3_u32 v9, v%d, v%d, v%d' % (b + 3, b + 4, b + 5)]
    for k in range(13): o.append('v_max3_u32 v%d, v%d, v%d, v%d' % (8 + (k & 1), 8 + (k & 1), b + 6 + 2 * k, b + 7 + 2 * k))
    return o + ['v_max_u32 v8, v8, v9', 'v_cmp_eq_u32 vcc, -1, v8']
def wo_params():
    o = ['s_mov_b64 s[%d:%d], s[%d:%d]' % (d + k, d + k + 1, sWO + k, sWO + k + 1) for d in (sBA, sBB) for k in (0, 2)]
    o += ['s_lshl_b32 s32, s%d, 2' % sHL, 's_add_u32 s32, s32, s3', 's_and_b32 s33, s32, 15', 's_mul_i32 s%d, s33, 40960' % sA0, 's_xor_b32 s33, s33, 8', 's_mul_i32 s%d, s33, 40960' % sB0,
          's_mul_i32 s32, s%d, 320' % sHL, 's_add_u32 s%d, s%d, s32' % (sA0, sA0), 's_add_u32 s%d, s%d, s32' % (sB0, sB0),
          's_movk_i32 s%d, 64' % sAs, 's_movk_i32 s%d, 64' % sBs, 's_movk_i32 s%d, 19456' % sDl]
    return o
def wo_voff(t):
    if 'e3' in XO: return ['v_lshlrev_b32 v%d, 4, v1' % vD]
    return ['v_lshrrev_b32 v%d, 3, v1' % t, 'v_and_b32 v%d, 2, v%d' % (t, t), 'v_xor_b32 v%d, v%d, v1' % (t, t), 'v_and_b32 v%d, 3, v%d' % (t, t),
            'v_lshrrev_b32 v%d, 2, v1' % vD, 'v_mul_u32_u24 v%d, 1280, v%d' % (vD, vD), 'v_lshl_add_u32 v%d, v%d, 4, v%d' % (vD, t, vD)]
def ring(s): return 's_sub_u32 s%d, s%d, 0x%x\ns_cselect_b32 s%d, 0x%x, s%d' % (s, s, RG, s, 4 * RG, s)
def stage_dma():
    ld = 'buffer_load_dwordx4 v%d, %s, s%d offen offset:%d lds'
    return ['s_add_u32 m0, s%d, s%d\n' % (sSlW, sWl) + ld % (vD, sr(sBA, 4), sA0, 0),
            's_add_u32 s%d, s%d, s%d\n' % (sT0, sA0, sDl) + ld % (vD, sr(sBA, 4), sT0, 1024),
            's_add_u32 m0, m0, 0x4000\n' + ld % (vD, sr(sBB, 4), sB0, 0),
            's_add_u32 s%d, s%d, s%d\n' % (sT0, sB0, sDl) + ld % (vD, sr(sBB, 4), sT0, 1024),
            's_add_u32 s%d, s%d, s%d\ns_add_u32 s%d, s%d, s%d\n' % (sA0, sA0, sAs, sB0, sB0, sBs) + ring(sSlW)]
def quarter_dma():
    o = []
    for d in range(8):
        pre = ''
        if d == 0: pre = 's_add_u32 m0, s%d, s%d\n' % (sSlW, sB0)
        if d == 4: pre = 's_add_u32 m0, m0, 0x1000\n'
        if d: pre += 's_add_u32 s%d, s%d, %d\n' % (sT0, sA0, d * 20480 - (d & 3) * 1024)
        o.append(pre + 'buffer_load_dwordx4 v%d, %s, s%d offen offset:%d lds' % (vD, sr(sBA, 4), sT0 if d else sA0, (d & 3) * 1024))
    return o + ['s_add_u32 s%d, s%d, 64\n' % (sA0, sA0) + ring(sSlW)]
def flag_st(val, saddr, va, vb):
    return ['v_lshlrev_b32 v%d, 26, v1' % va, 'v_mov_b32 v%d, %s' % (vb, val), 'buffer_store_dword v%d, v%d, %s, s%d offen sc1' % (vb, va, sr(sWS, 4), saddr)]
def flag_ld(vf, saddr):
    return ['v_and_b32 v%d, 7, v1' % vf, 'v_lshlrev_b32 v%d, 2, v%d' % (vf, vf), 'buffer_load_dword v%d, v%d, %s, s%d offen sc1' % (vf, vf, sr(sWS, 4), saddr)]
def flag_ldB(vf, saddr):
    return ['v_and_b32 v%d, 3, v1' % vf, 'v_lshlrev_b32 v%d, 9, v%d' % (vf, vf), 'buffer_load_dword v%d, v%d, %s, s%d offen sc1' % (vf, vf, sr(sWS, 4), saddr)]
def flag_chk(vf, val, mask):
    return ['v_cmp_gt_i32 vcc, %s, v%d' % (val, vf), 's_and_b32 s33, vcc_lo, %s' % mask]
def flag_spin(t, name, vf, saddr, val, mask, loaded=False, flag_ld=flag_ld):
    t('s_mov_b32 s32, %d' % SPIN)
    if loaded: t('s_branch %s_c' % name)
    t.label(name + '_l')
    t.extend(flag_ld(vf, saddr)); t('s_waitcnt vmcnt(0)')
    t.label(name + '_c')
    t.extend(flag_chk(vf, val, mask)); t('s_cbranch_scc0 %s_d' % name)
    t('s_sleep 2')
    t('s_sub_u32 s32, s32, 1'); t('s_cmp_lg_u32 s32, 0'); t('s_cbranch_scc1 %s_l' % name)
    t.label(name + '_d')
SV, SM = 's%d' % sVal, 's%d' % sMk

def setup(a):
    a.extend(srd_off(sWS, P['ws'], 36 << 20, '0x%x' % WS_B))
    a('s_mul_i32 s32, s%d, %d' % (sX_, 512 * 1280)); a.extend(srd_off(sWO, P['wo'], 512 * 1280, 's32'))
    R, IH = sT0, sT1
    a('s_and_b32 s%d, s3, 3' % R)
    a('s_sub_u32 s%d, 7, s%d' % (sBlk, sI))
    a('s_sub_u32 s32, 15, s%d' % sI); a('s_cmp_lt_u32 s3, 4'); a('s_cselect_b32 s32, s%d, s32' % sBlk); a('s_cselect_b32 s33, s%d, s%d' % (sBlk, sI))
    a('s_mov_b32 s%d, 1' % sVal); a('s_cselect_b32 s%d, 0x%x, 0x%x' % (sPo, PA0, PB0))
    a('s_lshl_b32 s32, s32, 2'); a('s_add_u32 s32, s32, s%d' % R); a('s_lshl_b32 s32, s32, 3'); a('s_add_u32 s32, s32, s%d' % sX_); a('s_lshl_b32 s%d, s32, 15' % sQ)
    a('s_lshl_b32 s32, s%d, 3' % sX_); a('s_add_u32 s32, s32, s33'); a('s_lshl_b32 s32, s32, 2'); a('s_add_u32 s32, s32, s%d' % R); a('s_lshl_b32 s32, s32, 7'); a('s_add_u32 s%d, s32, 0x%x' % (sFw, FL0))
    a('s_lshr_b32 s%d, s2, 3' % IH); a('s_lshl_b32 s%d, s%d, 2' % (IH, IH)); a('s_add_u32 s%d, s%d, s%d' % (IH, IH, R))
    a('s_lshl_b32 s32, s%d, 5' % IH); a('s_add_u32 s32, s32, s%d' % sX_); a('s_lshl_b32 s32, s32, 2'); a('s_add_u32 s32, s32, 0x%x' % (FL0 + 32768))
    a('s_lshl_b32 s33, s%d, 2' % sHL); a('s_add_u32 s33, s33, s%d' % sFw); a('s_cmp_lt_u32 s3, 4'); a('s_cselect_b32 s%d, s32, s33' % sFl1)
    a('s_mov_b32 s%d, 15' % sMk)
    a('s_lshl_b32 s33, s%d, 9' % sHL); a('s_sub_u32 s32, s32, s33'); a('s_cmp_lt_u32 s3, 4'); a('s_cselect_b32 s%d, s%d, s32' % (sFw, sFw))
    a('s_lshl_b32 s32, s%d, 4' % IH); a('s_add_u32 s32, s32, s%d' % sX_); a('s_mul_i32 s32, s32, 5120'); a('s_add_u32 s%d, s%d, s32' % (sPo, sPo))
    a('s_lshr_b32 s33, s3, 2'); a('s_mul_i32 s33, s33, 40960'); a('s_add_u32 s32, s32, s33'); a('s_add_u32 s%d, s32, 0x%x' % (sIt, PB0))
    a('s_bitcmp1_b32 s%d, 0' % sI); a('s_cselect_b32 s%d, 0x%x, 0' % (sSlW, 4 * RG)); a('s_cselect_b32 s%d, 0, 0x%x' % (sXb, RG)); a('s_mov_b32 s%d, s%d' % (sSlR, sSlW))
    a('s_cmp_lt_u32 s3, 3'); a('s_cselect_b32 s32, 12, 16'); a('s_mov_b32 s%d, 0x100fe' % sPost); a('s_bitset1_b32 s%d, s32' % sPost)
    a('s_add_u32 s32, s%d, 1' % sJ1); a('s_cmp_lt_u32 s3, 4'); a('s_cselect_b32 s%d, 9, s32' % sSt); a('s_cselect_b32 s32, 15, s32'); a('s_bitset1_b32 s%d, s32' % sPost); a('s_bitset1_b32 s%d, s%d' % (sPost, sSt))
    a('s_lshr_b32 s32, s2, 1'); a('s_lshl_b32 s32, s32, 7'); a('s_add_u32 s%d, s32, 0x%x' % (sFY, FL0 + 32768))
    a('s_mov_b32 s%d, 0' % sOK)
    a.extend(wo_params())

def hooks(t):
    t('s_cmp_lg_u32 s%d, 1' % sJ); t('s_cbranch_scc1 f_hk7'); t('v_lshlrev_b32 v%d, 20, v1' % T1); t(publish('x', T0, T1)); t(publish('kv', T0, T1)); t.label('f_hk7')
    t('s_cmp_lt_u32 s%d, 13' % sJ); t('s_cbranch_scc1 f_hkE'); t('s_cmp_gt_u32 s%d, 14' % sJ); t('s_cbranch_scc1 f_hkE')
    t('s_mov_b32 s32, %d' % SPIN); t('v_and_b32 v%d, 31, v1' % T0); t('v_lshlrev_b32 v%d, 2, v%d' % (T0, T0)); t('s_lshl_b32 s33, s%d, 7' % sX_); t('s_add_u32 s33, s33, 0x%x' % XFL)
    t('s_cmp_eq_u32 s%d, 14' % sJ); t('s_cbranch_scc1 f_hk14')
    t('buffer_load_dword v255, v%d, %s, s33 offen sc1' % (T0, sr(sDB, 4))); t('s_branch f_hkE')
    t.label('f_hk14')
    t('v_cmp_ne_u32 vcc, 1, v255')
    t('s_cbranch_vccz f_hkE')
    t('s_sleep 8'); t('buffer_load_dword v255, v%d, %s, s33 offen sc1' % (T0, sr(sDB, 4))); t('s_waitcnt vmcnt(0)')
    t('s_sub_u32 s32, s32, 1'); t('s_cmp_lg_u32 s32, 0'); t('s_cbranch_scc1 f_hk14')
    t.label('f_hkE')

def post(t):
    t.label('f_post')
    t('s_cmp_gt_u32 s%d, 7' % sJ); t('s_cbranch_scc1 f_po1')
    for k in range(4): t('v_mov_b32 v%d, -1' % (TMP + k))
    t('s_cmp_gt_u32 s%d, 5' % sJ); t('s_cbranch_scc1 f_po0')
    t('buffer_store_dwordx4 %s, v%d, %s, s%d offen sc1' % (vr(TMP, 4), vL16, sr(sWS, 4), sIt)); t('s_add_u32 s%d, s%d, 1024' % (sIt, sIt))
    t('s_branch f_po1')
    t.label('f_po0')
    t('s_lshr_b32 s32, s3, 2'); t('s_lshl_b32 s32, s32, 1'); t('s_add_u32 s32, s32, s%d' % sJ); t('s_sub_u32 s32, s32, 6'); t('s_lshl_b32 s32, s32, 11'); t('s_add_u32 s32, s32, s%d' % sCtB)
    for k in range(2): t('buffer_store_dwordx4 %s, v%d, %s, s32 offen offset:%d sc1' % (vr(TMP, 4), vL16, sr(sCT, 4), k * 1024))
    t.label('f_po1')
    t('s_cmp_lg_u32 s%d, s%d' % (sJ, sSt)); t('s_cbranch_scc1 f_po2')
    t.extend(flag_st(1, sFl1, T0, T1))
    t.label('f_po2')
    t('s_cmp_lt_u32 s%d, 12' % sJ); t('s_cbranch_scc1 f_poE')
    t('s_cmp_eq_u32 s%d, 16' % sJ); t('s_cbranch_scc1 f_po16')
    t('s_mov_b32 m0, 0x%x' % DUMMY)
    pf = 'buffer_load_dword v%d, %s, 0 offen lds'
    t('s_cmp_lg_u32 s%d, 12' % sJ); t('s_cbranch_scc1 f_po3')
    t('s_lshr_b32 s32, s2, 3'); t('s_lshl_b32 s33, s3, 5'); t('s_add_u32 s32, s32, s33'); t('s_lshl_b32 s32, s32, 13'); t('v_lshl_add_u32 v%d, v1, 7, s32' % T0)
    if 'nopf2' not in XO: t(pf % (T0, sr(sWO, 4)))
    t('s_branch f_poE')
    t.label('f_po3')
    t.label('f_po4')
    t('s_cmp_lg_u32 s%d, 15' % sJ); t('s_cbranch_scc1 f_poE')
    t.extend(isB('f_poE'))
    t.extend(flag_ld(255, sFw)); t('s_branch f_poE')
    t.label('f_po16')
    t.extend(wo_voff(T0))
    for k in range(2): t.extend(stage_dma())
    t.extend(isB('f_poE'))
    t.extend(flag_chk(255, SV, SM)); t('s_cbranch_scc1 f_po17')
    t('s_mov_b32 s%d, 1' % sOK)
    t.extend(ldgrp(0)); t('s_branch f_poE')
    t.label('f_po17')
    t.extend(flag_ld(255, sFw))
    t.label('f_poE')
    t('s_nop 4'); t('s_setpc_b64 s[100:101]')

def epi0(a):
    a('s_cmp_eq_u32 s%d, 17' % sSt); a('s_cbranch_scc1 f_e4')
    a.extend(isB('f_e0'))
    a('s_cmp_lg_u32 s%d, 0' % sOK); a('s_cbranch_scc0 f_e2')
    a.label('f_e1')
    a.extend(ldgrp(1))
    a.label('f_e0')
def epi_tail(t):
    t.label('f_e2')
    t('s_waitcnt vmcnt(0)')
    t.extend(flag_chk(255, SV, SM)); t('s_cbranch_scc1 f_e3')
    t('s_mov_b32 s%d, 1' % sOK)
    t.extend(ldgrp(0)); t('s_branch f_e1')
    t.label('f_e3')
    t.extend(flag_ld(255, sFw)); t('s_branch f_e0')
    t.label('f_e4')
    t('s_waitcnt vmcnt(0)'); t.extend(flag_st(1, sFl1, T0, T1)); t('s_branch f_e0')

def back(a, tail, dbg):
    post(tail); epi_tail(tail)
    vX_, vY_ = 3, 4
    mk_srd(a, sOUT, P['out'], 2048 * 5120)
    a('s_and_b32 s32, s3, 3'); a('s_lshl_b32 s%d, s32, 13' % sT1); a('s_add_u32 s32, s%d, s%d' % (sT1, sXb)); a('v_add_u32 v%d, s32, v%d' % (T0, vL16))
    a('s_add_u32 s32, s32, 0x1c00'); a('v_lshl_add_u32 v%d, v1, 3, s32' % T1); a('v_lshl_add_u32 v%d, v1, 2, s32' % vX_)
    a('v_and_b32 v%d, 0xf0, v%d' % (vY_, vL16)); a('v_add_u32 v%d, s32, v%d' % (vY_, vY_))
    def xoff(f): return RG + f * 1024 if f < 8 else (f - 8) * 1024
    a('s_add_u32 s32, s%d, s3' % sHL); a('s_and_b32 s32, s32, 3'); a('s_mul_i32 s32, s32, %d' % (8 * 20480)); a('s_mul_i32 s33, s%d, 320' % sHL); a('s_add_u32 s32, s32, s33')
    a('s_add_u32 s%d, s32, 128' % sA0); a('s_mov_b32 s%d, s%d' % (sB0, sT1))
    a.extend(isB('f_B'))
    a.extend(notOK('f_a1'))
    a.extend(ldgrp(2)); a.extend(ldgrp(3))
    a.label('f_a1')
    a('ds_write_b128 v%d, %s offset:768' % (vY_, vr(L, 4)))
    for f in range(15): a('ds_write_b128 v%d, %s offset:%d' % (T0, vr(ACC + 4 * f, 4), xoff(f)))
    a(cvt(ACC + 62, ACC + 62, ACC + 63))
    a('ds_write_b64 v%d, %s' % (T1, vr(ACC + 60, 2))); a('ds_write_b32 v%d, v%d offset:512' % (vX_, ACC + 62))
    a('s_mov_b32 s%d, 2' % sEv)
    a('s_waitcnt vmcnt(24) lgkmcnt(0)'); a('s_barrier')
    if dbg: ts(a, 44)
    a.extend(quarter_dma())
    a('s_cmp_lg_u32 s%d, 0' % sOK); a('s_cbranch_scc1 f_oent')
    a('s_waitcnt vmcnt(0)')
    a('s_barrier')
    a('s_branch f_b3')
    a.label('f_B')
    a.extend(flag_ldB(14, sFw))
    a('s_waitcnt vmcnt(1)')
    a('s_barrier'); a('s_setprio 3')
    if dbg: ts(a, 44)
    lg = LG(); tg = {}
    O = TMP; S_ = 128
    a('ds_read_b128 %s, v%d offset:768' % (vr(O, 4), vY_)); tg['x'] = lg.issue()
    for f in range(15):
        a('ds_read_b128 %s, v%d offset:%d' % (vr(S_ + 4 * f, 4), T0, xoff(f))); tg[f] = lg.issue()
    a('ds_read_b64 %s, v%d' % (vr(S_ + 60, 2), T1)); lg.issue(); a('ds_read_b32 v%d, v%d offset:512' % (S_ + 63, vX_)); tg[15] = lg.issue()
    a(quarter_dma()[-1])
    lg.wait_for(a, tg['x'])
    FA = ET; FB = ET + 2
    for qt in range(2):
        m = ET + 4 + qt
        a('v_min_f32 v%d, v%d, v%d' % (m, NM + qt, O + 2 + qt))
        a('v_sub_f32 v%d, v%d, v%d' % (FA + qt, m, NM + qt)); a('v_sub_f32 v%d, v%d, v%d' % (FB + qt, m, O + 2 + qt))
        a('v_exp_f32 v%d, v%d' % (FA + qt, FA + qt)); a('v_exp_f32 v%d, v%d' % (FB + qt, FB + qt))
        a('v_mul_f32 v%d, v%d, v%d' % (m, L + qt, FA + qt)); a('v_fmac_f32 v%d, v%d, v%d' % (m, O + qt, FB + qt))
        a('v_rcp_f32 v%d, v%d' % (m, m))
        a('v_mul_f32 v%d, v%d, v%d' % (FA + qt, FA + qt, m)); a('v_mul_f32 v%d, v%d, v%d' % (FB + qt, FB + qt, m))
    for r in range(8): a('v_mul_f32 v%d, v%d, v%d' % (ACC + (r >> 2) * 8 + (r & 3), ACC + (r >> 2) * 8 + (r & 3), FA))
    if 'dfirst' in XO:
        lg.wait_for(a, tg[15])
        for k in range(2): a.extend(quarter_dma())
    a('s_add_u32 s32, s%d, 0x1000' % sCtB)
    for s in range(4):
        for qt in range(2):
            o = F(s, qt)
            for h2 in range(2):
                f = (2 * s + h2) * 2 + qt; d = ACC + 4 * f
                if s or qt:
                    for r in range(4): a('v_mul_f32 v%d, v%d, v%d' % (d + r, d + r, FA + qt))
                lg.wait_for(a, tg[f])
                if f == 15: a('v_lshlrev_b32 v%d, 16, v%d' % (S_ + 62, S_ + 63)); a('v_and_b32 v%d, 0xffff0000, v%d' % (S_ + 63, S_ + 63))
                for r in range(4): a('v_fmac_f32 v%d, v%d, v%d' % (d + r, S_ + 4 * f + r, FB + qt))
                for r in range(2): a(cvt(o + 2 * h2 + r, d + 2 * r, d + 2 * r + 1))
            a('buffer_store_dwordx4 %s, v%d, %s, s%d offen offset:%d sc1' % (vr(o, 4), vL16, sr(sCT, 4), 32 if s >= 2 else sCtB, ((s & 1) * 2 + qt) * 1024))
    if dbg: ts(a, 45)
    a('s_mov_b32 s%d, 0' % sEv)
    if 'dfirst' in XO:
        a('s_waitcnt vmcnt(8)')
        a('s_barrier')
        if dbg: ts(a, 47)
        flag_spin(a, 'f_wb', 14, sFw, SV, SM, True, flag_ldB)
        a('s_waitcnt vmcnt(%d)' % int(os.environ.get('CW', 0)))
        if dbg: ts(a, 46)
        a('s_branch f_l2')
    else:
        for k in range(2): a.extend(quarter_dma())
        a('s_waitcnt vmcnt(%d)' % (16 + int(os.environ.get('CW', 0))))
        flag_spin(a, 'f_wb', 14, sFw, SV, SM, True, flag_ldB)
        if dbg: ts(a, 46)
        for G in range(1, BG + 1): a.extend(ldgrp(G))
        a('s_waitcnt vmcnt(%d)' % (8 * BG))
        a('s_barrier')
        if dbg: ts(a, 47)
        a('s_branch f_l2')
    a.label('f_b3')
    t = tail
    t.label('f_ldB')
    for G in range(BG + 1, 4): t.extend(ldgrp(G))
    t.extend(flag_ld(15, sFY)); t('s_mov_b32 s32, 0x2000000')
    for k in range(7): t('buffer_load_dword v14, v%d, %s, s32 offen' % (vL16, sr(sCT, 4)))
    t('s_setpc_b64 s[100:101]')
    a('s_mov_b32 s%d, 0' % sEv)
    flag_spin(a, 'f_wl', 14, sFw, SV, SM)
    if dbg: ts(a, 48)
    for G in range(BG + 1): a.extend(ldgrp(G))
    a.label('f_l2')
    a('s_call_b64 s[100:101], f_ldB')
    BF = 32; OA = 64; PK = 80; vB = 3; vC = 6
    a.label('f_oent')
    a('v_lshrrev_b32 v8, 2, v1'); a('v_lshlrev_b32 v8, 6, v8'); a('v_and_b32 v9, 3, v1'); a('v_lshl_add_u32 v8, v9, 3, v8'); a('v_and_b32 v9, 16, v1')
    a('v_lshl_add_u32 v%d, v9, 1, v8' % vB); a('v_xor_b32 v%d, 32, v%d' % (vB + 1, vB))
    for c in range(2): a('v_add_u32 v%d, s%d, v%d' % (vC + c, sSlR, vB + c))
    a(ring(sSlR))
    lg = LG(); tag = {}
    def rdW(n, hf):
        n &= 31
        def f(a):
            a('ds_read_b64_tr_b16 %s, v%d offset:%d' % (vr(BF + 4 * (n & 7) + 2 * hf, 2), vC + (n & 1), (n >> 1) * 2048 + hf * 1024)); tag[n] = lg.issue()
        return f
    for n in range(15): rdW(n >> 1, n & 1)(a)
    a('s_mov_b32 s%d, 0' % sIt); a('s_add_u32 s%d, s%d, %d' % (sT1, sPo, 40960 - 1024))
    if dbg: ts(a, 49); ts(a, 57)
    a('s_setprio %d' % PR[0]); a.extend(isB('f_oloop')); a('s_setprio %d' % PR[1]); a('s_waitcnt vmcnt(32)')
    S = Sched()
    st = 'buffer_store_dwordx4 %s, v%d, %s, s%d offen sc1'
    for n in range(32):
        c, p = n & 1, n >> 1
        for qt in range(2):
            d = vr(OA + 8 * c + 4 * qt, 4)
            i = S.mfma(MF % (d, vr(F(p, qt), 4), vr(BF + 4 * (n & 7), 4), '0' if p == 0 else d))
            if qt == 0:
                if n % 8 == 0 and n:
                    S.add_pre(i, 's_cmp_lg_u32 s%d, 0\ns_cbranch_scc1 f_ow%d\ns_waitcnt vmcnt(%d)\n' % (sIt, p, 32 - n) + '\n'.join(chkgrp(n >> 3)) + '\ns_cbranch_vccnz f_rl%d\nf_ow%d:' % (p, p))
                    t.label('f_rl%d' % p); t('s_mov_b32 s%d, %d' % (sT0, SPIN))
                    t.label('f_rm%d' % p)
                    if dbg: t('v_readlane_b32 s32, v0, 57'); t('s_add_u32 s32, s32, 100'); t('v_writelane_b32 v0, s32, 57')
                    t.extend(ldgrp(n >> 3, ' sc1')); t('s_waitcnt vmcnt(0)'); t.extend(chkgrp(n >> 3)); t('s_cbranch_vccz f_ow%d' % p)
                    t('s_sub_u32 s%d, s%d, 1' % (sT0, sT0)); t('s_cmp_lg_u32 s%d, 0' % sT0); t('s_cbranch_scc1 f_rm%d' % p); t('s_branch f_ow%d' % p)
                S.add_pre(i, lambda a, n=n: lg.wait_for(a, tag[n]))
            S.add_post(i, rdW(n + 7 + qt, 1 - qt))
    for x in pack8(PK + 4, OA + 8): S.add_post(1, x)
    S.add_post(4, 's_cmp_eq_u32 s%d, 0\ns_cbranch_scc1 f_ol1\n' % sIt + st % (vr(PK + 4, 4), vL16, sr(sWS, 4), sT1) + '\nf_ol1:')
    S.add_post(6, 's_add_u32 s%d, s%d, 1024' % (sT1, sT1))
    S.add_post(48, 's_bitcmp0_b32 s%d, s%d\ns_cbranch_scc1 f_ol2\ns_waitcnt vmcnt(2)\ns_barrier\nf_ol2:' % (sEv, sIt))
    S.add_post(47, 'v_add_u32 v%d, s%d, v%d' % (vC, sSlR, vB)); S.add_post(49, 'v_add_u32 v%d, s%d, v%d' % (vC + 1, sSlR, vB + 1)); S.add_post(52, ring(sSlR))
    S.add_post(56, 's_add_u32 s%d, s%d, 1' % (sIt, sIt))
    for x in pack8(PK, OA): S.add_post(63, x)
    S.add_post(63, st % (vr(PK, 4), vL16, sr(sWS, 4), sPo) + '\ns_add_u32 s%d, s%d, 1024' % (sPo, sPo))
    if dbg == 1 and 'lts' in XO:
        S.add_post(31, 's_memtime s[100:101]\ns_add_u32 m0, s%d, 20\ns_waitcnt lgkmcnt(0)\nv_writelane_b32 v0, s100, m0' % sIt)
        S.add_post(63, 's_memtime s[100:101]\ns_add_u32 m0, s%d, 29\ns_waitcnt lgkmcnt(0)\nv_writelane_b32 v0, s100, m0' % sIt)
    a.label('f_oloop')
    S.emit(a, 0, 64)
    a('s_cmp_lt_u32 s%d, 5' % sIt); a('s_cbranch_scc1 f_oloop')
    a.extend(pack8(PK + 4, OA + 8)); a(st % (vr(PK + 4, 4), vL16, sr(sWS, 4), sT1))
    if dbg: ts(a, 50)
    a('s_waitcnt vmcnt(10)')
    a.extend(isB('f_t2'))
    a('s_setprio %d' % PR[2])
    a('v_mov_b32 v15, -1')
    def acc2(d, s, t, first):
        if first: return ['v_lshlrev_b32 v%d, 16, v%d' % (d, s), 'v_and_b32 v%d, 0xffff0000, v%d' % (d + 1, s)]
        return ['v_lshlrev_b32 v%d, 16, v%d' % (t, s), 'v_and_b32 v%d, 0xffff0000, v%d' % (s, s), 'v_add_f32 v%d, v%d, v%d' % (d, d, t), 'v_add_f32 v%d, v%d, v%d' % (d + 1, d + 1, s)]
    HM = sum(1 << int(c) for c in os.environ.get('HS', '1,5,6,7').split(','))
    a('s_movk_i32 s32, 0x%x' % (0x1c | HM)); a('s_bitcmp0_b32 s32, s%d' % sI); a('s_cbranch_scc1 f_t1')
    a('s_movk_i32 s32, 0x%x' % HM); a('s_bitcmp1_b32 s32, s%d' % sI); a('s_cbranch_scc1 f_th')
    def yg(a, NE):
        sXS = sBA; sYa = (70, 71); sM, sYc, sYw, sYh = 72, 73, 74, 66
        mk_srd(a, sXS, P['A_x'], 2048 * 1280)
        XR = (96, 112); vXo = (16, 17); vDs = (18, 19); vYo = (20, 21); vFy = (22, 23)
        for e in range(NE):
            a('s_add_u32 s%d, s91, %d' % (sM, e))
            a('s_mul_i32 s32, s%d, 13108' % sM); a('s_lshr_b32 s32, s32, 16'); a('s_mul_i32 s33, s32, 5'); a('s_sub_u32 s%d, s%d, s33' % (sYc, sM))
            a('s_and_b32 s%d, s32, 7' % sYw); a('s_lshr_b32 s%d, s32, 3' % sYh)
            a('s_lshl_b32 s33, s%d, 5' % sX_); a('s_add_u32 s32, s32, s33')
            a('s_mul_i32 s32, s32, 30720'); a('s_lshl_b32 s33, s%d, 11' % sYc); a('s_add_u32 s32, s32, s33'); a('s_add_u32 s%d, s32, 0x%x' % (sYa[e], PY0))
            a('s_mul_i32 s32, s%d, 160' % sYh); a('s_and_b32 s33, s%d, 1' % sYw); a('s_mul_i32 s33, s33, 80'); a('s_add_u32 s32, s32, s33'); a('s_lshl_b32 s33, s%d, 4' % sYc); a('s_add_u32 s32, s32, s33')
            a('v_and_b32 v8, 15, v1'); a('v_add_u32 v8, s32, v8')
            a('s_lshl_b32 s32, s%d, 8' % sX_); a('s_lshr_b32 s33, s%d, 1' % sYw); a('s_lshl_b32 s33, s33, 6'); a('s_add_u32 s32, s32, s33')
            a('v_lshrrev_b32 v9, 4, v1'); a('v_lshl_add_u32 v9, v9, 2, s32'); a('v_mul_u32_u24 v9, 640, v9')
            a('v_add_lshl_u32 v%d, v9, v8, 1' % vXo[e]); a('v_lshl_add_u32 v9, v9, 1, v8'); a('v_lshlrev_b32 v%d, 2, v9' % vYo[e]); a('v_lshlrev_b32 v8, 1, v8')
            a('global_load_ushort v%d, v8, %s' % (vDs[e], sr(P['Dskip'], 2)))
            for q in range(4):
                a('s_mov_b32 s32, %d' % (q * 16 * 1280))
                for r in range(4): a('buffer_load_ushort v%d, v%d, %s, s32 offen offset:%d' % (XR[e] + 4 * q + r, vXo[e], sr(sXS, 4), r * 1280))
        YL = (128, 160); YS = (32, 48)
        for e in range(NE):
            for p in range(3):
                for k in range(2): a('buffer_load_dwordx4 %s, v%d, %s, s%d offen offset:%d' % (vr(YL[e] + (p * 2 + k) * 4, 4), vL16, sr(sWS, 4), sYa[e], k * 1024))
                if p < 2: a('s_add_u32 s%d, s%d, 10240' % (sYa[e], sYa[e]))
        a('s_waitcnt vmcnt(%d)' % (23 * NE))
        a.extend(flag_st(2, sFl1, 8, 9))
        a('s_waitcnt vmcnt(%d)' % (6 * NE + 1))
        for e in range(NE):
            a('v_lshlrev_b32 v%d, 16, v%d' % (vDs[e], vDs[e]))
            for k in range(16): a('v_lshlrev_b32 v%d, 16, v%d' % (XR[e] + k, XR[e] + k)); a('v_mul_f32 v%d, v%d, v%d' % (XR[e] + k, XR[e] + k, vDs[e]))
            for k in range(8): a(cvt(XR[e] + k, XR[e] + 2 * k, XR[e] + 2 * k + 1)); a.extend(acc2(YS[e] + 2 * k, XR[e] + k, 8, True))
        for e in range(NE):
            for p in range(3):
                a('s_waitcnt vmcnt(%d)' % ((6 * NE - 1 - 2 * p) if e == 0 else (21 - 2 * p)))
                for k in range(8): a.extend(acc2(YS[e] + 2 * k, YL[e] + p * 8 + k, 8 + (k & 1), False))
            for q in range(4):
                for r in range(4):
                    a('s_mov_b32 s32, %d' % ((q * 16 + r) * 5120)); a('buffer_store_dword v%d, v%d, %s, s32 offen' % (YS[e] + 4 * q + r, vYo[e], sr(sOUT, 4)))
    a('s_lshr_b32 s91, s2, 3'); a('s_sub_u32 s91, s91, 8'); a('s_lshl_b32 s91, s91, 2'); a('s_add_u32 s91, s91, s3'); a('s_lshl_b32 s91, s91, 1')
    yg(a, 2)
    a('s_branch f_t2')
    a.label('f_th')
    a('s_bfm_b32 s33, s%d, 0' % sI); a('s_and_b32 s32, s32, s33'); a('s_bcnt1_i32_b32 s32, s32'); a('s_add_u32 s32, s32, 6'); a('s_lshl_b32 s32, s32, 2')
    a('s_add_u32 s32, s32, s%d' % sHL); a('s_lshl_b32 s32, s32, 2'); a('s_add_u32 s91, s32, s3')
    yg(a, 1)
    a('s_branch f_t2')
    a.label('f_t1')
    a('s_waitcnt vmcnt(0)')
    a.extend(flag_st(2, sFl1, 8, 9))
    a.label('f_t2')
    if dbg: ts(a, 54)
    sIn, sOb, sR = 66, 67, 68
    vO1, vO2, vG1, vG2 = 10, 11, 12, 13
    a('s_mul_i32 s%d, s2, 40960' % sIn); a('s_and_b32 s%d, s3, 3' % sR); a('s_cmp_lt_u32 s3, 4'); a('s_cselect_b32 s%d, 2, 1' % sVal)
    a('s_add_u32 s32, s%d, 0x%x' % (sIn, PB0)); a('s_sub_u32 s33, 15, s%d' % sI); a('s_cmp_lt_u32 s3, 4'); a('s_cselect_b32 s%d, s%d, s32' % (sIn, sIn)); a('s_cselect_b32 s%d, s%d, s33' % (sBlk, sBlk))
    a('s_lshl_b32 s32, s%d, 10' % sR); a('v_add_u32 v%d, s32, v%d' % (vG1, vL16))
    a('s_lshl_b32 s32, s%d, 8' % sR); a('s_add_u32 s32, s32, 0x1000'); a('v_lshl_add_u32 v%d, v1, 2, s32' % vG2)
    flag_spin(a, 'f_wa', 15, sFY, SV, 0xff, True)
    if dbg: ts(a, 55)
    G1 = 32; G2 = 64; R1 = 96
    a('s_mov_b32 s%d, %d' % (sT0, SPIN))
    a.label('f_ga')
    for s in range(8):
        a('s_add_u32 s32, s%d, %d' % (sIn, s * 5120))
        a('buffer_load_dwordx4 %s, v%d, %s, s32 offen sc1' % (vr(G1 + 4 * s, 4), vG1, sr(sWS, 4)))
        a('buffer_load_dword v%d, v%d, %s, s32 offen sc1' % (G2 + s, vG2, sr(sWS, 4)))
    a('v_lshrrev_b32 v8, 4, v1'); a('v_mul_u32_u24 v8, %d, v8' % (4 * 5120)); a('v_and_b32 v9, 15, v1'); a('s_lshl_b32 s32, s%d, 7' % sR); a('v_lshl_add_u32 v9, v9, 2, s32'); a('v_add_u32 v%d, v8, v9' % vO1)
    a('v_bfe_u32 v8, v1, 1, 1'); a('v_and_b32 v9, 1, v1'); a('v_lshl_add_u32 v8, v8, 3, v9'); a('s_lshl_b32 s32, s%d, 2' % sR); a('v_lshl_add_u32 v8, v8, 1, s32'); a('v_mul_u32_u24 v8, 5120, v8')
    a('v_and_b32 v9, 0xfc, v1'); a('s_movk_i32 s32, 512'); a('v_add3_u32 v%d, v8, v9, s32' % vO2)
    a('s_lshl_b32 s32, s%d, 2' % sBlk); a('s_lshr_b32 s33, s%d, 1' % sX_); a('s_add_u32 s32, s32, s33'); a('s_mul_i32 s%d, s32, %d' % (sOb, 32 * 5120))
    a('s_mul_i32 s32, s%d, 640' % sHL); a('s_and_b32 s33, s%d, 1' % sX_); a('s_lshl_b32 s33, s33, 6'); a('s_add_u32 s32, s32, s33'); a('s_add_u32 s32, s32, 2560'); a('s_add_u32 s%d, s%d, s32' % (sOb, sOb))
    for s in range(8):
        a('s_waitcnt vmcnt(%d)' % (14 - 2 * s))
        g = G1 + 4 * s
        a('v_max3_u32 v9, v%d, v%d, v%d' % (g, g + 1, g + 2)); a('v_max3_u32 v9, v9, v%d, v%d' % (g + 3, G2 + s))
        a('v_mov_b32 v8, v9' if s == 0 else 'v_max_u32 v8, v8, v9')
        for k in range(4): a.extend(acc2(R1 + 2 * k, g + k, 16 + (k & 1), s == 0))
        a.extend(acc2(R1 + 8, G2 + s, 18, s == 0))
    a('v_cmp_eq_u32 vcc, -1, v8'); a('s_cbranch_vccz f_ga_d')
    a('s_sleep 2')
    a('s_sub_u32 s%d, s%d, 1' % (sT0, sT0)); a('s_cmp_lg_u32 s%d, 0' % sT0); a('s_cbranch_scc1 f_ga')
    a.label('f_ga_d')
    if dbg: ts(a, 56)
    for k, row in enumerate([(k >> 2) * 16 + (k & 3) for k in range(8)] + [0, 1]):
        a('s_add_u32 s32, s%d, %d' % (sOb, row * 5120)); a('buffer_store_dword v%d, v%d, %s, s32 offen' % (R1 + k, vO1 if k < 8 else vO2, sr(sOUT, 4)))
```

```python
from common import *
import copy, os
XO = os.environ.get('XO', '').split(',')
MF = 'v_mfma_f32_16x16x32_bf16 %s, %s, %s, %s'
QSCALE = 128 ** -0.5 * LOG2E
WS_B = 64 << 20
PA0, PB0, PY0, FL0 = 0, 12 << 20, 24 << 20, 32 << 20
KVF, XFL, CCF = 49152, 53248, 55296
WS_ES = WS_B + FL0 + 65536
sDG = 76
WR = 98304
sA, sW, sKVO, sKV, sUS, sDB, sES = 4, 8, 12, 16, 20, 24, 28
sX_, sHL, sI, sH = 34, 35, 36, 37
sJ, sJ1, sD, sN, sThr, sDq, sMsk = 38, 39, 40, 41, 42, 43, 44
sKm0, sKsrc, sVm0, sVsrc, sCtA, sCtB, sXl, sWl, sHook, sRdy, sPub, sLim = 52, 53, 54, 55, 56, 57, 58, 59, 60, 61, 62, 63
P = dict(A_x=64, Lre=66, Lim=68, Bre=70, Bim=72, Cre=74, Cim=76, logdt=78, Dskip=80, B_x=82, ckv=84, wq=86, wuk=88, wuv=90, wo=92, out=94, dbg=96, ws=98)
sK0, sV0 = 44, 45
sUx, sUb, sTT, sCB, sHo, sEo = 46, 47, 48, 49, 50, 51
vL16 = 2; vL0 = 3; vKS = 5; vU = 6; UAD = 8; vKS0 = 12; vFo = 13; vTm = 14; vPf = 15
vT = 16; vW = 24; vX = 25; vAr = 27; vPub = 31; vFl = 30
FR = 32; ACC = 64; Q = 128; XF = 192; UACC = 224
H8 = '0x80808080'
STE = int(os.environ.get('STE', '300')); STN = int(os.environ.get('STN', '250'))

def lam_params(T, vlre, vlim, vldt):
    return ['v_mul_f32 v%d, %s, v%d' % (vldt, f32(LOG2E), vldt), 'v_exp_f32 v%d, v%d' % (vldt, vldt),
            'v_cvt_pk_bf16_f32 v%d, v%d, v%d' % (vldt, vldt, vldt), 'v_lshlrev_b32 v%d, 16, v%d' % (vldt, vldt),
            'v_mul_f32 v%d, v%d, v%d' % (T, vldt, vlre), 'v_mul_f32 v%d, v%d, v%d' % (T + 1, vldt, vlim),
            'v_mul_f32 v%d, %s, v%d' % (T, f32(LOG2E), T), 'v_mul_f32 v%d, %s, v%d' % (T + 1, f32(INV2PI), T + 1)]
def srd_l(s, ptr, size, off=0):
    t = Asm(); mk_srd(t, s, ptr, size, off); return '\n'.join(t.lines)
def cvt(d, x, y): return 'v_cvt_pk_bf16_f32 v%d, v%d, v%d' % (d, x, y)
def pack8(d, s): return [cvt(d + k, s + 2 * k, s + 2 * k + 1) for k in range(4)]
def publish(kind, vt=vTm, vo=vFo):
    if kind == 'kv': adr = 's_add_u32 s33, s%d, 3\ns_and_b32 s33, s33, 7\ns_lshl_b32 s32, s%d, 7\ns_add_u32 s33, s33, s32\ns_add_u32 s33, s33, 0x%x' % (sI, sH, KVF)
    if kind == 'x': adr = 's_lshr_b32 s33, s2, 3\ns_lshl_b32 s32, s%d, 5\ns_add_u32 s33, s33, s32\ns_lshl_b32 s33, s33, 2\ns_add_u32 s33, s33, 0x%x' % (sX_, XFL)
    if kind == 'cc': adr = 's_lshl_b32 s33, s2, 5\ns_add_u32 s33, s33, 0x%x' % (CCF - 160 * 32)
    return adr + '\nv_mov_b32 v%d, %d\nbuffer_store_%s v%d, v%d, %s, s33 offen sc1' % (vt, kind != 'kv', 'byte' if kind == 'kv' else 'dword', vt, vo, sr(sDB, 4))
def rdy_calc(vf):
    return ['v_readlane_b32 s32, v%d, 0' % vf, 'v_readlane_b32 s33, v%d, 1' % vf,
            's_ff1_i32_b64 s32, s[32:33]', 's_lshr_b32 s32, s32, 3', 's_min_u32 s32, s32, 8', 's_lshl_b32 s%d, s32, 17' % sRdy]
def rdy_load(vf, vt):
    return ('s_lshl_b32 s32, s%d, 7\ns_add_u32 s32, s32, 0x%x\nv_lshrrev_b32 v%d, 1, v1\nv_add_lshl_u32 v%d, v%d, s3, 20\nv_lshl_add_u32 v%d, v1, 2, v%d\n' % (sH, KVF, vt, vt, vt, vt, vt) +
            'buffer_load_dword v%d, v%d, %s, s32 offen sc1' % (vf, vt, sr(sDB, 4)))
SPIN = 20000


def front_start(a, dbg):
    a('s_cmp_ge_u32 s2, 256'); a('s_cbranch_scc1 f_end')
    a('s_load_dwordx16 s[80:95], s[0:1], 64')
    a('s_load_dwordx16 s[64:79], s[0:1], 0')
    a('s_load_dwordx4 s[96:99], s[0:1], 128')
    a('v_lshrrev_b32 v2, 6, v0'); a('v_readfirstlane_b32 s3, v2')
    a('v_and_b32 v1, 63, v0')
    if 'nocp' not in XO:
        a('s_getpc_b64 s[32:33]'); a.label('f_pc')
        a('s_and_b32 s34, s2, 0xf8'); a('s_add_u32 s34, s34, s3')
        a('s_cmp_ge_u32 s34, 11'); a('s_cbranch_scc1 f_nocp')
        a('s_lshl_b32 s34, s34, 13'); a('v_lshl_add_u32 v%d, v1, 7, s34' % vPf); a('v_min_u32 v%d, f_last-f_pc, v%d' % (vPf, vPf))
        a('global_load_dword v%d, v%d, s[32:33]' % (vPf, vPf))
        a.label('f_nocp')
    a('s_and_b32 s%d, s2, 7' % sX_); a('s_bfe_u32 s%d, s2, 0x20003' % sHL); a('s_lshr_b32 s%d, s2, 5' % sI)
    a('s_lshl_b32 s32, s%d, 2' % sX_); a('s_add_u32 s%d, s32, s%d' % (sH, sHL))
    a('s_add_u32 s%d, s%d, 3' % (sN, sI)); a('s_and_b32 s%d, s%d, 7' % (sN, sN))
    a('v_lshrrev_b32 v34, 4, v1')
    a('s_and_b32 s33, s3, 3'); a('s_lshl_b32 s33, s33, 3'); a('v_add_u32 v37, s33, v34'); a('v_lshlrev_b32 v37, 13, v37')
    a('s_and_b32 s33, s3, 1'); a('s_lshl_b32 s33, s33, 3'); a('v_lshl_add_u32 v39, v34, 1, s33')
    a('v_and_b32 v38, 15, v1'); a('v_xor_b32 v40, v38, v39')
    a('v_lshl_add_u32 v37, v40, 4, v37'); a('s_lshl_b32 s33, s%d, 8' % sH); a('v_add_u32 v%d, s33, v37' % vW)
    a('s_lshl_b32 s32, s%d, 8' % sN); a('s_lshl_b32 s33, s3, 5'); a('s_add_u32 s32, s32, s33')
    a('v_lshrrev_b32 v32, 3, v1'); a('v_add_u32 v33, s32, v32'); a('v_lshlrev_b32 v33, 10, v33')
    a('v_and_b32 v35, 7, v1'); a('v_xor_b32 v35, v34, v35'); a('v_xor_b32 v36, 4, v35')
    a('v_lshl_add_u32 v%d, v35, 4, v33' % vX); a('v_lshl_add_u32 v%d, v36, 4, v33' % (vX + 1)); a('v_add_u32 v%d, 0x2000, v%d' % (vX + 1, vX + 1))
    a('s_lshl_b32 s%d, s3, 12' % sXl); a('s_lshl_b32 s%d, s3, 11' % sWl)
    a('v_lshlrev_b32 v%d, 20, v0' % vFo)

def front_role(role, dbg, tail):
    a = Asm(); vm = VM(); lg = LG()
    isU = role == 'U'
    tagW = {}; tagA = {}; tagU = {}; tagQW = {}; tagX = {}; tagY = {}; tg = {}
    def wslot(s): return ((s + 2) % 4) * 16384
    def dmaW(s, i):
        def f(a):
            a('s_add_u32 m0, s%d, 0x%x' % (sWl, WR + wslot(s) + i * 1024))
            a('s_mov_b32 s32, 0x%x' % (s * 262144 + i * 32768))
            a('buffer_load_dwordx4 v%d, %s, s32 offen lds' % (vW, sr(sW, 4))); tagW[s] = vm.issue()
        return f
    def dmaA(D, i):
        def f(a):
            a('s_add_u32 m0, s%d, 0x%x' % (sXl, (D % 3) * 32768 + i * 1024))
            a('s_movk_i32 s33, 0x%x' % (D * 128 + (i >> 1) * 16384))
            a('buffer_load_dwordx4 v%d, %s, s33 offen lds' % (vX + (i & 1), sr(sA, 4))); tagA[D] = vm.issue()
        return f
    USLOT = [131072, 0, 98304, 32768, 65536]
    def dmaU(n, i):
        def f(a):
            a('s_add_u32 m0, s%d, 0x%x' % (sXl, USLOT[n % 5] + i * 1024))
            if 'norot' in XO: a('s_movk_i32 s33, 0x%x' % (n * 128 + (i >> 1) * 5120))
            else: a('s_add_u32 s33, s%d, %d' % (sJ, (i >> 1) * 5120))
            a('buffer_load_dwordx4 v%d, %s, s33 offen lds' % (vU + (i & 1), sr(sUS, 4))); tagU[n] = vm.issue()
            if i == 3 and 'norot' not in XO: a('s_add_u32 s%d, s%d, 128' % (sJ, sJ)); a('s_cmp_eq_u32 s%d, 1280' % sJ); a('s_cselect_b32 s%d, 0, s%d' % (sJ, sJ))
        return f
    def dmaQW(s, i):
        def f(a):
            a('s_add_u32 m0, s%d, 0x%x' % (sWl, WR + wslot(s) + i * 1024))
            a('s_mov_b32 s32, 0x%x' % (s * 524288 + i * 32768))
            a('buffer_load_dwordx4 v%d, %s, s32 offen lds' % (vW, sr(sW, 4))); tagQW[s] = vm.issue()
        return f
    def xreg(s): return (2, 0, 1)[s % 3]
    def dmaX(s, i):
        def f(a):
            if s < 10:
                a('s_add_u32 m0, s%d, 0x%x' % (sXl, xreg(s) * 32768 + i * 1024))
                a('s_movk_i32 s33, 0x%x' % (s * 128 + (i >> 1) * 20480))
                a('buffer_load_dwordx4 v%d, %s, s33 offen lds' % (vX + (i & 1), sr(sA, 4)))
            else:
                a('s_add_u32 m0, s%d, 0x%x' % (sXl, xreg(s) * 32768))
                a('s_mov_b32 s33, 0x%x' % (0, 0x10000, 0x2000)[s - 10])
                a('buffer_load_dwordx4 v%d, %s, s33 offen offset:%d lds' % (vKS0, sr(sKV, 4), i * 1024))
            tagX[s] = vm.issue()
        return f
    YR = [0, 3, 1, 2, 4]; sY = sUS; sYo, sYs = sCB, sHo; vY = 6
    def dmaY(n, i):
        def f(a):
            if n == 12 and i == 0: a('s_cmp_eq_u32 s%d, 7' % sI); a('s_cselect_b32 s%d, 0, s%d' % (sY + 2, sY + 2))
            a('s_add_u32 m0, s%d, 0x%x' % (sXl, YR[n % 5] * 32768))
            a('buffer_load_dwordx4 v%d, %s, 0 offen offset:%d lds' % (vY, sr(sY, 4), i * 1024)); tagY[n] = vm.issue()
            if i == 3: a('s_add_u32 s%d, s%d, s%d' % (sY, sY, sYs)); a('s_addc_u32 s%d, s%d, 0' % (sY + 1, sY + 1))
        return f
    def vmi(txt, key=None):
        def f(a):
            a(txt); t = vm.issue()
            if key is not None: tg[key] = t
        return f
    def vmw(key): return lambda a: vm.wait_for(a, tg[key])
    def kvsrd():
        mk_srd(a, sA, P['ckv'], 2048 * 1024)
        a('s_cmp_lt_u32 s3, 4'); a('s_cselect_b32 s%d, s%d, s%d' % (sW, P['wuk'], P['wuv'])); a('s_cselect_b32 s%d, s%d, s%d' % (sW + 1, P['wuk'] + 1, P['wuv'] + 1))
        a('s_and_b32 s%d, s%d, 0xffff' % (sW + 1, sW + 1)); a('s_mov_b32 s%d, 0x%x' % (sW + 2, 512 * 8192)); a('s_mov_b32 s%d, 0x00020000' % (sW + 3))
    if isU:
        a('s_lshr_b32 s32, s2, 3'); a('s_cmp_ge_u32 s32, 10'); a('s_cselect_b32 s33, 1, 0'); a('s_lshl_b32 s%d, s%d, 1' % (sTT, sX_)); a('s_add_u32 s%d, s%d, s33' % (sTT, sTT))
        a('s_mul_i32 s33, s33, 10'); a('s_sub_u32 s%d, s32, s33' % sCB)
        a('s_lshr_b32 s33, s33, 1'); a('s_add_u32 s33, s33, s%d' % sCB)
        a('s_add_u32 s33, s33, s%d' % sX_)
        for k in range(2): a('s_sub_u32 s32, s33, 10'); a('s_cselect_b32 s33, s33, s32')
        a('s_lshl_b32 s%d, s33, 7' % sJ)
        a('s_lshl_b32 s32, s%d, 7\ns_lshr_b32 s33, s3, 1\ns_lshl_b32 s33, s33, 6\ns_add_u32 s%d, s32, s33' % (sTT, sUx))
        a('s_lshl_b32 s33, s%d, 6\ns_cmp_lt_u32 s3, 4\ns_cselect_b32 s%d, s%d, s33' % (sCB, sUx, sUx))
        a('s_and_b32 s33, s3, 1\ns_lshl_b32 s33, s33, 3\ns_add_u32 s%d, s%d, s33' % (sUx, sUx))
        a('v_lshrrev_b32 v41, 5, v1\nv_bfe_u32 v42, v1, 3, 2\nv_lshl_add_u32 v41, v41, 4, v42\nv_add_u32 v41, s%d, v41\nv_mul_u32_u24 v41, 1280, v41' % sUx)
        a('v_lshl_add_u32 v%d, v35, 4, v41\nv_lshl_add_u32 v%d, v36, 4, v41\nv_add_u32 v%d, 0x%x, v%d' % (vU, vU + 1, vU + 1, 32 * 1280, vU + 1))
        a('s_waitcnt lgkmcnt(0)')
        if dbg: ts(a, 0); tsr(a, 60)
        a('s_cmp_lt_u32 s3, 6\ns_cselect_b32 s32, s%d, s%d\ns_cselect_b32 s33, s%d, s%d\n' % (P['Bre'], P['Bim'], P['Bre'] + 1, P['Bim'] + 1) +
          's_cmp_lt_u32 s3, 4\ns_cselect_b32 s%d, s%d, s32\ns_cselect_b32 s33, s%d, s33\n' % (sUS, P['A_x'], P['A_x'] + 1) +
          's_mov_b32 s32, 0x%x\ns_cselect_b32 s%d, 0x%x, s32\ns_and_b32 s%d, s33, 0xffff\ns_mov_b32 s%d, 0x00020000' % (640 * 1280, sUS + 2, 2048 * 1280, sUS + 1, sUS + 3))
        UD = [int(c) for c in os.environ.get('UD', '9,0').split(',')]
        for n in range(5):
            if n == UD[0]: a('s_sleep %d' % UD[1])
            for i in range(4): dmaU(n, i)(a)
        a('s_lshr_b32 s%d, s3, 2\ns_lshl_b32 s%d, s%d, 13' % (sUx, sUx, sUx))
        a('s_and_b32 s%d, s3, 3\ns_lshl_b32 s%d, s%d, 11\ns_add_u32 s%d, s%d, 0x4000' % (sUb, sUb, sUb, sUb, sUb))
        kvsrd()
    else:
        a('s_waitcnt lgkmcnt(0)')
        if dbg: ts(a, 0); tsr(a, 60)
        kvsrd()
        for i in range(2): dmaW(0, i)(a)
        for i in range(4): dmaA(0, i)(a)
        for s in (1, 2):
            for i in range(2): dmaW(s, i)(a)
        for i in range(4): dmaA(1, i)(a)
        for i in range(2): dmaW(3, i)(a)
        for i in range(4): dmaA(2, i)(a)
    pfc = vmi('s_lshl_b32 s32, s%d, 3\ns_add_u32 s32, s32, s3\ns_lshl_b32 s32, s32, 13\ns_lshl_b32 s33, s%d, 18\ns_add_u32 s32, s32, s33\n' % (sHL, sN) +
              'v_lshlrev_b32 v%d, 7, v1\nbuffer_load_dword v%d, v%d, %s, s32 offen' % (vPf, vPf, vPf, sr(sA, 4)))
    pfw = vmi('s_sub_u32 s32, s%d, 4\ns_lshl_b32 s32, s32, 2\ns_and_b32 s33, s3, 3\ns_add_u32 s32, s32, s33\ns_lshl_b32 s32, s32, 18\ns_lshl_b32 s33, s%d, 8\ns_add_u32 s32, s32, s33\n' % (sI, sH) +
              'v_lshrrev_b32 v%d, 1, v1\nv_lshlrev_b32 v%d, 13, v%d\nv_and_b32 v%d, 1, v1\nv_lshl_add_u32 v%d, v%d, 7, v%d\n' % (vTm, vTm, vTm, vPub, vTm, vPub, vTm) +
              'buffer_load_dword v%d, v%d, %s, s32 offen' % (vPf, vTm, sr(sW, 4)))
    NPF = [int(c) for c in os.environ.get('NPF', '-1,-2').split(',')]
    if not isU and NPF[1] == -2: pfw(a)
    if 'notlb' not in XO:
        a('s_sub_u32 s32, s3, 5'); a('s_cmp_gt_u32 s32, 1'); a('s_cbranch_scc1 f%s_nt' % role)
        a('s_lshr_b32 s33, s2, 3'); a('v_and_b32 v42, 1, v1'); a('v_lshl_add_u32 v42, s33, 1, v42'); a('s_min_u32 s33, s33, 4')
        a('s_cmp_eq_u32 s32, 0'); a('s_cselect_b32 s100, s%d, s%d' % (P['ws'], P['out'])); a('s_cselect_b32 s101, s%d, s%d' % (P['ws'] + 1, P['out'] + 1))
        a('s_cbranch_scc1 f%s_nt1' % role); a('v_mov_b32 v42, s33'); a.label('f%s_nt1' % role)
        a('v_lshlrev_b32 v42, 21, v42'); a('global_load_dword v%d, v42, s[100:101]' % vPf)
        a.label('f%s_nt' % role)
    a('v_lshlrev_b32 v%d, 4, v1' % vL16)
    a('v_bfe_u32 v32, v1, 2, 2'); a('v_lshl_add_u32 v33, v34, 3, v32')
    a('v_and_b32 v35, 3, v1'); a('v_lshlrev_b32 v35, 3, v35'); a('v_add_u32 v35, 0x%x, v35' % WR)
    a('v_lshl_add_u32 v36, v33, 8, v35')
    a('v_and_b32 v37, 1, v34'); a('v_lshl_add_u32 v38, v37, 2, v32')
    for dt in range(4):
        a('v_xor_b32 v39, %d, v38' % dt); a('v_lshl_add_u32 v%d, v39, 5, v36' % (vT + dt))
    a('s_lshr_b32 s%d, s3, 2' % sD); a('s_lshl_b32 s%d, s%d, 7' % (sD, sD))
    for dt in range(4): a('v_xor_b32 v%d, s%d, v%d' % (vT + dt, sD, vT + dt))
    a('v_and_b32 v39, 15, v1'); a('v_lshrrev_b32 v40, 1, v39'); a('v_xor_b32 v40, v40, v34'); a('v_lshlrev_b32 v39, 7, v39')
    a('v_lshl_add_u32 v%d, v40, 4, v39' % vL0); a('v_xor_b32 v%d, 64, v%d' % (vL0 + 1, vL0))
    a('s_and_b32 s32, s3, 3'); a('s_lshl_b32 s32, s32, 13'); a('s_add_u32 s33, s32, 0x10000')
    for k in range(4): a('v_add_u32 v%d, s%d, v%d' % (vAr + k, 32 + (k >> 1), vL0 + (k & 1)))
    a('s_lshl_b32 s32, s%d, 3' % sH); a('s_add_u32 s32, s32, s%d' % sN); a('s_lshl_b32 s32, s32, 2'); a('s_and_b32 s33, s3, 3'); a('s_add_u32 s32, s32, s33'); a('s_lshl_b32 s32, s32, 15')
    a('s_add_u32 s%d, s%d, s32' % (sKVO, P['ws'])); a('s_addc_u32 s%d, s%d, 0' % (sKVO + 1, P['ws'] + 1)); a('s_and_b32 s%d, s%d, 0xffff' % (sKVO + 1, sKVO + 1))
    a('s_mov_b32 s%d, 0x8000' % (sKVO + 2)); a('s_mov_b32 s%d, 0x00020000' % (sKVO + 3))
    a('s_lshl_b32 s%d, s%d, 4' % (sK0, sD)); a('s_lshl_b32 s%d, s%d, 5' % (sV0, sD)); a('s_add_u32 s%d, s%d, 0x2000' % (sV0, sV0))
    mk_srd(a, sDB, P['ws'], 224 << 10, WS_B + FL0)
    if isU:
        a('s_lshl_b32 s33, s%d, 2' % sCB); a('s_and_b32 s%d, s3, 3' % sHo); a('s_add_u32 s%d, s%d, s33' % (sHo, sHo))
        a('s_lshl_b32 s33, s%d, 12' % sHo); a('s_add_u32 s33, s33, 0x%x' % WS_ES)
        a('s_add_u32 s%d, s%d, s33' % (sES, P['ws'])); a('s_addc_u32 s%d, s%d, 0' % (sES + 1, P['ws'] + 1)); a('s_and_b32 s%d, s%d, 0xffff' % (sES + 1, sES + 1))
        a('s_movk_i32 s%d, 0x1000' % (sES + 2)); a('s_mov_b32 s%d, 0x00020000' % (sES + 3))
        a('s_lshl_b32 s32, s%d, 1' % sTT); a('s_lshr_b32 s33, s3, 2'); a('s_add_u32 s32, s32, s33'); a('s_sub_u32 s32, 31, s32'); a('s_lshl_b32 s%d, s32, 7' % sEo)
    else:
        for k in range(4): a('v_mov_b32 v%d, -1' % (44 + k))
        a('s_sub_u32 s32, s2, 242'); a('s_cselect_b32 s32, 64, s32'); a('s_lshl_b32 s32, s32, 14'); a('s_add_u32 s32, s32, s%d' % sWl)
        for k in range(2): vmi('buffer_store_dwordx4 v[44:47], v%d, %s, s32 offen offset:%d sc1' % (vL16, sr(sDB, 4), k * 1024), 'sent')(a)

    S = Sched()
    if not isU:
        if NPF[0] >= 0: S.add_post(NPF[0], pfc)
        if NPF[1] >= 0: S.add_post(NPF[1], pfw)
    tR = {}
    def rd(key, txt):
        def f(a):
            a(txt); tR[key] = lg.issue()
        return f
    def lw(key): return lambda a: lg.wait_for(a, tR[key])
    def mkbar(tags, stamp=None):
        def f(a):
            a('s_waitcnt lgkmcnt(0)'); lg.done = lg.n
            if tags: vm.wait_for(a, max(t() for t in tags))
            a('s_barrier'); a('s_setprio 3')
            if dbg > 1 and stamp is not None: ts(a, stamp)
        return f
    UB = [[32, 36, 40, 44] + list(range(128, 160, 4)), [48, 52, 56, 60] + list(range(160, 192, 4))]
    def uf(n, ks, q): return UB[n & 1][ks * 6 + q]
    def ua(c, tt): return UACC + (c * 4 + tt) * 4
    def rdU(n, ks, q):
        return rd(('U', n, ks, q), 'ds_read_b128 %s, v%d offset:%d' % (vr(uf(n, ks, q), 4), UAD + ks + (2 if q >= 4 else 0), q * 2048 if q < 4 else (q - 4) * 8192))
    def uaddr(n):
        return ['s_add_u32 s33, s%d, 0x%x\nv_add_u32 v%d, s33, v%d\nv_add_u32 v%d, s33, v%d' % (sb, USLOT[n % 5], UAD + o, vL0, UAD + o + 1, vL0 + 1) for sb, o in ((sUx, 0), (sUb, 2))]
    if isU:
        for n in range(10):
            for ks in range(2):
                for c in range(2):
                    for tt in range(4):
                        d = vr(ua(c, tt), 4)
                        S.mfma(MF % (d, vr(uf(n, ks, tt), 4), vr(uf(n, ks, 4 + c), 4), '0' if (n == 0 and ks == 0) else d))
    BK = 160 if isU else 0
    def tK(kt, d): return ACC + ((d >> 1) * 4 + kt) * 8 + (d & 1) * 4
    def tV(kt, d): return 128 + (d * 2 + (kt >> 1)) * 8 + (kt & 1) * 4
    def af(kt): return XF + kt * 4
    def rdW(s, g, d, hf): return rd(('W', s, g, d), 'ds_read_b64_tr_b16 %s, v%d offset:%d' % (vr(FR + g * 16 + d * 4 + hf * 2, 2), vT + d, wslot(s) + g * 8192 + hf * 1024))
    def rdA(s, kt):
        sl = (s >> 1) % 3
        return rd(('A', s, kt), 'ds_read_b128 %s, v%d offset:%d' % (vr(af(kt), 4), vAr + (s & 1) + (2 if sl == 2 else 0), (sl & 1) * 32768 + kt * 2048))
    for s in range(16):
        for g in range(2):
            for kt in range(4):
                for d in range(4):
                    w = vr(FR + g * 16 + d * 4, 4); x = vr(af(kt), 4)
                    t = vr(tK(kt, d) if g == 0 else tV(kt, d), 4)
                    i = S.mfma(MF % ((t, w, x, '0' if s == 0 else t) if g == 0 else (t, x, w, '0' if s == 0 else t)))
                    if kt == 0: S.add_pre(i, lw(('W', s, g, d)))
                    if g == 0 and d == 0: S.add_pre(i, lw(('A', s, kt)))
    kvfirst = [rdA(0, 0)] + [rdW(0, 0, d, hf) for d in range(4) for hf in range(2)] + [rdA(0, kt) for kt in (1, 2, 3)]
    BQ = BK + 512
    def tile(qt, dt): return ACC + (dt * 2 + qt) * 4
    def qf(s, qt): return Q + (s * 2 + qt) * 4
    def xf(s, ks, qt): return XF + ((((s + 1) & 1) * 2 + ks) * 2 + qt) * 4
    def rdQW(s, g, q, hf): return rd(('QW', s, g, q), 'ds_read_b64_tr_b16 %s, v%d offset:%d' % (vr(FR + (g & 1) * 16 + q * 4 + hf * 2, 2), vT + 2 * g + (q >> 1), wslot(s) + (q & 1) * 8192 + hf * 1024))
    def rdX(s, ks, qt): return rd(('X', s, ks, qt), 'ds_read_b128 %s, v%d offset:%d' % (vr(xf(s, ks, qt), 4), vAr + ks + (2 if xreg(s) == 2 else 0), (xreg(s) & 1) * 32768 + qt * 2048))
    for s in range(10):
        for g in range(4):
            for q in range(4):
                for qt in range(2):
                    d = vr(tile(qt, 2 * g + (q >> 1)), 4)
                    i = S.mfma(MF % (d, vr(FR + (g & 1) * 16 + q * 4, 4), vr(xf(s, q & 1, qt), 4), '0' if (s == 0 and (q & 1) == 0) else d))
                    if qt == 0: S.add_pre(i, lw(('QW', s, g, q)))
                    if g == 0 and q < 2: S.add_pre(i, lw(('X', s, q, qt)))
    def qfirst(s):
        L = [rdQW(s, 0, q, hf) for q in range(4) for hf in range(2)]
        return L[:2] + [rdX(s, 0, 0), rdX(s, 0, 1)] + L[2:4] + [rdX(s, 1, 0), rdX(s, 1, 1)] + L[4:]
    BY = BQ + 320
    BFy = [240, 244, 248, 252, 20]; YA = [7, 8, 9]; YB = [10, 11, 24]
    def AF(n): return 32 + 16 * (n & 1)
    def YP(p): return 160 + 8 * p
    def yacc(c, q): return YP(2 * c + (q >> 1)) + (q & 1) * 4
    def rdYA(n, q, hf):
        r = YR[n % 5]
        return rd(('YA', n, q), 'ds_read_b64_tr_b16 %s, v%d offset:%d' % (vr(AF(n) + 4 * q + 2 * hf, 2), YA[r >> 1], (r & 1) * 32768 + hf * 2048 + q * 256))
    def rdYB(n, c):
        r = YR[n % 5]
        return rd(('YB', n, c), 'ds_read_b128 %s, v%d offset:%d' % (vr(BFy[c], 4), YB[r >> 1], (r & 1) * 32768 + c * 1024))
    if not isU:
        for n in range(14):
            for c in range(5):
                for q in range(4):
                    d = vr(yacc(c, q), 4)
                    i = S.mfma(MF % (d, vr(AF(n) + 4 * q, 4), vr(BFy[c], 4), '0' if n == 0 else d))
                    if c == 0: S.add_pre(i, lw(('YA', n, q)))
                    if q == 0: S.add_pre(i, lw(('YB', n, c)))
    BE = BY + (0 if isU else 280)
    tS = sKV
    def pfb(w, base, lim, idx, wq=False):
        vP = vKS0
        v = ['v_lshrrev_b32 v%d, 3, v1\nv_lshlrev_b32 v%d, 13, v%d' % (vP, vP, vP), 'v_and_b32 v%d, 7, v1\nv_lshl_add_u32 v%d, v%d, 7, v%d' % (vKS, vP, vKS, vP)] if wq else ['v_lshlrev_b32 v%d, 7, v1' % vP]
        return [base + '\ns_and_b32 s%d, s%d, 0xffff\ns_mov_b32 s%d, 0x00020000' % (tS + 1, tS + 1, tS + 3), lim + '\ns_cmp_eq_u32 s3, %d\ns_cselect_b32 s%d, s33, 0' % (w, tS + 2)] + v + \
               [vmi(idx + '\nv_add_u32 v%d, s32, v%d\nbuffer_load_dword v%d, v%d, %s, 0 offen' % (vP, vP, vPf, vP, sr(tS, 4)))]
    def pb(k): return 's_mov_b32 s%d, s%d\ns_mov_b32 s%d, s%d' % (tS, P[k], tS + 1, P[k] + 1)
    def xpart(sz, o): return 's_lshr_b32 s32, s2, 3\ns_add_u32 s32, s32, %d\ns_lshl_b32 s32, s32, 13\ns_mul_i32 s33, s%d, %d\ns_add_u32 s32, s32, s33' % (o, sX_, sz)
    def xlim(sz): return 's_add_u32 s33, s%d, 1\ns_mul_i32 s33, s33, %d' % (sX_, sz)
    def cl(v): return 's_mov_b32 s33, 0x%x' % v
    PF1 = [pfb(1, pb('B_x'), cl(2048 * 1280), 's_lshl_b32 s32, s2, 13')]
    for k in range(3):
        PF1.append(pfb(3 + k, pb('wq'), cl(640 * 8192), 's_lshr_b32 s32, s2, 3\ns_add_u32 s32, s32, %d\ns_lshl_b32 s32, s32, 16\ns_lshl_b32 s33, s%d, 10\ns_add_u32 s32, s32, s33' % (32 * k, sX_), True))
    PF1.append(pfb(7, pb('B_x'), cl(2048 * 1280), 's_lshl_b32 s32, s2, 13\ns_add_u32 s32, s32, 0x200000'))
    PF = {10 + k: pfb(2 + k, pb('wo'), xlim(655360), xpart(655360, 32 * k)) for k in range(3)}
    if not isU:
        for k in range(5): PF[2 + k] = PF1[k]
    BP = 12
    SSMP = int(os.environ.get('SP', 11)) if isU else 14
    for s in range(16):
        b = BK + 32 * s
        S.spread([rdW(s, 1, d, hf) for d in range(4) for hf in range(2)], b, b + 8)
        if s < 15: tags = [lambda s=s: tagW[s + 1], lambda s=s: tagA[(s + 1) >> 1]]
        else: tags = [lambda: tagQW[0], lambda: tagX[0]]
        if s == SSMP: tags.append(lambda: tg['ssm'])
        if s == 2 and not isU: tags.append(lambda: tg['sent'])
        S.add_post(b + BP, mkbar(tags, 2 + s))
        for q, p in enumerate((20, 28, 36)): S.add_post(b + p, 's_setprio %d' % (2 - q))
        if s == SSMP: S.add_post(b + BP, vmi(publish('x' if isU else 'cc')))
        if s == 2 and not isU: S.add_post(b + BP, vmi('s_sub_u32 s33, s2, 242\ns_cselect_b32 s33, 64, s33\ns_lshl_b32 s33, s33, 4\nv_mov_b32 v%d, 1\nbuffer_store_dword v%d, v%d, %s, s33 offen sc1' % (vTm, vTm, vFo, sr(sDG, 4))))
        if s < 15:
            for k, p in enumerate((13, 14, 15, 16, 17, 18, 20, 21)): S.add_post(b + p, rdW(s + 1, 0, k >> 1, k & 1))
            for kt in range(4): S.add_post(b + 19 + 4 * kt, rdA(s + 1, kt))
        D = []
        if s + 4 < 16: D += [dmaW(s + 4, 0), dmaW(s + 4, 1)]
        if 1 <= s <= 10:
            Dn = ((s - 1) >> 1) + 3; o = 2 * ((s - 1) & 1)
            D += [dmaA(Dn, o), dmaA(Dn, o + 1)]
        if s >= 12: D += [dmaQW(s - 12, 0), dmaQW(s - 12, 1)]
        if s >= 11:
            n = (s - 11) >> 1; o = 2 * ((s - 11) & 1)
            D += [dmaX(n, o), dmaX(n, o + 1)]
        for k, dd in enumerate(D): S.add_post(b + BP + 2 + 5 * k, dd)
        if s in PF and 'nopf' not in XO:
            S.spread(PF[s][:-1], b + 20, b + 29)
            S.add_post(b + 31, PF[s][-1])
    xset = ['s_sub_u32 s32, 15, s%d\ns_and_b32 s33, s3, 3\ns_lshl_b32 s%d, s32, 2\ns_add_u32 s%d, s%d, s33' % (sI, sDq, sDq, sDq),
            's_lshl_b32 s%d, s%d, 2\ns_and_b32 s33, s3, 3\ns_add_u32 s%d, s%d, s33' % (sN, sI, sN, sN),
            's_lshl_b32 s%d, s%d, 18\ns_lshl_b32 s%d, s%d, 18' % (sCtA, sN, sCtB, sDq),
            's_cmp_ge_u32 s3, 4\ns_cselect_b32 s%d, s%d, s%d' % (sJ1, sN, sDq),
            's_lshl_b32 s32, s%d, 5\nv_lshrrev_b32 v%d, 3, v1\nv_add_u32 v%d, s32, v%d' % (sJ1, vTm, vTm, vTm), 'v_mul_u32_u24 v%d, 1280, v%d' % (vTm, vTm),
            'v_and_b32 v%d, 0x70, v%d' % (vX, vX), 'v_and_b32 v%d, 0x70, v%d' % (vX + 1, vX + 1),
            'v_add_u32 v%d, v%d, v%d' % (vX, vX, vTm), 'v_add3_u32 v%d, v%d, v%d, s%d' % (vX + 1, vX + 1, vTm, sThr),
            srd_l(sA, P['B_x'], 2048 * 1280)]
    S.add_post(BK + 32 * 10 + 30, 's_movk_i32 s%d, 10240' % sThr)
    S.spread(xset, BK + 32 * 10 + 31, BK + 32 * 11 + 12)
    wset = ['s_lshr_b32 s32, s3, 2\ns_lshl_b32 s32, s32, 18\nv_add_u32 v%d, s32, v%d' % (vW, vW), srd_l(sW, P['wq'], 640 * 8192)]
    S.spread(wset, BK + 32 * 12 + 2, BK + 32 * 12 + 8)
    b = BK + 32 * 15
    S.spread(['s_add_u32 s33, s%d, 0x10000\nv_add_u32 v%d, s33, v%d\nv_add_u32 v%d, s33, v%d' % (sXl, vAr + 2, vL0, vAr + 3, vL0 + 1),
              'v_add_u32 v%d, s%d, v%d' % (vAr, sXl, vL0), 'v_add_u32 v%d, s%d, v%d' % (vAr + 1, sXl, vL0 + 1)], b + 1, b + 6)
    S.spread(['v_xor_b32 v%d, s%d, v%d' % (vT + dt, sD, vT + dt) for dt in range(4)], b + 8, b + 12)
    S.spread(['v_xor_b32 v%d, 0x80, v%d' % (vT + 4 + dt, vT + dt) for dt in range(4)], b + 13, b + 17)
    S.add_post(b + 12, 's_mov_b32 s%d, s%d' % (sD, sJ1))
    KP = 224
    S.spread(sum([pack8(KP + 4 * f, ACC + 8 * f) for f in (0, 4, 1, 5, 2, 6, 3, 7)], []), b + 7, b + 27)
    S.spread(sum([pack8(128 + 8 * f, 128 + 8 * f) for f in (0, 2, 4, 6, 1, 3, 5, 7)], []), b + 27, b + 47)
    def stK(f):
        kt, s_ = f & 3, f >> 2
        return vmi('s_add_u32 s33, s%d, 0x%x\nbuffer_store_dwordx4 %s, v%d, %s, s33 offen offset:%d sc1' % (sK0, (kt >> 1) * 16384 + (kt & 1) * 4096, vr(KP + 4 * f, 4), vL16, sr(sKVO, 4), s_ * 1024), 'kv')
    def stV(f):
        d, kb = f >> 1, f & 1
        return vmi('s_add_u32 s33, s%d, 0x%x\nbuffer_store_dwordx4 %s, v%d, %s, s33 offen offset:%d sc1' % (sV0, kb * 16384, vr(128 + 8 * f, 4), vL16, sr(sKVO, 4), d * 1024), 'kv')
    ST = [stK(f) for f in range(2)] + [stV(f) for f in range(8)] + [stK(f) for f in range(2, 8)]
    S.spread(qfirst(0), b + 16, b + 31)
    S.spread([dmaX(2, 2), dmaX(2, 3)], BQ + 1, BQ + 7)
    S.spread(ST, BQ + 7, BQ + (STE if isU else STN))
    def cis(m_mag, m_ang, re, im, tmp):
        return ['v_fract_f32 v%d, v%d' % (im, m_ang), 'v_exp_f32 v%d, v%d' % (tmp, m_mag), 'v_cos_f32 v%d, v%d' % (re, im), 'v_sin_f32 v%d, v%d' % (im, im),
                'v_mul_f32 v%d, v%d, v%d' % (re, re, tmp), 'v_mul_f32 v%d, v%d, v%d' % (im, im, tmp)]
    def allchk(name, adr, srd, vd, va, p0, p1):
        ld = 'buffer_load_dword v%d, v%d, %s, 0 offen sc1' % (vd, va, sr(srd, 4))
        S.spread(adr + ['s_lshl_b32 s32, s3, 20\nv_add_u32 v%d, s32, v%d' % (va, va), vmi(ld, name)], p0 - len(adr) - 1, p0 + 1)
        chk = 'v_cmp_ne_u32 vcc, 1, v%d' % vd
        S.spread([vmw(name), chk + '\ns_cmp_lg_u32 s3, 0\ns_cbranch_scc1 %s_ret\ns_cbranch_vccnz %s\n%s_ret:' % (name, name, name)], p1, p1 + 2)
        t = tail
        t.label(name); t('s_mov_b32 s32, %d' % SPIN); t.label(name + '_l'); t('s_sleep 8')
        t(ld); t('s_waitcnt vmcnt(0)'); t(chk)
        t('s_cbranch_vccz %s_ret' % name); t('s_sub_u32 s32, s32, 1'); t('s_cmp_lg_u32 s32, 0'); t('s_cbranch_scc1 %s_l' % name); t('s_branch %s_ret' % name)
    S.add_post(50, srd_l(sDG, P['dbg'], 256))
    allchk('f%s_in' % role, ['v_min_u32 v22, 13, v1', 'v_lshlrev_b32 v22, 4, v22'], sDG, 23, 22, *((100, 140) if isU else (260, 326)))
    if isU:
        for n in range(10):
            u = 16 * n
            tags = [lambda n=n: tagU[n + 1]] if n < 9 else [lambda: tagW[0], lambda: tagA[0]]
            S.add_pre(u, mkbar(tags, 20 + n))
            for q, p in enumerate((4, 8, 12)): S.add_post(u + p, 's_setprio %d' % (2 - q))
            if n < 9: S.spread(uaddr(n + 1) + [rdU(n + 1, ks, q) for ks in range(2) for q in range(6)], u, u + 12)
            else: S.spread(kvfirst, u, u + 12)
            if n < 5: D = [dmaU(n + 5, i) for i in range(4)]
            elif n in (5, 7): D = [dmaW(n - 5 + (i >> 1), i & 1) for i in range(4)]
            else: D = [dmaA((0, 0, 1, 2)[n - 6], i) for i in range(4)]
            S.spread(D, u + 1, u + 13)
            if 3 <= n <= 7 and 'nopf' not in XO:
                S.spread(PF1[n - 3][:-1], u + 6, u + 14); S.add_post(u + 15, PF1[n - 3][-1])
            if n == 2 and 'npfu' not in XO: S.add_post(u + 15, pfc)
        LR, L16, L32, PA, PB, EL, L256, EO, LO, G64, X_ = 208, 210, 212, 214, 216, 216, 6, 8, 10, 20, 22
        A_ = 216; PR = 218; TR = vPub
        SC = ['v_and_b32 v%d, 3, v1\nv_bfe_u32 v%d, v1, 2, 2' % (PR, TR), 'v_lshl_add_u32 v%d, v%d, 4, v%d' % (TR, TR, PR),
              's_lshl_b32 s32, s%d, 6\ns_and_b32 s33, s3, 3\ns_lshl_b32 s33, s33, 2\ns_add_u32 s32, s32, s33\nv_add_lshl_u32 v%d, v%d, s32, 1' % (sCB, TR, TR)]
        SC += [vmi('global_load_ushort v%d, v%d, %s' % (PR + p, TR, sr(P[k], 2)), 'par') for p, k in enumerate(('Lre', 'Lim', 'logdt'))]
        S.spread(SC, 2, 14)
        SC = [vmw('par')] + ['v_lshlrev_b32 v%d, 16, v%d' % (PR + p, PR + p) for p in range(3)] + lam_params(A_, PR, PR + 1, PR + 2)
        SC += cis(A_, A_ + 1, LR, LR + 1, TR)
        for W, m in ((L16, 16.0), (L32, 32.0), (L256, 256.0)):
            SC += ['v_mul_f32 v%d, %s, v%d' % (W + 1, f32(m), A_ + 1), 'v_mul_f32 v%d, %s, v%d' % (TR, f32(m), A_)] + cis(TR, W + 1, W, W + 1, TR)
        SC += ['v_lshrrev_b32 v%d, 4, v1' % TR, 'v_lshlrev_b32 v%d, 6, v%d' % (TR, TR), 'v_cvt_f32_u32 v%d, v%d' % (TR, TR),
               'v_mul_f32 v%d, v%d, v%d' % (G64 + 1, TR, A_ + 1), 'v_mul_f32 v%d, v%d, v%d' % (TR, TR, A_)] + cis(TR, G64 + 1, G64, G64 + 1, TR)
        S.spread(SC, 82, 156)
        def cfma(d, m, x, y):
            return ['v_fma_f32 v%d, v%d, v%d, v%d' % (d, m, x, y), 'v_fma_f32 v%d, v%d, v%d, v%d' % (d + 1, m, x + 1, y + 1),
                    'v_fma_f32 v%d, -v%d, v%d, v%d' % (d, m + 1, x + 1, d), 'v_fmac_f32 v%d, v%d, v%d' % (d + 1, m + 1, x)]
        def ur(k): return UACC + k
        def ui(k): return UACC + 16 + k
        SC = []
        for k in range(1, 16):
            d = PA if k & 1 else PB
            er, ei = (ur(0), ui(0)) if k == 1 else ((PB, PB + 1) if k & 1 else (PA, PA + 1))
            SC += ['v_fma_f32 v%d, v%d, v%d, v%d' % (d, LR, er, ur(k)), 'v_fma_f32 v%d, v%d, v%d, v%d' % (d + 1, LR, ei, ui(k)),
                   'v_fma_f32 v%d, -v%d, v%d, v%d' % (d, LR + 1, ei, d), 'v_fmac_f32 v%d, v%d, v%d' % (d + 1, LR + 1, er)]
        SC += ['v_mov_b32 v%d, v%d' % (EO + c, PA + c) for c in range(2)] + ['v_permlane16_swap_b32 v%d, v%d' % (EO + c, PA + c) for c in range(2)]
        SC += cfma(PA, L16, EO, PA)
        SC += ['v_mov_b32 v%d, v%d' % (LO + c, PA + c) for c in range(2)] + ['v_permlane32_swap_b32 v%d, v%d' % (LO + c, PA + c) for c in range(2)]
        SC += cfma(PA, L32, LO, PA)
        SC += ['v_min_u32 v%d, -2, v%d' % (PA + c, PA + c) for c in range(2)]
        SC += ['v_lshrrev_b32 v%d, 4, v1\nv_lshlrev_b32 v%d, 3, v1' % (TR, PB), 'v_lshl_add_u32 v%d, v%d, 12, v%d' % (PB, TR, PB)]
        SC += [vmi('buffer_store_dwordx2 %s, v%d, %s, s%d offen sc1' % (vr(PA, 2), PB, sr(sES, 4), sEo))]
        S.spread(SC, BK + 4, BK + 48)
        vE = X_
        emax = ['v_max3_u32 v%d, v%d, v%d, v%d' % (TR, EL, EL + 1, EL + 2)] + ['v_max3_u32 v%d, v%d, v%d, v%d' % (TR, TR, EL + k, EL + k + 1) for k in (3, 5)] + \
               ['v_max_u32 v%d, v%d, v%d' % (TR, TR, EL + 7), 'v_cmp_eq_u32 vcc, -1, v%d' % TR]
        t = tail
        def round_(r):
            eld = ['buffer_load_dwordx2 %s, v%d, %s, 0 offen offset:%d sc1' % (vr(EL + 2 * m, 2), vE, sr(sES, 4), 128 + 512 * (m + 4 - 4 * r)) for m in range(4)]
            nm = 'fU_es%d' % r
            t.label(nm); t('s_mov_b32 s32, %d' % SPIN); t.label(nm + '_l'); t('s_sleep 8')
            t.extend(eld); t('s_waitcnt vmcnt(0)'); t.extend(emax)
            t('s_cbranch_vccz %s_ret' % nm); t('s_sub_u32 s32, s32, 1'); t('s_cmp_lg_u32 s32, 0'); t('s_cbranch_scc1 %s_l' % nm); t('s_branch %s_ret' % nm)
            return [vmi(e, nm) for e in eld], [vmw(nm)] + emax[:-1] + [emax[-1] + '\ns_nop 0\ns_cbranch_vccnz %s\n%s_ret:' % (nm, nm)]
        l0, c0 = round_(0); l1, c1 = round_(1)
        S.spread(['v_lshl_add_u32 v%d, v1, 3, s%d' % (vE, sEo)] + l0, BK + 110, BK + 120)
        SC = c0 + cfma(EL + 4, L256, EL + 6, EL + 4) + cfma(EL + 2, L256, EL + 4, EL + 2) + cfma(PA, L256, EL + 2, EL) + l1
        R0 = [int(c) for c in os.environ.get('R0', '150,166,200').split(',')]
        S.spread(SC, BK + R0[0], BK + R0[1])
        SC = c1 + cfma(EL + 6, L256, PA, EL + 6)
        for m in range(2, -1, -1): SC += cfma(EL + 2 * m, L256, EL + 2 * m + 2, EL + 2 * m)
        C_ = EL + 2
        SC += ['v_mul_f32 v%d, v%d, v%d' % (C_, G64, EL), 'v_mul_f32 v%d, v%d, v%d' % (C_ + 1, G64, EL + 1),
               'v_fma_f32 v%d, -v%d, v%d, v%d' % (C_, G64 + 1, EL + 1, C_), 'v_fmac_f32 v%d, v%d, v%d' % (C_ + 1, G64 + 1, EL)]
        for sw in ('16', '32'):
            SC += ['v_mov_b32 v%d, v%d' % (X_ + c, C_ + c) for c in range(2)] + ['v_permlane%s_swap_b32 v%d, v%d' % (sw, C_ + c, X_ + c) for c in range(2)]
            SC += ['v_add_f32 v%d, v%d, v%d' % (C_ + c, C_ + c, X_ + c) for c in range(2)]
        SC += cfma(LO, L32, C_, LO)
        SC += ['v_cmp_lt_u32 vcc, 31, v1\nv_cndmask_b32 v%d, v%d, v%d, vcc\nv_cndmask_b32 v%d, v%d, v%d, vcc' % (C_, C_, LO, C_ + 1, C_ + 1, LO + 1)]
        SC += cfma(EO, L16, C_, EO)
        SC += ['v_and_b32 v%d, 16, v1' % TR, 'v_cmp_ne_u32 vcc, 0, v%d\nv_cndmask_b32 v%d, v%d, v%d, vcc\nv_cndmask_b32 v%d, v%d, v%d, vcc' % (TR, C_, C_, EO, C_ + 1, C_ + 1, EO + 1)]
        SC += [srd_l(sUS, P['ws'], 5 << 20, WS_HT),
               's_mul_i32 s32, s%d, 40\ns_add_u32 s32, s32, s%d\ns_lshl_b32 s32, s32, 1\ns_and_b32 s33, s%d, 1\ns_add_u32 s32, s32, s33\n' % (sX_, sHo, sTT) +
               's_lshl_b32 s32, s32, 1\ns_lshr_b32 s33, s3, 2\ns_add_u32 s32, s32, s33\ns_lshl_b32 s%d, s32, 12' % sHo,
               'v_xor_b32 v%d, 0x80, v%d' % (vE, vL16)]
        for k in range(16):
            pr, pi = (C_, C_ + 1) if k == 0 else (ur(k - 1), ui(k - 1))
            SC += ['v_fmac_f32 v%d, v%d, v%d' % (ur(k), LR, pr), 'v_fmac_f32 v%d, v%d, v%d' % (ui(k), LR, pi),
                   'v_fma_f32 v%d, -v%d, v%d, v%d' % (ur(k), LR + 1, pi, ur(k)), 'v_fmac_f32 v%d, v%d, v%d' % (ui(k), LR + 1, pr)]
            if k in (8, 15):
                hh = 0 if k == 8 else 1
                for c, base in enumerate((ur(8 * hh), ui(8 * hh))):
                    SC += pack8(base, base)
                    SC += [vmi('buffer_store_dwordx4 %s, v%d, %s, s%d offen offset:%d sc1' % (vr(base, 4), vE if hh else vL16, sr(sUS, 4), sHo, c * 2048 + hh * 1024), 'ssm')]
        S.spread(SC, BK + R0[2], BK + int(os.environ.get('SE', 272)))
    else:
        T = 224
        sWid, sDbk, sU_ = sUx, sUb, sTT
        C0 = T; CP = T + 16; TT = 6
        vC = vTm
        SC = ['s_sub_u32 s32, s2, 160\ns_lshl_b32 s32, s32, 3\ns_add_u32 s%d, s32, s3' % sWid,
              srd_l(sES, P['ws'], 1600 * 1024, WS_CC), 's_cmp_lt_u32 s%d, 400\ns_cselect_b32 s%d, s%d, 0\ns_cselect_b32 s%d, s%d, 0' % (sWid, sES + 2, sES + 2, sWid, sWid),
              's_mul_i32 s%d, s%d, 6554\ns_lshr_b32 s%d, s%d, 16' % (sDbk, sWid, sDbk, sDbk), 's_mul_i32 s32, s%d, 10\ns_sub_u32 s%d, s%d, s32' % (sDbk, sU_, sWid),
              's_lshl_b32 s32, s%d, 7\nv_lshl_add_u32 v%d, v1, 1, s32' % (sU_, vC)]
        SC += [vmi('global_load_ushort v%d, v%d, %s' % (CP + p, vC, sr(P[k], 2))) for p, k in enumerate(('Lre', 'Lim', 'logdt'))]
        SC += ['v_and_b32 v%d, 15, v1\ns_lshl_b32 s33, s%d, 4\nv_add_u32 v%d, s33, v%d' % (vC, sDbk, vC, vC), 'v_mul_u32_u24 v%d, 1280, v%d' % (vC, vC),
               'v_lshrrev_b32 v%d, 4, v1\nv_lshl_add_u32 v%d, v%d, 5, v%d' % (TT, vC, TT, vC), 's_lshl_b32 s32, s%d, 7\nv_add_u32 v%d, s32, v%d' % (sU_, vC, vC)]
        for p, k in enumerate(('Cre', 'Cim')):
            for o in range(2): SC.append(vmi('global_load_dwordx4 %s, v%d, %s offset:%d' % (vr(C0 + 8 * p + 4 * o, 4), vC, sr(P[k], 2), 16 * o), 'cc'))
        S.spread(SC, 14, 44)
        E = CP + 3
        SC = [vmw('cc')] + ['v_lshlrev_b32 v%d, 16, v%d' % (CP + p, CP + p) for p in range(3)] + lam_params(E, CP, CP + 1, CP + 2)
        SC += ['v_exp_f32 v%d, v%d' % (E, E), 'v_cos_f32 v%d, v%d' % (E + 2, E + 1), 'v_sin_f32 v%d, v%d' % (E + 1, E + 1),
               'v_fma_f32 v%d, v%d, v%d, -1.0' % (E + 2, E, E + 2), 'v_mul_f32 v%d, v%d, v%d' % (E + 1, E, E + 1),
               'v_mul_f32 v%d, v%d, v%d' % (E + 3, CP, CP), 'v_fmac_f32 v%d, v%d, v%d' % (E + 3, CP + 1, CP + 1),
               'v_rcp_f32 v%d, v%d' % (E + 3, E + 3), 'v_add_f32 v%d, v%d, v%d' % (E + 3, E + 3, E + 3),
               'v_mul_f32 v%d, v%d, v%d' % (E + 4, E + 2, CP), 'v_fmac_f32 v%d, v%d, v%d' % (E + 4, E + 1, CP + 1),
               'v_mul_f32 v%d, v%d, v%d' % (E, E + 1, CP), 'v_fma_f32 v%d, -v%d, v%d, v%d' % (E, E + 2, CP + 1, E)]
        AR, NAR, NAI = CP, CP + 1, CP + 2
        SC += ['v_mul_f32 v%d, v%d, v%d' % (AR, E + 4, E + 3), 'v_mul_f32 v%d, -v%d, v%d' % (NAR, E + 4, E + 3), 'v_mul_f32 v%d, -v%d, v%d' % (NAI, E, E + 3)]
        SC += ['s_mul_i32 s32, s%d, 6554\ns_lshr_b32 s32, s32, 16\ns_mul_i32 s33, s32, 390\ns_add_u32 s33, s33, s%d\ns_mul_i32 s32, s%d, 40\ns_add_u32 s33, s33, s32\ns_lshl_b32 s%d, s33, 10' % (sDbk, sDbk, sU_, sWid)]
        OB = (T + 24, T + 28); X = TT
        for n in range(16):
            re = C0 + (n >> 1); im = re + 8
            y0 = X + 2 + (n & 1); y1 = X + 4 + (n & 1)
            if n & 1: SC += ['v_and_b32 v%d, 0xffff0000, v%d' % (X, re), 'v_and_b32 v%d, 0xffff0000, v%d' % (X + 1, im)]
            else: SC += ['v_lshlrev_b32 v%d, 16, v%d' % (X, re), 'v_lshlrev_b32 v%d, 16, v%d' % (X + 1, im)]
            D = ' row_newbcast:%d row_mask:0xf bank_mask:0xf' % n
            SC += ['v_mul_f32_dpp v%d, v%d, v%d' % (y0, AR, X) + D, 'v_mul_f32_dpp v%d, v%d, v%d' % (y1, NAR, X + 1) + D,
                   'v_fmac_f32_dpp v%d, v%d, v%d' % (y0, NAI, X + 1) + D, 'v_fmac_f32_dpp v%d, v%d, v%d' % (y1, NAI, X) + D]
            if n & 1:
                O = OB[(n >> 2) & 1]
                SC += [cvt(O + ((n >> 1) & 1), X + 2, X + 3), cvt(O + 2 + ((n >> 1) & 1), X + 4, X + 5)]
            if n & 3 == 3:
                SC.append(vmi('s_add_u32 s33, s%d, %d\nbuffer_store_dwordx4 %s, v%d, %s, s33 offen sc1' % (sWid, (n >> 2) * 10240, vr(O, 4), vL16, sr(sES, 4)), 'ssm'))
        S.spread(SC, 150, 370)
    for s in range(10):
        b = BQ + 32 * s
        for g in range(3):
            S.spread([rdQW(s, g + 1, q, hf) for q in range(4) for hf in range(2)], b + 8 * g, b + 8 * g + 6)
        if isU or s < 7: S.spread([dmaX(s + 3, i) for i in range(4)], b + 8, b + 24)
        else: S.spread([dmaY((0, 2, 3)[s - 7], i) for i in range(4)], b + 8, b + 24)
        if s == 9 and isU: break
        tags = [lambda s=s: tagQW[s + 1], lambda s=s: tagX[s + 1]] if s < 9 else [lambda: tagY[0]]
        S.add_post(b + 25, mkbar(tags, 32 + s))
        for q, p in enumerate((33, 41, 49) if s < 9 else (29,)): S.add_post(b + p, 's_setprio %d' % (2 - q))
        if s < 9: S.spread(qfirst(s + 1), b + 25, b + 31)
        if s + 4 < 10: S.spread([dmaQW(s + 4, 0), dmaQW(s + 4, 1)], b + 28, b + 36)
        if not isU and s == 7: S.spread([dmaY(1, i) for i in range(4)], b + 27, b + 39)
    aset = ['s_lshl_b32 s32, s%d, 20\ns_add_u32 s%d, s%d, s32\ns_addc_u32 s%d, s%d, 0\ns_and_b32 s%d, s%d, 0xffff' % (sH, sKV, P['ws'], sKV + 1, P['ws'] + 1, sKV + 1, sKV + 1),
            's_sub_u32 s32, 16, s%d\ns_lshl_b32 s%d, s32, 16\ns_mov_b32 s%d, 0x00020000\ns_mov_b32 s%d, s%d' % (sI, sKV + 2, sKV + 3, sLim, sKV + 2),
            's_lshl_b32 s32, s%d, 13\ns_add_u32 s%d, s%d, s32\ns_add_u32 s%d, s%d, s32' % (sH, sCtA, sCtA, sCtB, sCtB),
            's_lshr_b32 s32, s3, 1\ns_lshl_b32 s32, s32, 14\ns_and_b32 s33, s3, 1\ns_lshl_b32 s33, s33, 12\ns_add_u32 s32, s32, s33\nv_add_u32 v%d, s32, v%d' % (vKS0, vL16),
            's_lshr_b32 s32, s3, 2\ns_lshl_b32 s32, s32, 14\ns_and_b32 s33, s3, 3\ns_lshl_b32 s33, s33, 11\ns_add_u32 s32, s32, s33\nv_add_u32 v%d, s32, v%d' % (vKS, vL16),
            's_mov_b32 s%d, s%d\ns_add_u32 s%d, s%d, 0x8000' % (sKm0, sWl, sVm0, sWl), 's_mov_b32 s%d, 0x20000\ns_mov_b32 s%d, 0x12000' % (sKsrc, sVsrc),
            's_lshl_b32 s32, s%d, 1\ns_add_u32 s%d, s32, 2' % (sI, sJ1), 's_mov_b32 s%d, 0\ns_mov_b32 s%d, 0' % (sJ, sN), 's_mov_b32 s%d, %s' % (sThr, f32(2.0 ** 30)),
            's_cmp_eq_u32 s3, 0\ns_cselect_b32 s%d, 0x6003, 0' % sHook]
    S.spread(aset, BQ + 100, BQ + 133)
    pr = (BQ + 184, BQ + 212) if isU else (BY + 130, BY + 190)
    S.add_post(pr[0], vmi(rdy_load(vPf, vPub), 'rdy'))
    S.spread([vmw('rdy'), '\n'.join(rdy_calc(vPf)) + '\ns_add_u32 s32, s%d, s3\ns_cmp_eq_u32 s32, 0\ns_cbranch_scc1 f%s_kv\nf%s_kv_ret:' % (sRdy, role, role)], pr[1], pr[1] + 4)
    t = tail
    t.label('f%s_kv' % role); t('s_mov_b32 s100, %d' % SPIN); t.label('f%s_kv_l' % role); t('s_sleep 8')
    t(rdy_load(vPf, vPub)); t('s_waitcnt vmcnt(0)'); t.extend(rdy_calc(vPf)); t('s_cmp_lg_u32 s%d, 0' % sRdy); t('s_cbranch_scc1 f%s_kv_ret' % role)
    t('s_sub_u32 s100, s100, 1'); t('s_cmp_lg_u32 s100, 0'); t('s_cbranch_scc1 f%s_kv_l' % role); t('s_branch f%s_kv_ret' % role)
    def fin(g):
        o = []
        for qt in range(2):
            for h2 in range(2):
                tt = tile(qt, 2 * g + h2)
                o += ['v_mul_f32 v%d, %s, v%d' % (tt + r, f32(QSCALE), tt + r) for r in range(4)]
                o += [cvt(qf(g, qt) + 2 * h2 + r, tt + 2 * r, tt + 2 * r + 1) for r in range(2)]
        return o
    e = BQ + 288
    if isU:
        for g in range(2): S.spread(fin(g), e + 8 * g + 11, e + 8 * g + 19)
        S.spread(fin(2)[:12], e + 27, e + 32)
    else:
        S.spread(fin(0) + fin(1) + fin(2) + fin(3), BY + 4, BY + 76)
        allchk('fN_ht', ['v_and_b32 v%d, 31, v1\ns_mul_i32 s32, s%d, 25\ns_lshr_b32 s32, s32, 1\nv_min_u32 v%d, 12, v%d\nv_add_lshl_u32 v%d, v%d, s32, 5' % (vTm, sHL, vTm, vTm, vTm, vTm),
                         'v_min_u32 v%d, 19, v1\ns_lshl_b32 s32, s%d, 5\nv_add_lshl_u32 v%d, v%d, s32, 2' % (vPub, sX_, vPub, vPub), 'v_add_u32 v%d, 0x%x, v%d' % (vTm, CCF - XFL, vTm),
                         'v_cmp_lt_u32 vcc, 31, v1\nv_cndmask_b32 v%d, v%d, v%d, vcc' % (vPub, vPub, vTm), 'v_add_u32 v%d, 0x%x, v%d' % (vPub, XFL, vPub)], sDB, vTm, vPub, BQ + 170, BQ + 212)
        yset = ['s_movk_i32 s32, 10240\ns_cmp_lt_u32 s3, 4\ns_cselect_b32 s%d, 0x4000, s32\ns_cselect_b32 s%d, s%d, s%d' % (sYs, sYo, sX_, sHL),
                's_mul_i32 s%d, s%d, 40\ns_sub_u32 s32, s%d, 5\ns_mul_i32 s32, s32, 14\ns_add_u32 s%d, s%d, s32\ns_mul_i32 s%d, s%d, s%d' % (sYo, sYo, sI, sYo, sYo, sYo, sYo, sYs),
                's_mov_b32 s32, 0x%x\ns_cmp_lt_u32 s3, 4\ns_cselect_b32 s32, 0x%x, s32\ns_add_u32 s32, s32, s%d\ns_add_u32 s%d, s%d, s32\ns_addc_u32 s%d, s%d, 0\ns_and_b32 s%d, s%d, 0xffff' % (WS_CC, WS_HT, sYo, sY, P['ws'], sY + 1, P['ws'] + 1, sY + 1, sY + 1),
                's_mov_b32 s%d, s%d\ns_mov_b32 s%d, 0x00020000' % (sY + 2, sYs, sY + 3),
                's_and_b32 s32, s%d, 0x3fff\nv_add_u32 v%d, s32, v%d' % (sXl, vY, vL16),
                'v_and_b32 v8, 3, v1', 'v_lshrrev_b32 v9, 2, v1', 'v_lshrrev_b32 v10, 1, v8', 'v_lshlrev_b32 v11, 3, v10', 'v_xor_b32 v9, v9, v11', 'v_lshlrev_b32 v9, 4, v9', 'v_lshl_add_u32 v9, v10, 10, v9',
                'v_and_b32 v8, 1, v8', 'v_lshl_add_u32 v9, v8, 3, v9', 's_lshr_b32 s32, s3, 1\ns_lshl_b32 s32, s32, 12\nv_add_u32 v%d, s32, v9' % YA[0],
                'v_add_u32 v%d, 0x10000, v%d' % (YA[1], YA[0]), 'v_add_u32 v%d, 0x20000, v%d' % (YA[2], YA[0]),
                's_and_b32 s33, s3, 1\ns_mul_i32 s33, s33, 5120\ns_add_u32 s33, s33, 0x4000\nv_add_u32 v%d, s33, v%d' % (YB[0], vL16), 'v_add_u32 v%d, 0x10000, v%d' % (YB[1], YB[0]),
                srd_l(sES, P['ws'], 8 << 20, WS_B + PY0),
                's_lshl_b32 s32, s%d, 3\ns_add_u32 s32, s32, s3\ns_mul_i32 s32, s32, 3\ns_add_u32 s32, s32, s%d\ns_sub_u32 s32, s32, 5\ns_mul_i32 s%d, s32, 10240' % (sH, sI, sEo)]
        S.spread(yset, BQ + 136, BQ + 200)
        S.add_post(BQ + 230, 'v_add_u32 v%d, 0x20000, v%d' % (YB[2], YB[0]))
        S.spread([rdYA(0, 0, 0), rdYA(0, 0, 1), rdYB(0, 0)] + [rdYA(0, q, hf) for q in range(1, 4) for hf in range(2)] + [rdYB(0, c) for c in range(1, 5)], e + 25, e + 32)
        S.spread([dmaY(4, i) for i in range(4)], e + 27, e + 35)
        for n in range(14):
            y = BY + 20 * n
            S.add_post(y + 3, mkbar(([lambda n=n: tagY[n + 1]] if n < 13 else []) + ([lambda: tg['kv']] if n == 1 else []), 18 + n if n in (0, 1) else (28 + n - 11 if n > 10 else None)))
            if n == 1: S.add_post(y + 3, vmi(publish('kv', vPf)))
            for k, p in enumerate((8, 13, 18)): S.add_post(y + p, 's_setprio %d' % (2 - k))
            if n < 13:
                S.spread([rdYB(n + 1, 0)] + [rdYA(n + 1, q, hf) for q in range(4) for hf in range(2)], y + 3, y + 12)
                for c in range(1, 5): S.add_post(y + 4 * c + 3, rdYB(n + 1, c))
            D = []
            if n < 9: D = [dmaY(n + 5, i) for i in range(4)]
            if n in (10, 12, 13): D = [dmaX({10: 10, 12: 11, 13: 12}[n], i) for i in range(4)]
            for p, x in zip((5, 8, 11, 14), D): S.add_post(y + p, x)
        def pys(p): return pack8(YP(p), YP(p)) + [vmi('s_add_u32 s33, s%d, %d\nbuffer_store_dwordx4 %s, v%d, %s, s33 offen offset:%d sc1' % (sEo, (p >> 2) * 4096, vr(YP(p), 4), vL16, sr(sES, 4), (p & 3) * 1024))]
        y = BY + 260
        for c in range(3): S.spread(pys(2 * c) + pys(2 * c + 1), y + 4 * c + 7, y + 4 * c + 11)
    vm.wait_for(a, tagU[0] if isU else tagA[0]); a('s_barrier')
    if dbg: ts(a, 1)
    if isU: first = uaddr(0) + [rdU(0, ks, q) for ks in range(2) for q in range(6)]
    else: first = kvfirst
    for f in first: f(a) if callable(f) else a(f)
    S.emit(a, 0, BE)
    assert max(list(S.post) + list(S.pre)) < BE, (max(list(S.post) + list(S.pre)), BE)
    if isU: a.extend(fin(2)[12:]); a.extend(fin(3))
    else:
        for p in range(6, 10):
            for f in pys(p): f(a) if callable(f) else a(f)
    a(rdy_load(vFl, vPub)); vm.issue()
    vm.wait_for(a, tagX[10])
    return a.lines
```

```python
from common import *
import copy, os
XO = os.environ.get('XO', '').split(',')
MF = 'v_mfma_f32_16x16x32_bf16 %s, %s, %s, %s'
QSCALE = 128 ** -0.5 * LOG2E
WS_B = 64 << 20
PA0, PB0, PY0, FL0 = 0, 12 << 20, 24 << 20, 32 << 20
KVF, XFL, CCF = 49152, 53248, 55296
WS_ES = WS_B + FL0 + 65536
sDG = 76
WR = 98304
sA, sW, sKVO, sKV, sUS, sDB, sES = 4, 8, 12, 16, 20, 24, 28
sX_, sHL, sI, sH = 34, 35, 36, 37
sJ, sJ1, sD, sN, sThr, sDq, sMsk = 38, 39, 40, 41, 42, 43, 44
sKm0, sKsrc, sVm0, sVsrc, sCtA, sCtB, sXl, sWl, sHook, sRdy, sPub, sLim = 52, 53, 54, 55, 56, 57, 58, 59, 60, 61, 62, 63
P = dict(A_x=64, Lre=66, Lim=68, Bre=70, Bim=72, Cre=74, Cim=76, logdt=78, Dskip=80, B_x=82, ckv=84, wq=86, wuk=88, wuv=90, wo=92, out=94, dbg=96, ws=98)
sK0, sV0 = 44, 45
sUx, sUb, sTT, sCB, sHo, sEo = 46, 47, 48, 49, 50, 51
vL16 = 2; vL0 = 3; vKS = 5; vU = 6; UAD = 8; vKS0 = 12; vFo = 13; vTm = 14; vPf = 15
vT = 16; vW = 24; vX = 25; vAr = 27; vPub = 31; vFl = 30
FR = 32; ACC = 64; Q = 128; XF = 192; UACC = 224
H8 = '0x80808080'
STE = int(os.environ.get('STE', '300')); STN = int(os.environ.get('STN', '250'))

def lam_params(T, vlre, vlim, vldt):
    return ['v_mul_f32 v%d, %s, v%d' % (vldt, f32(LOG2E), vldt), 'v_exp_f32 v%d, v%d' % (vldt, vldt),
            'v_cvt_pk_bf16_f32 v%d, v%d, v%d' % (vldt, vldt, vldt), 'v_lshlrev_b32 v%d, 16, v%d' % (vldt, vldt),
            'v_mul_f32 v%d, v%d, v%d' % (T, vldt, vlre), 'v_mul_f32 v%d, v%d, v%d' % (T + 1, vldt, vlim),
            'v_mul_f32 v%d, %s, v%d' % (T, f32(LOG2E), T), 'v_mul_f32 v%d, %s, v%d' % (T + 1, f32(INV2PI), T + 1)]
def srd_l(s, ptr, size, off=0):
    t = Asm(); mk_srd(t, s, ptr, size, off); return '\n'.join(t.lines)
def cvt(d, x, y): return 'v_cvt_pk_bf16_f32 v%d, v%d, v%d' % (d, x, y)
def pack8(d, s): return [cvt(d + k, s + 2 * k, s + 2 * k + 1) for k in range(4)]
def publish(kind, vt=vTm, vo=vFo):
    if kind == 'kv': adr = 's_add_u32 s33, s%d, 3\ns_and_b32 s33, s33, 7\ns_lshl_b32 s32, s%d, 7\ns_add_u32 s33, s33, s32\ns_add_u32 s33, s33, 0x%x' % (sI, sH, KVF)
    if kind == 'x': adr = 's_lshr_b32 s33, s2, 3\ns_lshl_b32 s32, s%d, 5\ns_add_u32 s33, s33, s32\ns_lshl_b32 s33, s33, 2\ns_add_u32 s33, s33, 0x%x' % (sX_, XFL)
    if kind == 'cc': adr = 's_lshl_b32 s33, s2, 5\ns_add_u32 s33, s33, 0x%x' % (CCF - 160 * 32)
    return adr + '\nv_mov_b32 v%d, %d\nbuffer_store_%s v%d, v%d, %s, s33 offen sc1' % (vt, kind != 'kv', 'byte' if kind == 'kv' else 'dword', vt, vo, sr(sDB, 4))
def rdy_calc(vf):
    return ['v_readlane_b32 s32, v%d, 0' % vf, 'v_readlane_b32 s33, v%d, 1' % vf,
            's_ff1_i32_b64 s32, s[32:33]', 's_lshr_b32 s32, s32, 3', 's_min_u32 s32, s32, 8', 's_lshl_b32 s%d, s32, 17' % sRdy]
def rdy_load(vf, vt):
    return ('s_lshl_b32 s32, s%d, 7\ns_add_u32 s32, s32, 0x%x\nv_lshrrev_b32 v%d, 1, v1\nv_add_lshl_u32 v%d, v%d, s3, 20\nv_lshl_add_u32 v%d, v1, 2, v%d\n' % (sH, KVF, vt, vt, vt, vt, vt) +
            'buffer_load_dword v%d, v%d, %s, s32 offen sc1' % (vf, vt, sr(sDB, 4)))
SPIN = 20000


def front_start(a, dbg):
    a('s_cmp_ge_u32 s2, 256'); a('s_cbranch_scc1 f_end')
    a('s_load_dwordx16 s[80:95], s[0:1], 64')
    a('s_load_dwordx16 s[64:79], s[0:1], 0')
    a('s_load_dwordx4 s[96:99], s[0:1], 128')
    a('v_lshrrev_b32 v2, 6, v0'); a('v_readfirstlane_b32 s3, v2')
    a('v_and_b32 v1, 63, v0')
    if 'nocp' not in XO:
        a('s_getpc_b64 s[32:33]'); a.label('f_pc')
        a('s_and_b32 s34, s2, 0xf8'); a('s_add_u32 s34, s34, s3')
        a('s_cmp_ge_u32 s34, 11'); a('s_cbranch_scc1 f_nocp')
        a('s_lshl_b32 s34, s34, 13'); a('v_lshl_add_u32 v%d, v1, 7, s34' % vPf); a('v_min_u32 v%d, f_last-f_pc, v%d' % (vPf, vPf))
        a('global_load_dword v%d, v%d, s[32:33]' % (vPf, vPf))
        a.label('f_nocp')
    a('s_and_b32 s%d, s2, 7' % sX_); a('s_bfe_u32 s%d, s2, 0x20003' % sHL); a('s_lshr_b32 s%d, s2, 5' % sI)
    a('s_lshl_b32 s32, s%d, 2' % sX_); a('s_add_u32 s%d, s32, s%d' % (sH, sHL))
    a('s_add_u32 s%d, s%d, 3' % (sN, sI)); a('s_and_b32 s%d, s%d, 7' % (sN, sN))
    a('v_lshrrev_b32 v34, 4, v1')
    a('s_and_b32 s33, s3, 3'); a('s_lshl_b32 s33, s33, 3'); a('v_add_u32 v37, s33, v34'); a('v_lshlrev_b32 v37, 13, v37')
    a('s_and_b32 s33, s3, 1'); a('s_lshl_b32 s33, s33, 3'); a('v_lshl_add_u32 v39, v34, 1, s33')
    a('v_and_b32 v38, 15, v1'); a('v_xor_b32 v40, v38, v39')
    a('v_lshl_add_u32 v37, v40, 4, v37'); a('s_lshl_b32 s33, s%d, 8' % sH); a('v_add_u32 v%d, s33, v37' % vW)
    a('s_lshl_b32 s32, s%d, 8' % sN); a('s_lshl_b32 s33, s3, 5'); a('s_add_u32 s32, s32, s33')
    a('v_lshrrev_b32 v32, 3, v1'); a('v_add_u32 v33, s32, v32'); a('v_lshlrev_b32 v33, 10, v33')
    a('v_and_b32 v35, 7, v1'); a('v_xor_b32 v35, v34, v35'); a('v_xor_b32 v36, 4, v35')
    a('v_lshl_add_u32 v%d, v35, 4, v33' % vX); a('v_lshl_add_u32 v%d, v36, 4, v33' % (vX + 1)); a('v_add_u32 v%d, 0x2000, v%d' % (vX + 1, vX + 1))
    a('s_lshl_b32 s%d, s3, 12' % sXl); a('s_lshl_b32 s%d, s3, 11' % sWl)
    a('v_lshlrev_b32 v%d, 20, v0' % vFo)

def front_role(role, dbg, tail):
    a = Asm(); vm = VM(); lg = LG()
    isU = role == 'U'
    tagW = {}; tagA = {}; tagU = {}; tagQW = {}; tagX = {}; tagY = {}; tg = {}
    def wslot(s): return ((s + 2) % 4) * 16384
    def dmaW(s, i):
        def f(a):
            a('s_add_u32 m0, s%d, 0x%x' % (sWl, WR + wslot(s) + i * 1024))
            a('s_mov_b32 s32, 0x%x' % (s * 262144 + i * 32768))
            a('buffer_load_dwordx4 v%d, %s, s32 offen lds' % (vW, sr(sW, 4))); tagW[s] = vm.issue()
        return f
    def dmaA(D, i):
        def f(a):
            a('s_add_u32 m0, s%d, 0x%x' % (sXl, (D % 3) * 32768 + i * 1024))
            a('s_movk_i32 s33, 0x%x' % (D * 128 + (i >> 1) * 16384))
            a('buffer_load_dwordx4 v%d, %s, s33 offen lds' % (vX + (i & 1), sr(sA, 4))); tagA[D] = vm.issue()
        return f
    USLOT = [131072, 0, 98304, 32768, 65536]
    def dmaU(n, i):
        def f(a):
            a('s_add_u32 m0, s%d, 0x%x' % (sXl, USLOT[n % 5] + i * 1024))
            if 'norot' in XO: a('s_movk_i32 s33, 0x%x' % (n * 128 + (i >> 1) * 5120))
            else: a('s_add_u32 s33, s%d, %d' % (sJ, (i >> 1) * 5120))
            a('buffer_load_dwordx4 v%d, %s, s33 offen lds' % (vU + (i & 1), sr(sUS, 4))); tagU[n] = vm.issue()
            if i == 3 and 'norot' not in XO: a('s_add_u32 s%d, s%d, 128' % (sJ, sJ)); a('s_cmp_eq_u32 s%d, 1280' % sJ); a('s_cselect_b32 s%d, 0, s%d' % (sJ, sJ))
        return f
    def dmaQW(s, i):
        def f(a):
            a('s_add_u32 m0, s%d, 0x%x' % (sWl, WR + wslot(s) + i * 1024))
            a('s_mov_b32 s32, 0x%x' % (s * 524288 + i * 32768))
            a('buffer_load_dwordx4 v%d, %s, s32 offen lds' % (vW, sr(sW, 4))); tagQW[s] = vm.issue()
        return f
    def xreg(s): return (2, 0, 1)[s % 3]
    def dmaX(s, i):
        def f(a):
            if s < 10:
                a('s_add_u32 m0, s%d, 0x%x' % (sXl, xreg(s) * 32768 + i * 1024))
                a('s_movk_i32 s33, 0x%x' % (s * 128 + (i >> 1) * 20480))
                a('buffer_load_dwordx4 v%d, %s, s33 offen lds' % (vX + (i & 1), sr(sA, 4)))
            else:
                a('s_add_u32 m0, s%d, 0x%x' % (sXl, xreg(s) * 32768))
                a('s_mov_b32 s33, 0x%x' % (0, 0x10000, 0x2000)[s - 10])
                a('buffer_load_dwordx4 v%d, %s, s33 offen offset:%d lds' % (vKS0, sr(sKV, 4), i * 1024))
            tagX[s] = vm.issue()
        return f
    YR = [0, 3, 1, 2, 4]; sY = sUS; sYo, sYs = sCB, sHo; vY = 6
    def dmaY(n, i):
        def f(a):
            if n == 12 and i == 0: a('s_cmp_eq_u32 s%d, 7' % sI); a('s_cselect_b32 s%d, 0, s%d' % (sY + 2, sY + 2))
            a('s_add_u32 m0, s%d, 0x%x' % (sXl, YR[n % 5] * 32768))
            a('buffer_load_dwordx4 v%d, %s, 0 offen offset:%d lds' % (vY, sr(sY, 4), i * 1024)); tagY[n] = vm.issue()
            if i == 3: a('s_add_u32 s%d, s%d, s%d' % (sY, sY, sYs)); a('s_addc_u32 s%d, s%d, 0' % (sY + 1, sY + 1))
        return f
    def vmi(txt, key=None):
        def f(a):
            a(txt); t = vm.issue()
            if key is not None: tg[key] = t
        return f
    def vmw(key): return lambda a: vm.wait_for(a, tg[key])
    def kvsrd():
        mk_srd(a, sA, P['ckv'], 2048 * 1024)
        a('s_cmp_lt_u32 s3, 4'); a('s_cselect_b32 s%d, s%d, s%d' % (sW, P['wuk'], P['wuv'])); a('s_cselect_b32 s%d, s%d, s%d' % (sW + 1, P['wuk'] + 1, P['wuv'] + 1))
        a('s_and_b32 s%d, s%d, 0xffff' % (sW + 1, sW + 1)); a('s_mov_b32 s%d, 0x%x' % (sW + 2, 512 * 8192)); a('s_mov_b32 s%d, 0x00020000' % (sW + 3))
    if isU:
        a('s_lshr_b32 s32, s2, 3'); a('s_cmp_ge_u32 s32, 10'); a('s_cselect_b32 s33, 1, 0'); a('s_lshl_b32 s%d, s%d, 1' % (sTT, sX_)); a('s_add_u32 s%d, s%d, s33' % (sTT, sTT))
        a('s_mul_i32 s33, s33, 10'); a('s_sub_u32 s%d, s32, s33' % sCB)
        a('s_lshr_b32 s33, s33, 1'); a('s_add_u32 s33, s33, s%d' % sCB)
        a('s_add_u32 s33, s33, s%d' % sX_)
        for k in range(2): a('s_sub_u32 s32, s33, 10'); a('s_cselect_b32 s33, s33, s32')
        a('s_lshl_b32 s%d, s33, 7' % sJ)
        a('s_lshl_b32 s32, s%d, 7\ns_lshr_b32 s33, s3, 1\ns_lshl_b32 s33, s33, 6\ns_add_u32 s%d, s32, s33' % (sTT, sUx))
        a('s_lshl_b32 s33, s%d, 6\ns_cmp_lt_u32 s3, 4\ns_cselect_b32 s%d, s%d, s33' % (sCB, sUx, sUx))
        a('s_and_b32 s33, s3, 1\ns_lshl_b32 s33, s33, 3\ns_add_u32 s%d, s%d, s33' % (sUx, sUx))
        a('v_lshrrev_b32 v41, 5, v1\nv_bfe_u32 v42, v1, 3, 2\nv_lshl_add_u32 v41, v41, 4, v42\nv_add_u32 v41, s%d, v41\nv_mul_u32_u24 v41, 1280, v41' % sUx)
        a('v_lshl_add_u32 v%d, v35, 4, v41\nv_lshl_add_u32 v%d, v36, 4, v41\nv_add_u32 v%d, 0x%x, v%d' % (vU, vU + 1, vU + 1, 32 * 1280, vU + 1))
        a('s_waitcnt lgkmcnt(0)')
        if dbg: ts(a, 0); tsr(a, 60)
        a('s_cmp_lt_u32 s3, 6\ns_cselect_b32 s32, s%d, s%d\ns_cselect_b32 s33, s%d, s%d\n' % (P['Bre'], P['Bim'], P['Bre'] + 1, P['Bim'] + 1) +
          's_cmp_lt_u32 s3, 4\ns_cselect_b32 s%d, s%d, s32\ns_cselect_b32 s33, s%d, s33\n' % (sUS, P['A_x'], P['A_x'] + 1) +
          's_mov_b32 s32, 0x%x\ns_cselect_b32 s%d, 0x%x, s32\ns_and_b32 s%d, s33, 0xffff\ns_mov_b32 s%d, 0x00020000' % (640 * 1280, sUS + 2, 2048 * 1280, sUS + 1, sUS + 3))
        UD = [int(c) for c in os.environ.get('UD', '9,0').split(',')]
        for n in range(5):
            if n == UD[0]: a('s_sleep %d' % UD[1])
            for i in range(4): dmaU(n, i)(a)
        a('s_lshr_b32 s%d, s3, 2\ns_lshl_b32 s%d, s%d, 13' % (sUx, sUx, sUx))
        a('s_and_b32 s%d, s3, 3\ns_lshl_b32 s%d, s%d, 11\ns_add_u32 s%d, s%d, 0x4000' % (sUb, sUb, sUb, sUb, sUb))
        kvsrd()
    else:
        a('s_waitcnt lgkmcnt(0)')
        if dbg: ts(a, 0); tsr(a, 60)
        kvsrd()
        for i in range(2): dmaW(0, i)(a)
        for i in range(4): dmaA(0, i)(a)
        for s in (1, 2):
            for i in range(2): dmaW(s, i)(a)
        for i in range(4): dmaA(1, i)(a)
        for i in range(2): dmaW(3, i)(a)
        for i in range(4): dmaA(2, i)(a)
    pfc = vmi('s_lshl_b32 s32, s%d, 3\ns_add_u32 s32, s32, s3\ns_lshl_b32 s32, s32, 13\ns_lshl_b32 s33, s%d, 18\ns_add_u32 s32, s32, s33\n' % (sHL, sN) +
              'v_lshlrev_b32 v%d, 7, v1\nbuffer_load_dword v%d, v%d, %s, s32 offen' % (vPf, vPf, vPf, sr(sA, 4)))
    pfw = vmi('s_sub_u32 s32, s%d, 4\ns_lshl_b32 s32, s32, 2\ns_and_b32 s33, s3, 3\ns_add_u32 s32, s32, s33\ns_lshl_b32 s32, s32, 18\ns_lshl_b32 s33, s%d, 8\ns_add_u32 s32, s32, s33\n' % (sI, sH) +
              'v_lshrrev_b32 v%d, 1, v1\nv_lshlrev_b32 v%d, 13, v%d\nv_and_b32 v%d, 1, v1\nv_lshl_add_u32 v%d, v%d, 7, v%d\n' % (vTm, vTm, vTm, vPub, vTm, vPub, vTm) +
              'buffer_load_dword v%d, v%d, %s, s32 offen' % (vPf, vTm, sr(sW, 4)))
    NPF = [int(c) for c in os.environ.get('NPF', '-1,-2').split(',')]
    if not isU and NPF[1] == -2: pfw(a)
    if 'notlb' not in XO:
        a('s_sub_u32 s32, s3, 5'); a('s_cmp_gt_u32 s32, 1'); a('s_cbranch_scc1 f%s_nt' % role)
        a('s_lshr_b32 s33, s2, 3'); a('v_and_b32 v42, 1, v1'); a('v_lshl_add_u32 v42, s33, 1, v42'); a('s_min_u32 s33, s33, 4')
        a('s_cmp_eq_u32 s32, 0'); a('s_cselect_b32 s100, s%d, s%d' % (P['ws'], P['out'])); a('s_cselect_b32 s101, s%d, s%d' % (P['ws'] + 1, P['out'] + 1))
        a('s_cbranch_scc1 f%s_nt1' % role); a('v_mov_b32 v42, s33'); a.label('f%s_nt1' % role)
        a('v_lshlrev_b32 v42, 21, v42'); a('global_load_dword v%d, v42, s[100:101]' % vPf)
        a.label('f%s_nt' % role)
    TW = os.environ.get('TW', '')
    for w, k, sz in ((7, 'wo', 4096 * 1280), (4, 'wq', 640 * 8192), (3, 'B_x', 2048 * 1280)):
        if str(w) not in TW or (isU and 'n' in TW) or (not isU and 'u' in TW): continue
        a('s_cmp_lg_u32 s3, %d' % w); a('s_cbranch_scc1 f%s_tw%d' % (role, w))
        a('v_and_b32 v42, 3, v1'); a('v_lshlrev_b32 v42, 21, v42'); a('v_min_u32 v42, 0x%x, v42' % (sz - 4)); a('global_load_dword v%d, v42, %s' % (vPf, sr(P[k], 2)))
        a.label('f%s_tw%d' % (role, w))
    a('v_lshlrev_b32 v%d, 4, v1' % vL16)
    a('v_bfe_u32 v32, v1, 2, 2'); a('v_lshl_add_u32 v33, v34, 3, v32')
    a('v_and_b32 v35, 3, v1'); a('v_lshlrev_b32 v35, 3, v35'); a('v_add_u32 v35, 0x%x, v35' % WR)
    a('v_lshl_add_u32 v36, v33, 8, v35')
    a('v_and_b32 v37, 1, v34'); a('v_lshl_add_u32 v38, v37, 2, v32')
    for dt in range(4):
        a('v_xor_b32 v39, %d, v38' % dt); a('v_lshl_add_u32 v%d, v39, 5, v36' % (vT + dt))
    a('s_lshr_b32 s%d, s3, 2' % sD); a('s_lshl_b32 s%d, s%d, 7' % (sD, sD))
    for dt in range(4): a('v_xor_b32 v%d, s%d, v%d' % (vT + dt, sD, vT + dt))
    a('v_and_b32 v39, 15, v1'); a('v_lshrrev_b32 v40, 1, v39'); a('v_xor_b32 v40, v40, v34'); a('v_lshlrev_b32 v39, 7, v39')
    a('v_lshl_add_u32 v%d, v40, 4, v39' % vL0); a('v_xor_b32 v%d, 64, v%d' % (vL0 + 1, vL0))
    a('s_and_b32 s32, s3, 3'); a('s_lshl_b32 s32, s32, 13'); a('s_add_u32 s33, s32, 0x10000')
    for k in range(4): a('v_add_u32 v%d, s%d, v%d' % (vAr + k, 32 + (k >> 1), vL0 + (k & 1)))
    a('s_lshl_b32 s32, s%d, 3' % sH); a('s_add_u32 s32, s32, s%d' % sN); a('s_lshl_b32 s32, s32, 2'); a('s_and_b32 s33, s3, 3'); a('s_add_u32 s32, s32, s33'); a('s_lshl_b32 s32, s32, 15')
    a('s_add_u32 s%d, s%d, s32' % (sKVO, P['ws'])); a('s_addc_u32 s%d, s%d, 0' % (sKVO + 1, P['ws'] + 1)); a('s_and_b32 s%d, s%d, 0xffff' % (sKVO + 1, sKVO + 1))
    a('s_mov_b32 s%d, 0x8000' % (sKVO + 2)); a('s_mov_b32 s%d, 0x00020000' % (sKVO + 3))
    a('s_lshl_b32 s%d, s%d, 4' % (sK0, sD)); a('s_lshl_b32 s%d, s%d, 5' % (sV0, sD)); a('s_add_u32 s%d, s%d, 0x2000' % (sV0, sV0))
    mk_srd(a, sDB, P['ws'], 224 << 10, WS_B + FL0)
    if isU:
        a('s_lshl_b32 s33, s%d, 2' % sCB); a('s_and_b32 s%d, s3, 3' % sHo); a('s_add_u32 s%d, s%d, s33' % (sHo, sHo))
        a('s_lshl_b32 s33, s%d, 12' % sHo); a('s_add_u32 s33, s33, 0x%x' % WS_ES)
        a('s_add_u32 s%d, s%d, s33' % (sES, P['ws'])); a('s_addc_u32 s%d, s%d, 0' % (sES + 1, P['ws'] + 1)); a('s_and_b32 s%d, s%d, 0xffff' % (sES + 1, sES + 1))
        a('s_movk_i32 s%d, 0x1000' % (sES + 2)); a('s_mov_b32 s%d, 0x00020000' % (sES + 3))
        a('s_lshl_b32 s32, s%d, 1' % sTT); a('s_lshr_b32 s33, s3, 2'); a('s_add_u32 s32, s32, s33'); a('s_sub_u32 s32, 31, s32'); a('s_lshl_b32 s%d, s32, 7' % sEo)
    else:
        for k in range(4): a('v_mov_b32 v%d, -1' % (44 + k))
        a('s_sub_u32 s32, s2, 242'); a('s_cselect_b32 s32, 64, s32'); a('s_lshl_b32 s32, s32, 14'); a('s_add_u32 s32, s32, s%d' % sWl)
        for k in range(2): vmi('buffer_store_dwordx4 v[44:47], v%d, %s, s32 offen offset:%d sc1' % (vL16, sr(sDB, 4), k * 1024), 'sent')(a)

    S = Sched()
    if not isU:
        if NPF[0] >= 0: S.add_post(NPF[0], pfc)
        if NPF[1] >= 0: S.add_post(NPF[1], pfw)
    tR = {}
    def rd(key, txt):
        def f(a):
            a(txt); tR[key] = lg.issue()
        return f
    def lw(key): return lambda a: lg.wait_for(a, tR[key])
    def mkbar(tags, stamp=None):
        def f(a):
            a('s_waitcnt lgkmcnt(0)'); lg.done = lg.n
            if tags: vm.wait_for(a, max(t() for t in tags))
            a('s_barrier'); a('s_setprio 3')
            if dbg > 1 and stamp is not None: ts(a, stamp)
        return f
    UB = [[32, 36, 40, 44] + list(range(128, 160, 4)), [48, 52, 56, 60] + list(range(160, 192, 4))]
    def uf(n, ks, q): return UB[n & 1][ks * 6 + q]
    def ua(c, tt): return UACC + (c * 4 + tt) * 4
    def rdU(n, ks, q):
        return rd(('U', n, ks, q), 'ds_read_b128 %s, v%d offset:%d' % (vr(uf(n, ks, q), 4), UAD + ks + (2 if q >= 4 else 0), q * 2048 if q < 4 else (q - 4) * 8192))
    def uaddr(n):
        return ['s_add_u32 s33, s%d, 0x%x\nv_add_u32 v%d, s33, v%d\nv_add_u32 v%d, s33, v%d' % (sb, USLOT[n % 5], UAD + o, vL0, UAD + o + 1, vL0 + 1) for sb, o in ((sUx, 0), (sUb, 2))]
    if isU:
        for n in range(10):
            for ks in range(2):
                for c in range(2):
                    for tt in range(4):
                        d = vr(ua(c, tt), 4)
                        S.mfma(MF % (d, vr(uf(n, ks, tt), 4), vr(uf(n, ks, 4 + c), 4), '0' if (n == 0 and ks == 0) else d))
    BK = 160 if isU else 0
    def tK(kt, d): return ACC + ((d >> 1) * 4 + kt) * 8 + (d & 1) * 4
    def tV(kt, d): return 128 + (d * 2 + (kt >> 1)) * 8 + (kt & 1) * 4
    def af(kt): return XF + kt * 4
    def rdW(s, g, d, hf): return rd(('W', s, g, d), 'ds_read_b64_tr_b16 %s, v%d offset:%d' % (vr(FR + g * 16 + d * 4 + hf * 2, 2), vT + d, wslot(s) + g * 8192 + hf * 1024))
    def rdA(s, kt):
        sl = (s >> 1) % 3
        return rd(('A', s, kt), 'ds_read_b128 %s, v%d offset:%d' % (vr(af(kt), 4), vAr + (s & 1) + (2 if sl == 2 else 0), (sl & 1) * 32768 + kt * 2048))
    for s in range(16):
        for g in range(2):
            for kt in range(4):
                for d in range(4):
                    w = vr(FR + g * 16 + d * 4, 4); x = vr(af(kt), 4)
                    t = vr(tK(kt, d) if g == 0 else tV(kt, d), 4)
                    i = S.mfma(MF % ((t, w, x, '0' if s == 0 else t) if g == 0 else (t, x, w, '0' if s == 0 else t)))
                    if kt == 0: S.add_pre(i, lw(('W', s, g, d)))
                    if g == 0 and d == 0: S.add_pre(i, lw(('A', s, kt)))
    kvfirst = [rdA(0, 0)] + [rdW(0, 0, d, hf) for d in range(4) for hf in range(2)] + [rdA(0, kt) for kt in (1, 2, 3)]
    BQ = BK + 512
    def tile(qt, dt): return ACC + (dt * 2 + qt) * 4
    def qf(s, qt): return Q + (s * 2 + qt) * 4
    def xf(s, ks, qt): return XF + ((((s + 1) & 1) * 2 + ks) * 2 + qt) * 4
    def rdQW(s, g, q, hf): return rd(('QW', s, g, q), 'ds_read_b64_tr_b16 %s, v%d offset:%d' % (vr(FR + (g & 1) * 16 + q * 4 + hf * 2, 2), vT + 2 * g + (q >> 1), wslot(s) + (q & 1) * 8192 + hf * 1024))
    def rdX(s, ks, qt): return rd(('X', s, ks, qt), 'ds_read_b128 %s, v%d offset:%d' % (vr(xf(s, ks, qt), 4), vAr + ks + (2 if xreg(s) == 2 else 0), (xreg(s) & 1) * 32768 + qt * 2048))
    for s in range(10):
        for g in range(4):
            for q in range(4):
                for qt in range(2):
                    d = vr(tile(qt, 2 * g + (q >> 1)), 4)
                    i = S.mfma(MF % (d, vr(FR + (g & 1) * 16 + q * 4, 4), vr(xf(s, q & 1, qt), 4), '0' if (s == 0 and (q & 1) == 0) else d))
                    if qt == 0: S.add_pre(i, lw(('QW', s, g, q)))
                    if g == 0 and q < 2: S.add_pre(i, lw(('X', s, q, qt)))
    def qfirst(s):
        L = [rdQW(s, 0, q, hf) for q in range(4) for hf in range(2)]
        return L[:2] + [rdX(s, 0, 0), rdX(s, 0, 1)] + L[2:4] + [rdX(s, 1, 0), rdX(s, 1, 1)] + L[4:]
    BY = BQ + 320
    BFy = [240, 244, 248, 252, 20]; YA = [7, 8, 9]; YB = [10, 11, 24]
    def AF(n): return 32 + 16 * (n & 1)
    def YP(p): return 160 + 8 * p
    def yacc(c, q): return YP(2 * c + (q >> 1)) + (q & 1) * 4
    def rdYA(n, q, hf):
        r = YR[n % 5]
        return rd(('YA', n, q), 'ds_read_b64_tr_b16 %s, v%d offset:%d' % (vr(AF(n) + 4 * q + 2 * hf, 2), YA[r >> 1], (r & 1) * 32768 + hf * 2048 + q * 256))
    def rdYB(n, c):
        r = YR[n % 5]
        return rd(('YB', n, c), 'ds_read_b128 %s, v%d offset:%d' % (vr(BFy[c], 4), YB[r >> 1], (r & 1) * 32768 + c * 1024))
    if not isU:
        for n in range(14):
            for c in range(5):
                for q in range(4):
                    d = vr(yacc(c, q), 4)
                    i = S.mfma(MF % (d, vr(AF(n) + 4 * q, 4), vr(BFy[c], 4), '0' if n == 0 else d))
                    if c == 0: S.add_pre(i, lw(('YA', n, q)))
                    if q == 0: S.add_pre(i, lw(('YB', n, c)))
    BE = BY + (0 if isU else 280)
    tS = sKV
    def pfb(w, base, lim, idx, wq=False):
        vP = vKS0
        v = ['v_lshrrev_b32 v%d, 3, v1\nv_lshlrev_b32 v%d, 13, v%d' % (vP, vP, vP), 'v_and_b32 v%d, 7, v1\nv_lshl_add_u32 v%d, v%d, 7, v%d' % (vKS, vP, vKS, vP)] if wq else ['v_lshlrev_b32 v%d, 7, v1' % vP]
        return [base + '\ns_and_b32 s%d, s%d, 0xffff\ns_mov_b32 s%d, 0x00020000' % (tS + 1, tS + 1, tS + 3), lim + '\ns_cmp_eq_u32 s3, %d\ns_cselect_b32 s%d, s33, 0' % (w, tS + 2)] + v + \
               [vmi(idx + '\nv_add_u32 v%d, s32, v%d\nbuffer_load_dword v%d, v%d, %s, 0 offen' % (vP, vP, vPf, vP, sr(tS, 4)))]
    def pb(k): return 's_mov_b32 s%d, s%d\ns_mov_b32 s%d, s%d' % (tS, P[k], tS + 1, P[k] + 1)
    def xpart(sz, o): return 's_lshr_b32 s32, s2, 3\ns_add_u32 s32, s32, %d\ns_lshl_b32 s32, s32, 13\ns_mul_i32 s33, s%d, %d\ns_add_u32 s32, s32, s33' % (o, sX_, sz)
    def xlim(sz): return 's_add_u32 s33, s%d, 1\ns_mul_i32 s33, s33, %d' % (sX_, sz)
    def cl(v): return 's_mov_b32 s33, 0x%x' % v
    PF1 = [pfb(1, pb('B_x'), cl(2048 * 1280), 's_lshl_b32 s32, s2, 13')]
    for k in range(3):
        PF1.append(pfb(3 + k, pb('wq'), cl(640 * 8192), 's_lshr_b32 s32, s2, 3\ns_add_u32 s32, s32, %d\ns_lshl_b32 s32, s32, 16\ns_lshl_b32 s33, s%d, 10\ns_add_u32 s32, s32, s33' % (32 * k, sX_), True))
    PF1.append(pfb(7, pb('B_x'), cl(2048 * 1280), 's_lshl_b32 s32, s2, 13\ns_add_u32 s32, s32, 0x200000'))
    PF = {int(os.environ.get('PFW', 10)) + k: pfb(2 + k, pb('wo'), xlim(655360), xpart(655360, 32 * k)) for k in range(3)}
    if 'wou' in XO: PF = {int(os.environ.get('PFW', 10)) + k: pfb(2 + k, pb('wo'), xlim(655360), xpart(655360, 20 * k)) for k in range(4)} if isU else {}
    if not isU:
        for k in range(5): PF[2 + k] = PF1[k]
    BP = 12
    SSMP = int(os.environ.get('SP', 11)) if isU else 14
    for s in range(16):
        b = BK + 32 * s
        S.spread([rdW(s, 1, d, hf) for d in range(4) for hf in range(2)], b, b + 8)
        if s < 15: tags = [lambda s=s: tagW[s + 1], lambda s=s: tagA[(s + 1) >> 1]]
        else: tags = [lambda: tagQW[0], lambda: tagX[0]]
        if s == SSMP: tags.append(lambda: tg['ssm'])
        if s == 2 and not isU: tags.append(lambda: tg['sent'])
        S.add_post(b + BP, mkbar(tags, 2 + s))
        for q, p in enumerate((20, 28, 36)): S.add_post(b + p, 's_setprio %d' % (2 - q))
        if s == SSMP: S.add_post(b + BP, vmi(publish('x' if isU else 'cc')))
        if s == 2 and not isU: S.add_post(b + BP, vmi('s_sub_u32 s33, s2, 242\ns_cselect_b32 s33, 64, s33\ns_lshl_b32 s33, s33, 4\nv_mov_b32 v%d, 1\nbuffer_store_dword v%d, v%d, %s, s33 offen sc1' % (vTm, vTm, vFo, sr(sDG, 4))))
        if s < 15:
            for k, p in enumerate((13, 14, 15, 16, 17, 18, 20, 21)): S.add_post(b + p, rdW(s + 1, 0, k >> 1, k & 1))
            for kt in range(4): S.add_post(b + 19 + 4 * kt, rdA(s + 1, kt))
        D = []
        if s + 4 < 16: D += [dmaW(s + 4, 0), dmaW(s + 4, 1)]
        if 1 <= s <= 10:
            Dn = ((s - 1) >> 1) + 3; o = 2 * ((s - 1) & 1)
            D += [dmaA(Dn, o), dmaA(Dn, o + 1)]
        if s >= 12: D += [dmaQW(s - 12, 0), dmaQW(s - 12, 1)]
        if s >= 11:
            n = (s - 11) >> 1; o = 2 * ((s - 11) & 1)
            D += [dmaX(n, o), dmaX(n, o + 1)]
        for k, dd in enumerate(D): S.add_post(b + BP + 2 + 5 * k, dd)
        if s in PF and 'nopf' not in XO:
            S.spread(PF[s][:-1], b + 20, b + 29)
            S.add_post(b + 31, PF[s][-1])
    xset = ['s_sub_u32 s32, 15, s%d\ns_and_b32 s33, s3, 3\ns_lshl_b32 s%d, s32, 2\ns_add_u32 s%d, s%d, s33' % (sI, sDq, sDq, sDq),
            's_lshl_b32 s%d, s%d, 2\ns_and_b32 s33, s3, 3\ns_add_u32 s%d, s%d, s33' % (sN, sI, sN, sN),
            's_lshl_b32 s%d, s%d, 18\ns_lshl_b32 s%d, s%d, 18' % (sCtA, sN, sCtB, sDq),
            's_cmp_ge_u32 s3, 4\ns_cselect_b32 s%d, s%d, s%d' % (sJ1, sN, sDq),
            's_lshl_b32 s32, s%d, 5\nv_lshrrev_b32 v%d, 3, v1\nv_add_u32 v%d, s32, v%d' % (sJ1, vTm, vTm, vTm), 'v_mul_u32_u24 v%d, 1280, v%d' % (vTm, vTm),
            'v_and_b32 v%d, 0x70, v%d' % (vX, vX), 'v_and_b32 v%d, 0x70, v%d' % (vX + 1, vX + 1),
            'v_add_u32 v%d, v%d, v%d' % (vX, vX, vTm), 'v_add3_u32 v%d, v%d, v%d, s%d' % (vX + 1, vX + 1, vTm, sThr),
            srd_l(sA, P['B_x'], 2048 * 1280)]
    S.add_post(BK + 32 * 10 + 30, 's_movk_i32 s%d, 10240' % sThr)
    S.spread(xset, BK + 32 * 10 + 31, BK + 32 * 11 + 12)
    wset = ['s_lshr_b32 s32, s3, 2\ns_lshl_b32 s32, s32, 18\nv_add_u32 v%d, s32, v%d' % (vW, vW), srd_l(sW, P['wq'], 640 * 8192)]
    S.spread(wset, BK + 32 * 12 + 2, BK + 32 * 12 + 8)
    b = BK + 32 * 15
    S.spread(['s_add_u32 s33, s%d, 0x10000\nv_add_u32 v%d, s33, v%d\nv_add_u32 v%d, s33, v%d' % (sXl, vAr + 2, vL0, vAr + 3, vL0 + 1),
              'v_add_u32 v%d, s%d, v%d' % (vAr, sXl, vL0), 'v_add_u32 v%d, s%d, v%d' % (vAr + 1, sXl, vL0 + 1)], b + 1, b + 6)
    S.spread(['v_xor_b32 v%d, s%d, v%d' % (vT + dt, sD, vT + dt) for dt in range(4)], b + 8, b + 12)
    S.spread(['v_xor_b32 v%d, 0x80, v%d' % (vT + 4 + dt, vT + dt) for dt in range(4)], b + 13, b + 17)
    S.add_post(b + 12, 's_mov_b32 s%d, s%d' % (sD, sJ1))
    KP = 224
    S.spread(sum([pack8(KP + 4 * f, ACC + 8 * f) for f in (0, 4, 1, 5, 2, 6, 3, 7)], []), b + 7, b + 27)
    S.spread(sum([pack8(128 + 8 * f, 128 + 8 * f) for f in (0, 2, 4, 6, 1, 3, 5, 7)], []), b + 27, b + 47)
    def stK(f):
        kt, s_ = f & 3, f >> 2
        return vmi('s_add_u32 s33, s%d, 0x%x\nbuffer_store_dwordx4 %s, v%d, %s, s33 offen offset:%d sc1' % (sK0, (kt >> 1) * 16384 + (kt & 1) * 4096, vr(KP + 4 * f, 4), vL16, sr(sKVO, 4), s_ * 1024), 'kv')
    def stV(f):
        d, kb = f >> 1, f & 1
        return vmi('s_add_u32 s33, s%d, 0x%x\nbuffer_store_dwordx4 %s, v%d, %s, s33 offen offset:%d sc1' % (sV0, kb * 16384, vr(128 + 8 * f, 4), vL16, sr(sKVO, 4), d * 1024), 'kv')
    ST = [stK(f) for f in range(2)] + [stV(f) for f in range(8)] + [stK(f) for f in range(2, 8)]
    S.spread(qfirst(0), b + 16, b + 31)
    S.spread([dmaX(2, 2), dmaX(2, 3)], BQ + 1, BQ + 7)
    S.spread(ST, BQ + 7, BQ + (STE if isU else STN))
    def cis(m_mag, m_ang, re, im, tmp):
        return ['v_fract_f32 v%d, v%d' % (im, m_ang), 'v_exp_f32 v%d, v%d' % (tmp, m_mag), 'v_cos_f32 v%d, v%d' % (re, im), 'v_sin_f32 v%d, v%d' % (im, im),
                'v_mul_f32 v%d, v%d, v%d' % (re, re, tmp), 'v_mul_f32 v%d, v%d, v%d' % (im, im, tmp)]
    def allchk(name, adr, srd, vd, va, p0, p1):
        ld = 'buffer_load_dword v%d, v%d, %s, 0 offen sc1' % (vd, va, sr(srd, 4))
        S.spread(adr + ['s_lshl_b32 s32, s3, 20\nv_add_u32 v%d, s32, v%d' % (va, va), vmi(ld, name)], p0 - len(adr) - 1, p0 + 1)
        chk = 'v_cmp_ne_u32 vcc, 1, v%d' % vd
        S.spread([vmw(name), chk + '\ns_cmp_lg_u32 s3, 0\ns_cbranch_scc1 %s_ret\ns_cbranch_vccnz %s\n%s_ret:' % (name, name, name)], p1, p1 + 2)
        t = tail
        t.label(name); t('s_mov_b32 s32, %d' % SPIN); t.label(name + '_l'); t('s_sleep 8')
        t(ld); t('s_waitcnt vmcnt(0)'); t(chk)
        t('s_cbranch_vccz %s_ret' % name); t('s_sub_u32 s32, s32, 1'); t('s_cmp_lg_u32 s32, 0'); t('s_cbranch_scc1 %s_l' % name); t('s_branch %s_ret' % name)
    S.add_post(50, srd_l(sDG, P['dbg'], 256))
    allchk('f%s_in' % role, ['v_min_u32 v22, 13, v1', 'v_lshlrev_b32 v22, 4, v22'], sDG, 23, 22, *((100, 140) if isU else (260, 326)))
    if isU:
        for n in range(10):
            u = 16 * n
            tags = [lambda n=n: tagU[n + 1]] if n < 9 else [lambda: tagW[0], lambda: tagA[0]]
            S.add_pre(u, mkbar(tags, 20 + n))
            for q, p in enumerate((4, 8, 12)): S.add_post(u + p, 's_setprio %d' % (2 - q))
            if n < 9: S.spread(uaddr(n + 1) + [rdU(n + 1, ks, q) for ks in range(2) for q in range(6)], u, u + 12)
            else: S.spread(kvfirst, u, u + 12)
            if n < 5: D = [dmaU(n + 5, i) for i in range(4)]
            elif n in (5, 7): D = [dmaW(n - 5 + (i >> 1), i & 1) for i in range(4)]
            else: D = [dmaA((0, 0, 1, 2)[n - 6], i) for i in range(4)]
            S.spread(D, u + 1, u + 13)
            if 3 <= n <= 7 and 'nopf' not in XO:
                S.spread(PF1[n - 3][:-1], u + 6, u + 14); S.add_post(u + 15, PF1[n - 3][-1])
            if n == 2 and 'npfu' not in XO: S.add_post(u + 15, pfc)
        LR, L16, L32, PA, PB, EL, L256, EO, LO, G64, X_ = 208, 210, 212, 214, 216, 216, 6, 8, 10, 20, 22
        A_ = 216; PR = 218; TR = vPub
        SC = ['v_and_b32 v%d, 3, v1\nv_bfe_u32 v%d, v1, 2, 2' % (PR, TR), 'v_lshl_add_u32 v%d, v%d, 4, v%d' % (TR, TR, PR),
              's_lshl_b32 s32, s%d, 6\ns_and_b32 s33, s3, 3\ns_lshl_b32 s33, s33, 2\ns_add_u32 s32, s32, s33\nv_add_lshl_u32 v%d, v%d, s32, 1' % (sCB, TR, TR)]
        SC += [vmi('global_load_ushort v%d, v%d, %s' % (PR + p, TR, sr(P[k], 2)), 'par') for p, k in enumerate(('Lre', 'Lim', 'logdt'))]
        S.spread(SC, 2, 14)
        SC = [vmw('par')] + ['v_lshlrev_b32 v%d, 16, v%d' % (PR + p, PR + p) for p in range(3)] + lam_params(A_, PR, PR + 1, PR + 2)
        SC += cis(A_, A_ + 1, LR, LR + 1, TR)
        for W, m in ((L16, 16.0), (L32, 32.0), (L256, 256.0)):
            SC += ['v_mul_f32 v%d, %s, v%d' % (W + 1, f32(m), A_ + 1), 'v_mul_f32 v%d, %s, v%d' % (TR, f32(m), A_)] + cis(TR, W + 1, W, W + 1, TR)
        SC += ['v_lshrrev_b32 v%d, 4, v1' % TR, 'v_lshlrev_b32 v%d, 6, v%d' % (TR, TR), 'v_cvt_f32_u32 v%d, v%d' % (TR, TR),
               'v_mul_f32 v%d, v%d, v%d' % (G64 + 1, TR, A_ + 1), 'v_mul_f32 v%d, v%d, v%d' % (TR, TR, A_)] + cis(TR, G64 + 1, G64, G64 + 1, TR)
        S.spread(SC, 82, 156)
        def cfma(d, m, x, y):
            return ['v_fma_f32 v%d, v%d, v%d, v%d' % (d, m, x, y), 'v_fma_f32 v%d, v%d, v%d, v%d' % (d + 1, m, x + 1, y + 1),
                    'v_fma_f32 v%d, -v%d, v%d, v%d' % (d, m + 1, x + 1, d), 'v_fmac_f32 v%d, v%d, v%d' % (d + 1, m + 1, x)]
        def ur(k): return UACC + k
        def ui(k): return UACC + 16 + k
        SC = []
        for k in range(1, 16):
            d = PA if k & 1 else PB
            er, ei = (ur(0), ui(0)) if k == 1 else ((PB, PB + 1) if k & 1 else (PA, PA + 1))
            SC += ['v_fma_f32 v%d, v%d, v%d, v%d' % (d, LR, er, ur(k)), 'v_fma_f32 v%d, v%d, v%d, v%d' % (d + 1, LR, ei, ui(k)),
                   'v_fma_f32 v%d, -v%d, v%d, v%d' % (d, LR + 1, ei, d), 'v_fmac_f32 v%d, v%d, v%d' % (d + 1, LR + 1, er)]
        SC += ['v_mov_b32 v%d, v%d' % (EO + c, PA + c) for c in range(2)] + ['v_permlane16_swap_b32 v%d, v%d' % (EO + c, PA + c) for c in range(2)]
        SC += cfma(PA, L16, EO, PA)
        SC += ['v_mov_b32 v%d, v%d' % (LO + c, PA + c) for c in range(2)] + ['v_permlane32_swap_b32 v%d, v%d' % (LO + c, PA + c) for c in range(2)]
        SC += cfma(PA, L32, LO, PA)
        SC += ['v_min_u32 v%d, -2, v%d' % (PA + c, PA + c) for c in range(2)]
        SC += ['v_lshrrev_b32 v%d, 4, v1\nv_lshlrev_b32 v%d, 3, v1' % (TR, PB), 'v_lshl_add_u32 v%d, v%d, 12, v%d' % (PB, TR, PB)]
        SC += [vmi('buffer_store_dwordx2 %s, v%d, %s, s%d offen sc1' % (vr(PA, 2), PB, sr(sES, 4), sEo))]
        S.spread(SC, BK + 4, BK + 48)
        vE = X_
        emax = ['v_max3_u32 v%d, v%d, v%d, v%d' % (TR, EL, EL + 1, EL + 2)] + ['v_max3_u32 v%d, v%d, v%d, v%d' % (TR, TR, EL + k, EL + k + 1) for k in (3, 5)] + \
               ['v_max_u32 v%d, v%d, v%d' % (TR, TR, EL + 7), 'v_cmp_eq_u32 vcc, -1, v%d' % TR]
        t = tail
        def round_(r):
            eld = ['buffer_load_dwordx2 %s, v%d, %s, 0 offen offset:%d sc1' % (vr(EL + 2 * m, 2), vE, sr(sES, 4), 128 + 512 * (m + 4 - 4 * r)) for m in range(4)]
            nm = 'fU_es%d' % r
            t.label(nm); t('s_mov_b32 s32, %d' % SPIN); t.label(nm + '_l'); t('s_sleep 8')
            t.extend(eld); t('s_waitcnt vmcnt(0)'); t.extend(emax)
            t('s_cbranch_vccz %s_ret' % nm); t('s_sub_u32 s32, s32, 1'); t('s_cmp_lg_u32 s32, 0'); t('s_cbranch_scc1 %s_l' % nm); t('s_branch %s_ret' % nm)
            return [vmi(e, nm) for e in eld], [vmw(nm)] + emax[:-1] + [emax[-1] + '\ns_nop 0\ns_cbranch_vccnz %s\n%s_ret:' % (nm, nm)]
        l0, c0 = round_(0); l1, c1 = round_(1)
        S.spread(['v_lshl_add_u32 v%d, v1, 3, s%d' % (vE, sEo)] + l0, BK + 110, BK + 120)
        SC = c0 + cfma(EL + 4, L256, EL + 6, EL + 4) + cfma(EL + 2, L256, EL + 4, EL + 2) + cfma(PA, L256, EL + 2, EL) + l1
        R0 = [int(c) for c in os.environ.get('R0', '150,166,200').split(',')]
        S.spread(SC, BK + R0[0], BK + R0[1])
        SC = c1 + cfma(EL + 6, L256, PA, EL + 6)
        for m in range(2, -1, -1): SC += cfma(EL + 2 * m, L256, EL + 2 * m + 2, EL + 2 * m)
        C_ = EL + 2
        SC += ['v_mul_f32 v%d, v%d, v%d' % (C_, G64, EL), 'v_mul_f32 v%d, v%d, v%d' % (C_ + 1, G64, EL + 1),
               'v_fma_f32 v%d, -v%d, v%d, v%d' % (C_, G64 + 1, EL + 1, C_), 'v_fmac_f32 v%d, v%d, v%d' % (C_ + 1, G64 + 1, EL)]
        for sw in ('16', '32'):
            SC += ['v_mov_b32 v%d, v%d' % (X_ + c, C_ + c) for c in range(2)] + ['v_permlane%s_swap_b32 v%d, v%d' % (sw, C_ + c, X_ + c) for c in range(2)]
            SC += ['v_add_f32 v%d, v%d, v%d' % (C_ + c, C_ + c, X_ + c) for c in range(2)]
        SC += cfma(LO, L32, C_, LO)
        SC += ['v_cmp_lt_u32 vcc, 31, v1\nv_cndmask_b32 v%d, v%d, v%d, vcc\nv_cndmask_b32 v%d, v%d, v%d, vcc' % (C_, C_, LO, C_ + 1, C_ + 1, LO + 1)]
        SC += cfma(EO, L16, C_, EO)
        SC += ['v_and_b32 v%d, 16, v1' % TR, 'v_cmp_ne_u32 vcc, 0, v%d\nv_cndmask_b32 v%d, v%d, v%d, vcc\nv_cndmask_b32 v%d, v%d, v%d, vcc' % (TR, C_, C_, EO, C_ + 1, C_ + 1, EO + 1)]
        SC += [srd_l(sUS, P['ws'], 5 << 20, WS_HT),
               's_mul_i32 s32, s%d, 40\ns_add_u32 s32, s32, s%d\ns_lshl_b32 s32, s32, 1\ns_and_b32 s33, s%d, 1\ns_add_u32 s32, s32, s33\n' % (sX_, sHo, sTT) +
               's_lshl_b32 s32, s32, 1\ns_lshr_b32 s33, s3, 2\ns_add_u32 s32, s32, s33\ns_lshl_b32 s%d, s32, 12' % sHo,
               'v_xor_b32 v%d, 0x80, v%d' % (vE, vL16)]
        for k in range(16):
            pr, pi = (C_, C_ + 1) if k == 0 else (ur(k - 1), ui(k - 1))
            SC += ['v_fmac_f32 v%d, v%d, v%d' % (ur(k), LR, pr), 'v_fmac_f32 v%d, v%d, v%d' % (ui(k), LR, pi),
                   'v_fma_f32 v%d, -v%d, v%d, v%d' % (ur(k), LR + 1, pi, ur(k)), 'v_fmac_f32 v%d, v%d, v%d' % (ui(k), LR + 1, pr)]
            if k in (8, 15):
                hh = 0 if k == 8 else 1
                for c, base in enumerate((ur(8 * hh), ui(8 * hh))):
                    SC += pack8(base, base)
                    SC += [vmi('buffer_store_dwordx4 %s, v%d, %s, s%d offen offset:%d sc1' % (vr(base, 4), vE if hh else vL16, sr(sUS, 4), sHo, c * 2048 + hh * 1024), 'ssm')]
        S.spread(SC, BK + R0[2], BK + int(os.environ.get('SE', 272)))
    else:
        T = 224
        sWid, sDbk, sU_ = sUx, sUb, sTT
        C0 = T; CP = T + 16; TT = 6
        vC = vTm
        SC = ['s_sub_u32 s32, s2, 160\ns_lshl_b32 s32, s32, 3\ns_add_u32 s%d, s32, s3' % sWid,
              srd_l(sES, P['ws'], 1600 * 1024, WS_CC), 's_cmp_lt_u32 s%d, 400\ns_cselect_b32 s%d, s%d, 0\ns_cselect_b32 s%d, s%d, 0' % (sWid, sES + 2, sES + 2, sWid, sWid),
              's_mul_i32 s%d, s%d, 6554\ns_lshr_b32 s%d, s%d, 16' % (sDbk, sWid, sDbk, sDbk), 's_mul_i32 s32, s%d, 10\ns_sub_u32 s%d, s%d, s32' % (sDbk, sU_, sWid),
              's_lshl_b32 s32, s%d, 7\nv_lshl_add_u32 v%d, v1, 1, s32' % (sU_, vC)]
        SC += [vmi('global_load_ushort v%d, v%d, %s' % (CP + p, vC, sr(P[k], 2))) for p, k in enumerate(('Lre', 'Lim', 'logdt'))]
        SC += ['v_and_b32 v%d, 15, v1\ns_lshl_b32 s33, s%d, 4\nv_add_u32 v%d, s33, v%d' % (vC, sDbk, vC, vC), 'v_mul_u32_u24 v%d, 1280, v%d' % (vC, vC),
               'v_lshrrev_b32 v%d, 4, v1\nv_lshl_add_u32 v%d, v%d, 5, v%d' % (TT, vC, TT, vC), 's_lshl_b32 s32, s%d, 7\nv_add_u32 v%d, s32, v%d' % (sU_, vC, vC)]
        for p, k in enumerate(('Cre', 'Cim')):
            for o in range(2): SC.append(vmi('global_load_dwordx4 %s, v%d, %s offset:%d' % (vr(C0 + 8 * p + 4 * o, 4), vC, sr(P[k], 2), 16 * o), 'cc'))
        S.spread(SC, 14, 44)
        E = CP + 3
        SC = [vmw('cc')] + ['v_lshlrev_b32 v%d, 16, v%d' % (CP + p, CP + p) for p in range(3)] + lam_params(E, CP, CP + 1, CP + 2)
        SC += ['v_exp_f32 v%d, v%d' % (E, E), 'v_cos_f32 v%d, v%d' % (E + 2, E + 1), 'v_sin_f32 v%d, v%d' % (E + 1, E + 1),
               'v_fma_f32 v%d, v%d, v%d, -1.0' % (E + 2, E, E + 2), 'v_mul_f32 v%d, v%d, v%d' % (E + 1, E, E + 1),
               'v_mul_f32 v%d, v%d, v%d' % (E + 3, CP, CP), 'v_fmac_f32 v%d, v%d, v%d' % (E + 3, CP + 1, CP + 1),
               'v_rcp_f32 v%d, v%d' % (E + 3, E + 3), 'v_add_f32 v%d, v%d, v%d' % (E + 3, E + 3, E + 3),
               'v_mul_f32 v%d, v%d, v%d' % (E + 4, E + 2, CP), 'v_fmac_f32 v%d, v%d, v%d' % (E + 4, E + 1, CP + 1),
               'v_mul_f32 v%d, v%d, v%d' % (E, E + 1, CP), 'v_fma_f32 v%d, -v%d, v%d, v%d' % (E, E + 2, CP + 1, E)]
        AR, NAR, NAI = CP, CP + 1, CP + 2
        SC += ['v_mul_f32 v%d, v%d, v%d' % (AR, E + 4, E + 3), 'v_mul_f32 v%d, -v%d, v%d' % (NAR, E + 4, E + 3), 'v_mul_f32 v%d, -v%d, v%d' % (NAI, E, E + 3)]
        SC += ['s_mul_i32 s32, s%d, 6554\ns_lshr_b32 s32, s32, 16\ns_mul_i32 s33, s32, 390\ns_add_u32 s33, s33, s%d\ns_mul_i32 s32, s%d, 40\ns_add_u32 s33, s33, s32\ns_lshl_b32 s%d, s33, 10' % (sDbk, sDbk, sU_, sWid)]
        OB = (T + 24, T + 28); X = TT
        for n in range(16):
            re = C0 + (n >> 1); im = re + 8
            y0 = X + 2 + (n & 1); y1 = X + 4 + (n & 1)
            if n & 1: SC += ['v_and_b32 v%d, 0xffff0000, v%d' % (X, re), 'v_and_b32 v%d, 0xffff0000, v%d' % (X + 1, im)]
            else: SC += ['v_lshlrev_b32 v%d, 16, v%d' % (X, re), 'v_lshlrev_b32 v%d, 16, v%d' % (X + 1, im)]
            D = ' row_newbcast:%d row_mask:0xf bank_mask:0xf' % n
            SC += ['v_mul_f32_dpp v%d, v%d, v%d' % (y0, AR, X) + D, 'v_mul_f32_dpp v%d, v%d, v%d' % (y1, NAR, X + 1) + D,
                   'v_fmac_f32_dpp v%d, v%d, v%d' % (y0, NAI, X + 1) + D, 'v_fmac_f32_dpp v%d, v%d, v%d' % (y1, NAI, X) + D]
            if n & 1:
                O = OB[(n >> 2) & 1]
                SC += [cvt(O + ((n >> 1) & 1), X + 2, X + 3), cvt(O + 2 + ((n >> 1) & 1), X + 4, X + 5)]
            if n & 3 == 3:
                SC.append(vmi('s_add_u32 s33, s%d, %d\nbuffer_store_dwordx4 %s, v%d, %s, s33 offen sc1' % (sWid, (n >> 2) * 10240, vr(O, 4), vL16, sr(sES, 4)), 'ssm'))
        S.spread(SC, 150, 370)
    for s in range(10):
        b = BQ + 32 * s
        for g in range(3):
            S.spread([rdQW(s, g + 1, q, hf) for q in range(4) for hf in range(2)], b + 8 * g, b + 8 * g + 6)
        if isU or s < 7: S.spread([dmaX(s + 3, i) for i in range(4)], b + 8, b + 24)
        else: S.spread([dmaY((0, 2, 3)[s - 7], i) for i in range(4)], b + 8, b + 24)
        if s == 9 and isU: break
        tags = [lambda s=s: tagQW[s + 1], lambda s=s: tagX[s + 1]] if s < 9 else [lambda: tagY[0]]
        S.add_post(b + 25, mkbar(tags, 32 + s))
        for q, p in enumerate((33, 41, 49) if s < 9 else (29,)): S.add_post(b + p, 's_setprio %d' % (2 - q))
        if s < 9: S.spread(qfirst(s + 1), b + 25, b + 31)
        if s + 4 < 10: S.spread([dmaQW(s + 4, 0), dmaQW(s + 4, 1)], b + 28, b + 36)
        if not isU and s == 7: S.spread([dmaY(1, i) for i in range(4)], b + 27, b + 39)
    aset = ['s_lshl_b32 s32, s%d, 20\ns_add_u32 s%d, s%d, s32\ns_addc_u32 s%d, s%d, 0\ns_and_b32 s%d, s%d, 0xffff' % (sH, sKV, P['ws'], sKV + 1, P['ws'] + 1, sKV + 1, sKV + 1),
            's_sub_u32 s32, 16, s%d\ns_lshl_b32 s%d, s32, 16\ns_mov_b32 s%d, 0x00020000\ns_mov_b32 s%d, s%d' % (sI, sKV + 2, sKV + 3, sLim, sKV + 2),
            's_lshl_b32 s32, s%d, 13\ns_add_u32 s%d, s%d, s32\ns_add_u32 s%d, s%d, s32' % (sH, sCtA, sCtA, sCtB, sCtB),
            's_lshr_b32 s32, s3, 1\ns_lshl_b32 s32, s32, 14\ns_and_b32 s33, s3, 1\ns_lshl_b32 s33, s33, 12\ns_add_u32 s32, s32, s33\nv_add_u32 v%d, s32, v%d' % (vKS0, vL16),
            's_lshr_b32 s32, s3, 2\ns_lshl_b32 s32, s32, 14\ns_and_b32 s33, s3, 3\ns_lshl_b32 s33, s33, 11\ns_add_u32 s32, s32, s33\nv_add_u32 v%d, s32, v%d' % (vKS, vL16),
            's_mov_b32 s%d, s%d\ns_add_u32 s%d, s%d, 0x8000' % (sKm0, sWl, sVm0, sWl), 's_mov_b32 s%d, 0x20000\ns_mov_b32 s%d, 0x12000' % (sKsrc, sVsrc),
            's_lshl_b32 s32, s%d, 1\ns_add_u32 s%d, s32, 2' % (sI, sJ1), 's_mov_b32 s%d, 0\ns_mov_b32 s%d, 0' % (sJ, sN), 's_mov_b32 s%d, %s' % (sThr, f32(2.0 ** 30)),
            's_cmp_eq_u32 s3, 0\ns_cselect_b32 s%d, 0x6003, 0' % sHook]
    S.spread(aset, BQ + 100, BQ + 133)
    pr = (BQ + 184, BQ + 212) if isU else (BY + 130, BY + 190)
    S.add_post(pr[0], vmi(rdy_load(vPf, vPub), 'rdy'))
    S.spread([vmw('rdy'), '\n'.join(rdy_calc(vPf)) + '\ns_add_u32 s32, s%d, s3\ns_cmp_eq_u32 s32, 0\ns_cbranch_scc1 f%s_kv\nf%s_kv_ret:' % (sRdy, role, role)], pr[1], pr[1] + 4)
    t = tail
    t.label('f%s_kv' % role); t('s_mov_b32 s100, %d' % SPIN); t.label('f%s_kv_l' % role); t('s_sleep 8')
    t(rdy_load(vPf, vPub)); t('s_waitcnt vmcnt(0)'); t.extend(rdy_calc(vPf)); t('s_cmp_lg_u32 s%d, 0' % sRdy); t('s_cbranch_scc1 f%s_kv_ret' % role)
    t('s_sub_u32 s100, s100, 1'); t('s_cmp_lg_u32 s100, 0'); t('s_cbranch_scc1 f%s_kv_l' % role); t('s_branch f%s_kv_ret' % role)
    def fin(g):
        o = []
        for qt in range(2):
            for h2 in range(2):
                tt = tile(qt, 2 * g + h2)
                o += ['v_mul_f32 v%d, %s, v%d' % (tt + r, f32(QSCALE), tt + r) for r in range(4)]
                o += [cvt(qf(g, qt) + 2 * h2 + r, tt + 2 * r, tt + 2 * r + 1) for r in range(2)]
        return o
    e = BQ + 288
    if isU:
        for g in range(2): S.spread(fin(g), e + 8 * g + 11, e + 8 * g + 19)
        S.spread(fin(2)[:12], e + 27, e + 32)
    else:
        S.spread(fin(0) + fin(1) + fin(2) + fin(3), BY + 4, BY + 76)
        allchk('fN_ht', ['v_and_b32 v%d, 31, v1\ns_mul_i32 s32, s%d, 25\ns_lshr_b32 s32, s32, 1\nv_min_u32 v%d, 12, v%d\nv_add_lshl_u32 v%d, v%d, s32, 5' % (vTm, sHL, vTm, vTm, vTm, vTm),
                         'v_min_u32 v%d, 19, v1\ns_lshl_b32 s32, s%d, 5\nv_add_lshl_u32 v%d, v%d, s32, 2' % (vPub, sX_, vPub, vPub), 'v_add_u32 v%d, 0x%x, v%d' % (vTm, CCF - XFL, vTm),
                         'v_cmp_lt_u32 vcc, 31, v1\nv_cndmask_b32 v%d, v%d, v%d, vcc' % (vPub, vPub, vTm), 'v_add_u32 v%d, 0x%x, v%d' % (vPub, XFL, vPub)], sDB, vTm, vPub, BQ + 170, BQ + 212)
        yset = ['s_movk_i32 s32, 10240\ns_cmp_lt_u32 s3, 4\ns_cselect_b32 s%d, 0x4000, s32\ns_cselect_b32 s%d, s%d, s%d' % (sYs, sYo, sX_, sHL),
                's_mul_i32 s%d, s%d, 40\ns_sub_u32 s32, s%d, 5\ns_mul_i32 s32, s32, 14\ns_add_u32 s%d, s%d, s32\ns_mul_i32 s%d, s%d, s%d' % (sYo, sYo, sI, sYo, sYo, sYo, sYo, sYs),
                's_mov_b32 s32, 0x%x\ns_cmp_lt_u32 s3, 4\ns_cselect_b32 s32, 0x%x, s32\ns_add_u32 s32, s32, s%d\ns_add_u32 s%d, s%d, s32\ns_addc_u32 s%d, s%d, 0\ns_and_b32 s%d, s%d, 0xffff' % (WS_CC, WS_HT, sYo, sY, P['ws'], sY + 1, P['ws'] + 1, sY + 1, sY + 1),
                's_mov_b32 s%d, s%d\ns_mov_b32 s%d, 0x00020000' % (sY + 2, sYs, sY + 3),
                's_and_b32 s32, s%d, 0x3fff\nv_add_u32 v%d, s32, v%d' % (sXl, vY, vL16),
                'v_and_b32 v8, 3, v1', 'v_lshrrev_b32 v9, 2, v1', 'v_lshrrev_b32 v10, 1, v8', 'v_lshlrev_b32 v11, 3, v10', 'v_xor_b32 v9, v9, v11', 'v_lshlrev_b32 v9, 4, v9', 'v_lshl_add_u32 v9, v10, 10, v9',
                'v_and_b32 v8, 1, v8', 'v_lshl_add_u32 v9, v8, 3, v9', 's_lshr_b32 s32, s3, 1\ns_lshl_b32 s32, s32, 12\nv_add_u32 v%d, s32, v9' % YA[0],
                'v_add_u32 v%d, 0x10000, v%d' % (YA[1], YA[0]), 'v_add_u32 v%d, 0x20000, v%d' % (YA[2], YA[0]),
                's_and_b32 s33, s3, 1\ns_mul_i32 s33, s33, 5120\ns_add_u32 s33, s33, 0x4000\nv_add_u32 v%d, s33, v%d' % (YB[0], vL16), 'v_add_u32 v%d, 0x10000, v%d' % (YB[1], YB[0]),
                srd_l(sES, P['ws'], 8 << 20, WS_B + PY0),
                's_lshl_b32 s32, s%d, 3\ns_add_u32 s32, s32, s3\ns_mul_i32 s32, s32, 3\ns_add_u32 s32, s32, s%d\ns_sub_u32 s32, s32, 5\ns_mul_i32 s%d, s32, 10240' % (sH, sI, sEo)]
        S.spread(yset, BQ + 136, BQ + 200)
        S.add_post(BQ + 230, 'v_add_u32 v%d, 0x20000, v%d' % (YB[2], YB[0]))
        S.spread([rdYA(0, 0, 0), rdYA(0, 0, 1), rdYB(0, 0)] + [rdYA(0, q, hf) for q in range(1, 4) for hf in range(2)] + [rdYB(0, c) for c in range(1, 5)], e + 25, e + 32)
        S.spread([dmaY(4, i) for i in range(4)], e + 27, e + 35)
        for n in range(14):
            y = BY + 20 * n
            S.add_post(y + 3, mkbar(([lambda n=n: tagY[n + 1]] if n < 13 else []) + ([lambda: tg['kv']] if n == 1 else []), 18 + n if n in (0, 1) else (28 + n - 11 if n > 10 else None)))
            if n == 1: S.add_post(y + 3, vmi(publish('kv', vPf)))
            for k, p in enumerate((8, 13, 18)): S.add_post(y + p, 's_setprio %d' % (2 - k))
            if n < 13:
                S.spread([rdYB(n + 1, 0)] + [rdYA(n + 1, q, hf) for q in range(4) for hf in range(2)], y + 3, y + 12)
                for c in range(1, 5): S.add_post(y + 4 * c + 3, rdYB(n + 1, c))
            D = []
            if n < 9: D = [dmaY(n + 5, i) for i in range(4)]
            if n in (10, 12, 13): D = [dmaX({10: 10, 12: 11, 13: 12}[n], i) for i in range(4)]
            for p, x in zip((5, 8, 11, 14), D): S.add_post(y + p, x)
        def pys(p): return pack8(YP(p), YP(p)) + [vmi('s_add_u32 s33, s%d, %d\nbuffer_store_dwordx4 %s, v%d, %s, s33 offen offset:%d sc1' % (sEo, (p >> 2) * 4096, vr(YP(p), 4), vL16, sr(sES, 4), (p & 3) * 1024))]
        y = BY + 260
        for c in range(3): S.spread(pys(2 * c) + pys(2 * c + 1), y + 4 * c + 7, y + 4 * c + 11)
    vm.wait_for(a, tagU[0] if isU else tagA[0]); a('s_barrier')
    if dbg: ts(a, 1)
    if isU: first = uaddr(0) + [rdU(0, ks, q) for ks in range(2) for q in range(6)]
    else: first = kvfirst
    for f in first: f(a) if callable(f) else a(f)
    S.emit(a, 0, BE)
    assert max(list(S.post) + list(S.pre)) < BE, (max(list(S.post) + list(S.pre)), BE)
    if isU: a.extend(fin(2)[12:]); a.extend(fin(3))
    else:
        for p in range(6, 10):
            for f in pys(p): f(a) if callable(f) else a(f)
    a(rdy_load(vFl, vPub)); vm.issue()
    vm.wait_for(a, tagX[10])
    return a.lines
```

```python
from common import *
import copy, os
XO = os.environ.get('XO', '').split(',')
MF = 'v_mfma_f32_16x16x32_bf16 %s, %s, %s, %s'
QSCALE = 128 ** -0.5 * LOG2E
WS_B = 64 << 20
PA0, PB0, PY0, FL0 = 0, 12 << 20, 24 << 20, 32 << 20
KVF, XFL, CCF = 49152, 53248, 55296
WS_ES = WS_B + FL0 + 65536
sDG = 76
WR = 98304
sA, sW, sKVO, sKV, sUS, sDB, sES = 4, 8, 12, 16, 20, 24, 28
sX_, sHL, sI, sH = 34, 35, 36, 37
sJ, sJ1, sD, sN, sThr, sDq, sMsk = 38, 39, 40, 41, 42, 43, 44
sKm0, sKsrc, sVm0, sVsrc, sCtA, sCtB, sXl, sWl, sHook, sRdy, sPub, sLim = 52, 53, 54, 55, 56, 57, 58, 59, 60, 61, 62, 63
P = dict(A_x=64, Lre=66, Lim=68, Bre=70, Bim=72, Cre=74, Cim=76, logdt=78, Dskip=80, B_x=82, ckv=84, wq=86, wuk=88, wuv=90, wo=92, out=94, dbg=96, ws=98)
sK0, sV0 = 44, 45
sUx, sUb, sTT, sCB, sHo, sEo = 46, 47, 48, 49, 50, 51
vL16 = 2; vL0 = 3; vKS = 5; vU = 6; UAD = 8; vKS0 = 12; vFo = 13; vTm = 14; vPf = 15
vT = 16; vW = 24; vX = 25; vAr = 27; vPub = 31; vFl = 30
FR = 32; ACC = 64; Q = 128; XF = 192; UACC = 224
H8 = '0x80808080'
STE = int(os.environ.get('STE', '300')); STN = int(os.environ.get('STN', '250'))

def lam_params(T, vlre, vlim, vldt):
    return ['v_mul_f32 v%d, %s, v%d' % (vldt, f32(LOG2E), vldt), 'v_exp_f32 v%d, v%d' % (vldt, vldt),
            'v_cvt_pk_bf16_f32 v%d, v%d, v%d' % (vldt, vldt, vldt), 'v_lshlrev_b32 v%d, 16, v%d' % (vldt, vldt),
            'v_mul_f32 v%d, v%d, v%d' % (T, vldt, vlre), 'v_mul_f32 v%d, v%d, v%d' % (T + 1, vldt, vlim),
            'v_mul_f32 v%d, %s, v%d' % (T, f32(LOG2E), T), 'v_mul_f32 v%d, %s, v%d' % (T + 1, f32(INV2PI), T + 1)]
def srd_l(s, ptr, size, off=0):
    t = Asm(); mk_srd(t, s, ptr, size, off); return '\n'.join(t.lines)
def cvt(d, x, y): return 'v_cvt_pk_bf16_f32 v%d, v%d, v%d' % (d, x, y)
def pack8(d, s): return [cvt(d + k, s + 2 * k, s + 2 * k + 1) for k in range(4)]
def publish(kind, vt=vTm, vo=vFo):
    if kind == 'kv': adr = 's_add_u32 s33, s%d, 3\ns_and_b32 s33, s33, 7\ns_lshl_b32 s32, s%d, 7\ns_add_u32 s33, s33, s32\ns_add_u32 s33, s33, 0x%x' % (sI, sH, KVF)
    if kind == 'x': adr = 's_lshr_b32 s33, s2, 3\ns_lshl_b32 s32, s%d, 5\ns_add_u32 s33, s33, s32\ns_lshl_b32 s33, s33, 2\ns_add_u32 s33, s33, 0x%x' % (sX_, XFL)
    if kind == 'cc': adr = 's_lshl_b32 s33, s2, 5\ns_add_u32 s33, s33, 0x%x' % (CCF - 160 * 32)
    return adr + '\nv_mov_b32 v%d, %d\nbuffer_store_%s v%d, v%d, %s, s33 offen sc1' % (vt, kind != 'kv', 'byte' if kind == 'kv' else 'dword', vt, vo, sr(sDB, 4))
def rdy_calc(vf):
    return ['v_readlane_b32 s32, v%d, 0' % vf, 'v_readlane_b32 s33, v%d, 1' % vf,
            's_ff1_i32_b64 s32, s[32:33]', 's_lshr_b32 s32, s32, 3', 's_min_u32 s32, s32, 8', 's_lshl_b32 s%d, s32, 17' % sRdy]
def rdy_load(vf, vt):
    return ('s_lshl_b32 s32, s%d, 7\ns_add_u32 s32, s32, 0x%x\nv_lshrrev_b32 v%d, 1, v1\nv_add_lshl_u32 v%d, v%d, s3, 20\nv_lshl_add_u32 v%d, v1, 2, v%d\n' % (sH, KVF, vt, vt, vt, vt, vt) +
            'buffer_load_dword v%d, v%d, %s, s32 offen sc1' % (vf, vt, sr(sDB, 4)))
SPIN = 20000


def front_start(a, dbg):
    a('s_cmp_ge_u32 s2, 256'); a('s_cbranch_scc1 f_end')
    a('s_load_dwordx16 s[80:95], s[0:1], 64')
    a('s_load_dwordx16 s[64:79], s[0:1], 0')
    a('s_load_dwordx4 s[96:99], s[0:1], 128')
    a('v_lshrrev_b32 v2, 6, v0'); a('v_readfirstlane_b32 s3, v2')
    a('v_and_b32 v1, 63, v0')
    if 'nocp' not in XO:
        a('s_getpc_b64 s[32:33]'); a.label('f_pc')
        a('s_and_b32 s34, s2, 0xf8'); a('s_add_u32 s34, s34, s3')
        a('s_cmp_ge_u32 s34, 11'); a('s_cbranch_scc1 f_nocp')
        a('s_lshl_b32 s34, s34, 13'); a('v_lshl_add_u32 v%d, v1, 7, s34' % vPf); a('v_min_u32 v%d, f_last-f_pc, v%d' % (vPf, vPf))
        a('global_load_dword v%d, v%d, s[32:33]' % (vPf, vPf))
        a.label('f_nocp')
    a('s_and_b32 s%d, s2, 7' % sX_); a('s_bfe_u32 s%d, s2, 0x20003' % sHL); a('s_lshr_b32 s%d, s2, 5' % sI)
    a('s_lshl_b32 s32, s%d, 2' % sX_); a('s_add_u32 s%d, s32, s%d' % (sH, sHL))
    a('s_add_u32 s%d, s%d, 3' % (sN, sI)); a('s_and_b32 s%d, s%d, 7' % (sN, sN))
    a('v_lshrrev_b32 v34, 4, v1')
    a('s_and_b32 s33, s3, 3'); a('s_lshl_b32 s33, s33, 3'); a('v_add_u32 v37, s33, v34'); a('v_lshlrev_b32 v37, 13, v37')
    a('s_and_b32 s33, s3, 1'); a('s_lshl_b32 s33, s33, 3'); a('v_lshl_add_u32 v39, v34, 1, s33')
    a('v_and_b32 v38, 15, v1'); a('v_xor_b32 v40, v38, v39')
    a('v_lshl_add_u32 v37, v40, 4, v37'); a('s_lshl_b32 s33, s%d, 8' % sH); a('v_add_u32 v%d, s33, v37' % vW)
    a('s_lshl_b32 s32, s%d, 8' % sN); a('s_lshl_b32 s33, s3, 5'); a('s_add_u32 s32, s32, s33')
    a('v_lshrrev_b32 v32, 3, v1'); a('v_add_u32 v33, s32, v32'); a('v_lshlrev_b32 v33, 10, v33')
    a('v_and_b32 v35, 7, v1'); a('v_xor_b32 v35, v34, v35'); a('v_xor_b32 v36, 4, v35')
    a('v_lshl_add_u32 v%d, v35, 4, v33' % vX); a('v_lshl_add_u32 v%d, v36, 4, v33' % (vX + 1)); a('v_add_u32 v%d, 0x2000, v%d' % (vX + 1, vX + 1))
    a('s_lshl_b32 s%d, s3, 12' % sXl); a('s_lshl_b32 s%d, s3, 11' % sWl)
    a('v_lshlrev_b32 v%d, 20, v0' % vFo)

def front_role(role, dbg, tail):
    a = Asm(); vm = VM(); lg = LG()
    isU = role == 'U'
    tagW = {}; tagA = {}; tagU = {}; tagQW = {}; tagX = {}; tagY = {}; tg = {}
    def wslot(s): return ((s + 2) % 4) * 16384
    def dmaW(s, i):
        def f(a):
            a('s_add_u32 m0, s%d, 0x%x' % (sWl, WR + wslot(s) + i * 1024))
            a('s_mov_b32 s32, 0x%x' % (s * 262144 + i * 32768))
            a('buffer_load_dwordx4 v%d, %s, s32 offen lds' % (vW, sr(sW, 4))); tagW[s] = vm.issue()
        return f
    def dmaA(D, i):
        def f(a):
            a('s_add_u32 m0, s%d, 0x%x' % (sXl, (D % 3) * 32768 + i * 1024))
            a('s_movk_i32 s33, 0x%x' % (D * 128 + (i >> 1) * 16384))
            a('buffer_load_dwordx4 v%d, %s, s33 offen lds' % (vX + (i & 1), sr(sA, 4))); tagA[D] = vm.issue()
        return f
    USLOT = [131072, 0, 98304, 32768, 65536]
    def dmaU(n, i):
        def f(a):
            a('s_add_u32 m0, s%d, 0x%x' % (sXl, USLOT[n % 5] + i * 1024))
            if 'norot' in XO: a('s_movk_i32 s33, 0x%x' % (n * 128 + (i >> 1) * 5120))
            else: a('s_add_u32 s33, s%d, %d' % (sJ, (i >> 1) * 5120))
            a('buffer_load_dwordx4 v%d, %s, s33 offen lds' % (vU + (i & 1), sr(sUS, 4))); tagU[n] = vm.issue()
            if i == 3 and 'norot' not in XO: a('s_add_u32 s%d, s%d, 128' % (sJ, sJ)); a('s_cmp_eq_u32 s%d, 1280' % sJ); a('s_cselect_b32 s%d, 0, s%d' % (sJ, sJ))
        return f
    def dmaQW(s, i):
        def f(a):
            a('s_add_u32 m0, s%d, 0x%x' % (sWl, WR + wslot(s) + i * 1024))
            a('s_mov_b32 s32, 0x%x' % (s * 524288 + i * 32768))
            a('buffer_load_dwordx4 v%d, %s, s32 offen lds' % (vW, sr(sW, 4))); tagQW[s] = vm.issue()
        return f
    def xreg(s): return (2, 0, 1)[s % 3]
    def dmaX(s, i):
        def f(a):
            if s < 10:
                a('s_add_u32 m0, s%d, 0x%x' % (sXl, xreg(s) * 32768 + i * 1024))
                a('s_movk_i32 s33, 0x%x' % (s * 128 + (i >> 1) * 20480))
                a('buffer_load_dwordx4 v%d, %s, s33 offen lds' % (vX + (i & 1), sr(sA, 4)))
            else:
                a('s_add_u32 m0, s%d, 0x%x' % (sXl, xreg(s) * 32768))
                a('s_mov_b32 s33, 0x%x' % (0, 0x10000, 0x2000)[s - 10])
                a('buffer_load_dwordx4 v%d, %s, s33 offen offset:%d lds' % (vKS0, sr(sKV, 4), i * 1024))
            tagX[s] = vm.issue()
        return f
    YR = [0, 3, 1, 2, 4]; sY = sUS; sYo, sYs = sCB, sHo; vY = 6
    def dmaY(n, i):
        def f(a):
            if n == 12 and i == 0: a('s_cmp_eq_u32 s%d, 7' % sI); a('s_cselect_b32 s%d, 0, s%d' % (sY + 2, sY + 2))
            a('s_add_u32 m0, s%d, 0x%x' % (sXl, YR[n % 5] * 32768))
            a('buffer_load_dwordx4 v%d, %s, 0 offen offset:%d lds' % (vY, sr(sY, 4), i * 1024)); tagY[n] = vm.issue()
            if i == 3: a('s_add_u32 s%d, s%d, s%d' % (sY, sY, sYs)); a('s_addc_u32 s%d, s%d, 0' % (sY + 1, sY + 1))
        return f
    def vmi(txt, key=None):
        def f(a):
            a(txt); t = vm.issue()
            if key is not None: tg[key] = t
        return f
    def vmw(key): return lambda a: vm.wait_for(a, tg[key])
    def kvsrd():
        mk_srd(a, sA, P['ckv'], 2048 * 1024)
        a('s_cmp_lt_u32 s3, 4'); a('s_cselect_b32 s%d, s%d, s%d' % (sW, P['wuk'], P['wuv'])); a('s_cselect_b32 s%d, s%d, s%d' % (sW + 1, P['wuk'] + 1, P['wuv'] + 1))
        a('s_and_b32 s%d, s%d, 0xffff' % (sW + 1, sW + 1)); a('s_mov_b32 s%d, 0x%x' % (sW + 2, 512 * 8192)); a('s_mov_b32 s%d, 0x00020000' % (sW + 3))
    if isU:
        a('s_lshr_b32 s32, s2, 3'); a('s_cmp_ge_u32 s32, 10'); a('s_cselect_b32 s33, 1, 0'); a('s_lshl_b32 s%d, s%d, 1' % (sTT, sX_)); a('s_add_u32 s%d, s%d, s33' % (sTT, sTT))
        a('s_mul_i32 s33, s33, 10'); a('s_sub_u32 s%d, s32, s33' % sCB)
        a('s_lshr_b32 s33, s33, 1'); a('s_add_u32 s33, s33, s%d' % sCB)
        a('s_add_u32 s33, s33, s%d' % sX_)
        for k in range(2): a('s_sub_u32 s32, s33, 10'); a('s_cselect_b32 s33, s33, s32')
        a('s_lshl_b32 s%d, s33, 7' % sJ)
        a('s_lshl_b32 s32, s%d, 7\ns_lshr_b32 s33, s3, 1\ns_lshl_b32 s33, s33, 6\ns_add_u32 s%d, s32, s33' % (sTT, sUx))
        a('s_lshl_b32 s33, s%d, 6\ns_cmp_lt_u32 s3, 4\ns_cselect_b32 s%d, s%d, s33' % (sCB, sUx, sUx))
        a('s_and_b32 s33, s3, 1\ns_lshl_b32 s33, s33, 3\ns_add_u32 s%d, s%d, s33' % (sUx, sUx))
        a('v_lshrrev_b32 v41, 5, v1\nv_bfe_u32 v42, v1, 3, 2\nv_lshl_add_u32 v41, v41, 4, v42\nv_add_u32 v41, s%d, v41\nv_mul_u32_u24 v41, 1280, v41' % sUx)
        a('v_lshl_add_u32 v%d, v35, 4, v41\nv_lshl_add_u32 v%d, v36, 4, v41\nv_add_u32 v%d, 0x%x, v%d' % (vU, vU + 1, vU + 1, 32 * 1280, vU + 1))
        a('s_waitcnt lgkmcnt(0)')
        if dbg: ts(a, 0); tsr(a, 60)
        a('s_cmp_lt_u32 s3, 6\ns_cselect_b32 s32, s%d, s%d\ns_cselect_b32 s33, s%d, s%d\n' % (P['Bre'], P['Bim'], P['Bre'] + 1, P['Bim'] + 1) +
          's_cmp_lt_u32 s3, 4\ns_cselect_b32 s%d, s%d, s32\ns_cselect_b32 s33, s%d, s33\n' % (sUS, P['A_x'], P['A_x'] + 1) +
          's_mov_b32 s32, 0x%x\ns_cselect_b32 s%d, 0x%x, s32\ns_and_b32 s%d, s33, 0xffff\ns_mov_b32 s%d, 0x00020000' % (640 * 1280, sUS + 2, 2048 * 1280, sUS + 1, sUS + 3))
        UD = [int(c) for c in os.environ.get('UD', '9,0').split(',')]
        for n in range(5):
            if n == UD[0]: a('s_sleep %d' % UD[1])
            for i in range(4): dmaU(n, i)(a)
        a('s_lshr_b32 s%d, s3, 2\ns_lshl_b32 s%d, s%d, 13' % (sUx, sUx, sUx))
        a('s_and_b32 s%d, s3, 3\ns_lshl_b32 s%d, s%d, 11\ns_add_u32 s%d, s%d, 0x4000' % (sUb, sUb, sUb, sUb, sUb))
        kvsrd()
    else:
        a('s_waitcnt lgkmcnt(0)')
        if dbg: ts(a, 0); tsr(a, 60)
        kvsrd()
        for i in range(2): dmaW(0, i)(a)
        for i in range(4): dmaA(0, i)(a)
        for s in (1, 2):
            for i in range(2): dmaW(s, i)(a)
        for i in range(4): dmaA(1, i)(a)
        for i in range(2): dmaW(3, i)(a)
        for i in range(4): dmaA(2, i)(a)
    pfc = vmi('s_lshl_b32 s32, s%d, 3\ns_add_u32 s32, s32, s3\ns_lshl_b32 s32, s32, 13\ns_lshl_b32 s33, s%d, 18\ns_add_u32 s32, s32, s33\n' % (sHL, sN) +
              'v_lshlrev_b32 v%d, 7, v1\nbuffer_load_dword v%d, v%d, %s, s32 offen' % (vPf, vPf, vPf, sr(sA, 4)))
    pfw = vmi('s_sub_u32 s32, s%d, 4\ns_lshl_b32 s32, s32, 2\ns_and_b32 s33, s3, 3\ns_add_u32 s32, s32, s33\ns_lshl_b32 s32, s32, 18\ns_lshl_b32 s33, s%d, 8\ns_add_u32 s32, s32, s33\n' % (sI, sH) +
              'v_lshrrev_b32 v%d, 1, v1\nv_lshlrev_b32 v%d, 13, v%d\nv_and_b32 v%d, 1, v1\nv_lshl_add_u32 v%d, v%d, 7, v%d\n' % (vTm, vTm, vTm, vPub, vTm, vPub, vTm) +
              'buffer_load_dword v%d, v%d, %s, s32 offen' % (vPf, vTm, sr(sW, 4)))
    NPF = [int(c) for c in os.environ.get('NPF', '-1,-2').split(',')]
    if not isU and NPF[1] == -2: pfw(a)
    if 'notlb' not in XO:
        a('s_sub_u32 s32, s3, 5'); a('s_cmp_gt_u32 s32, 1'); a('s_cbranch_scc1 f%s_nt' % role)
        a('s_lshr_b32 s33, s2, 3'); a('v_and_b32 v42, 1, v1'); a('v_lshl_add_u32 v42, s33, 1, v42'); a('s_min_u32 s33, s33, 4')
        a('s_cmp_eq_u32 s32, 0'); a('s_cselect_b32 s100, s%d, s%d' % (P['ws'], P['out'])); a('s_cselect_b32 s101, s%d, s%d' % (P['ws'] + 1, P['out'] + 1))
        a('s_cbranch_scc1 f%s_nt1' % role); a('v_mov_b32 v42, s33'); a.label('f%s_nt1' % role)
        a('v_lshlrev_b32 v42, 21, v42'); a('global_load_dword v%d, v42, s[100:101]' % vPf)
        a.label('f%s_nt' % role)
    TW = os.environ.get('TW', '')
    for w, k, sz in ((7, 'wo', 4096 * 1280), (4, 'wq', 640 * 8192), (3, 'B_x', 2048 * 1280)):
        if str(w) not in TW or (isU and 'n' in TW) or (not isU and 'u' in TW): continue
        a('s_cmp_lg_u32 s3, %d' % w); a('s_cbranch_scc1 f%s_tw%d' % (role, w))
        a('v_and_b32 v42, 3, v1'); a('v_lshlrev_b32 v42, 21, v42'); a('v_min_u32 v42, 0x%x, v42' % (sz - 4)); a('global_load_dword v%d, v42, %s' % (vPf, sr(P[k], 2)))
        a.label('f%s_tw%d' % (role, w))
    a('v_lshlrev_b32 v%d, 4, v1' % vL16)
    a('v_bfe_u32 v32, v1, 2, 2'); a('v_lshl_add_u32 v33, v34, 3, v32')
    a('v_and_b32 v35, 3, v1'); a('v_lshlrev_b32 v35, 3, v35'); a('v_add_u32 v35, 0x%x, v35' % WR)
    a('v_lshl_add_u32 v36, v33, 8, v35')
    a('v_and_b32 v37, 1, v34'); a('v_lshl_add_u32 v38, v37, 2, v32')
    for dt in range(4):
        a('v_xor_b32 v39, %d, v38' % dt); a('v_lshl_add_u32 v%d, v39, 5, v36' % (vT + dt))
    a('s_lshr_b32 s%d, s3, 2' % sD); a('s_lshl_b32 s%d, s%d, 7' % (sD, sD))
    for dt in range(4): a('v_xor_b32 v%d, s%d, v%d' % (vT + dt, sD, vT + dt))
    a('v_and_b32 v39, 15, v1'); a('v_lshrrev_b32 v40, 1, v39'); a('v_xor_b32 v40, v40, v34'); a('v_lshlrev_b32 v39, 7, v39')
    a('v_lshl_add_u32 v%d, v40, 4, v39' % vL0); a('v_xor_b32 v%d, 64, v%d' % (vL0 + 1, vL0))
    a('s_and_b32 s32, s3, 3'); a('s_lshl_b32 s32, s32, 13'); a('s_add_u32 s33, s32, 0x10000')
    for k in range(4): a('v_add_u32 v%d, s%d, v%d' % (vAr + k, 32 + (k >> 1), vL0 + (k & 1)))
    a('s_lshl_b32 s32, s%d, 3' % sH); a('s_add_u32 s32, s32, s%d' % sN); a('s_lshl_b32 s32, s32, 2'); a('s_and_b32 s33, s3, 3'); a('s_add_u32 s32, s32, s33'); a('s_lshl_b32 s32, s32, 15')
    a('s_add_u32 s%d, s%d, s32' % (sKVO, P['ws'])); a('s_addc_u32 s%d, s%d, 0' % (sKVO + 1, P['ws'] + 1)); a('s_and_b32 s%d, s%d, 0xffff' % (sKVO + 1, sKVO + 1))
    a('s_mov_b32 s%d, 0x8000' % (sKVO + 2)); a('s_mov_b32 s%d, 0x00020000' % (sKVO + 3))
    a('s_lshl_b32 s%d, s%d, 4' % (sK0, sD)); a('s_lshl_b32 s%d, s%d, 5' % (sV0, sD)); a('s_add_u32 s%d, s%d, 0x2000' % (sV0, sV0))
    mk_srd(a, sDB, P['ws'], 224 << 10, WS_B + FL0)
    if isU:
        a('s_lshl_b32 s33, s%d, 2' % sCB); a('s_and_b32 s%d, s3, 3' % sHo); a('s_add_u32 s%d, s%d, s33' % (sHo, sHo))
        a('s_lshl_b32 s33, s%d, 12' % sHo); a('s_add_u32 s33, s33, 0x%x' % WS_ES)
        a('s_add_u32 s%d, s%d, s33' % (sES, P['ws'])); a('s_addc_u32 s%d, s%d, 0' % (sES + 1, P['ws'] + 1)); a('s_and_b32 s%d, s%d, 0xffff' % (sES + 1, sES + 1))
        a('s_movk_i32 s%d, 0x1000' % (sES + 2)); a('s_mov_b32 s%d, 0x00020000' % (sES + 3))
        a('s_lshl_b32 s32, s%d, 1' % sTT); a('s_lshr_b32 s33, s3, 2'); a('s_add_u32 s32, s32, s33'); a('s_sub_u32 s32, 31, s32'); a('s_lshl_b32 s%d, s32, 7' % sEo)
    else:
        for k in range(4): a('v_mov_b32 v%d, -1' % (44 + k))
        a('s_sub_u32 s32, s2, 242'); a('s_cselect_b32 s32, 64, s32'); a('s_lshl_b32 s32, s32, 14'); a('s_add_u32 s32, s32, s%d' % sWl)
        for k in range(2): vmi('buffer_store_dwordx4 v[44:47], v%d, %s, s32 offen offset:%d sc1' % (vL16, sr(sDB, 4), k * 1024), 'sent')(a)

    S = Sched()
    if not isU:
        if NPF[0] >= 0: S.add_post(NPF[0], pfc)
        if NPF[1] >= 0: S.add_post(NPF[1], pfw)
    tR = {}
    def rd(key, txt):
        def f(a):
            a(txt); tR[key] = lg.issue()
        return f
    def lw(key): return lambda a: lg.wait_for(a, tR[key])
    def mkbar(tags, stamp=None):
        def f(a):
            a('s_waitcnt lgkmcnt(0)'); lg.done = lg.n
            if tags: vm.wait_for(a, max(t() for t in tags))
            a('s_barrier'); a('s_setprio 3')
            if dbg > 1 and stamp is not None: ts(a, stamp)
        return f
    UB = [[32, 36, 40, 44] + list(range(128, 160, 4)), [48, 52, 56, 60] + list(range(160, 192, 4))]
    def uf(n, ks, q): return UB[n & 1][ks * 6 + q]
    def ua(c, tt): return UACC + (c * 4 + tt) * 4
    def rdU(n, ks, q):
        return rd(('U', n, ks, q), 'ds_read_b128 %s, v%d offset:%d' % (vr(uf(n, ks, q), 4), UAD + ks + (2 if q >= 4 else 0), q * 2048 if q < 4 else (q - 4) * 8192))
    def uaddr(n):
        return ['s_add_u32 s33, s%d, 0x%x\nv_add_u32 v%d, s33, v%d\nv_add_u32 v%d, s33, v%d' % (sb, USLOT[n % 5], UAD + o, vL0, UAD + o + 1, vL0 + 1) for sb, o in ((sUx, 0), (sUb, 2))]
    if isU:
        for n in range(10):
            for ks in range(2):
                for c in range(2):
                    for tt in range(4):
                        d = vr(ua(c, tt), 4)
                        S.mfma(MF % (d, vr(uf(n, ks, tt), 4), vr(uf(n, ks, 4 + c), 4), '0' if (n == 0 and ks == 0) else d))
    BK = 160 if isU else 0
    def tK(kt, d): return ACC + ((d >> 1) * 4 + kt) * 8 + (d & 1) * 4
    def tV(kt, d): return 128 + (d * 2 + (kt >> 1)) * 8 + (kt & 1) * 4
    def af(kt): return XF + kt * 4
    def rdW(s, g, d, hf): return rd(('W', s, g, d), 'ds_read_b64_tr_b16 %s, v%d offset:%d' % (vr(FR + g * 16 + d * 4 + hf * 2, 2), vT + d, wslot(s) + g * 8192 + hf * 1024))
    def rdA(s, kt):
        sl = (s >> 1) % 3
        return rd(('A', s, kt), 'ds_read_b128 %s, v%d offset:%d' % (vr(af(kt), 4), vAr + (s & 1) + (2 if sl == 2 else 0), (sl & 1) * 32768 + kt * 2048))
    for s in range(16):
        for g in range(2):
            for kt in range(4):
                for d in range(4):
                    w = vr(FR + g * 16 + d * 4, 4); x = vr(af(kt), 4)
                    t = vr(tK(kt, d) if g == 0 else tV(kt, d), 4)
                    i = S.mfma(MF % ((t, w, x, '0' if s == 0 else t) if g == 0 else (t, x, w, '0' if s == 0 else t)))
                    if kt == 0: S.add_pre(i, lw(('W', s, g, d)))
                    if g == 0 and d == 0: S.add_pre(i, lw(('A', s, kt)))
    kvfirst = [rdA(0, 0)] + [rdW(0, 0, d, hf) for d in range(4) for hf in range(2)] + [rdA(0, kt) for kt in (1, 2, 3)]
    BQ = BK + 512
    def tile(qt, dt): return ACC + (dt * 2 + qt) * 4
    def qf(s, qt): return Q + (s * 2 + qt) * 4
    def xf(s, ks, qt): return XF + ((((s + 1) & 1) * 2 + ks) * 2 + qt) * 4
    def rdQW(s, g, q, hf): return rd(('QW', s, g, q), 'ds_read_b64_tr_b16 %s, v%d offset:%d' % (vr(FR + (g & 1) * 16 + q * 4 + hf * 2, 2), vT + 2 * g + (q >> 1), wslot(s) + (q & 1) * 8192 + hf * 1024))
    def rdX(s, ks, qt): return rd(('X', s, ks, qt), 'ds_read_b128 %s, v%d offset:%d' % (vr(xf(s, ks, qt), 4), vAr + ks + (2 if xreg(s) == 2 else 0), (xreg(s) & 1) * 32768 + qt * 2048))
    for s in range(10):
        for g in range(4):
            for q in range(4):
                for qt in range(2):
                    d = vr(tile(qt, 2 * g + (q >> 1)), 4)
                    i = S.mfma(MF % (d, vr(FR + (g & 1) * 16 + q * 4, 4), vr(xf(s, q & 1, qt), 4), '0' if (s == 0 and (q & 1) == 0) else d))
                    if qt == 0: S.add_pre(i, lw(('QW', s, g, q)))
                    if g == 0 and q < 2: S.add_pre(i, lw(('X', s, q, qt)))
    def qfirst(s):
        L = [rdQW(s, 0, q, hf) for q in range(4) for hf in range(2)]
        return L[:2] + [rdX(s, 0, 0), rdX(s, 0, 1)] + L[2:4] + [rdX(s, 1, 0), rdX(s, 1, 1)] + L[4:]
    BY = BQ + 320
    BFy = [240, 244, 248, 252, 20]; YA = [7, 8, 9]; YB = [10, 11, 24]
    def AF(n): return 32 + 16 * (n & 1)
    def YP(p): return 160 + 8 * p
    def yacc(c, q): return YP(2 * c + (q >> 1)) + (q & 1) * 4
    def rdYA(n, q, hf):
        r = YR[n % 5]
        return rd(('YA', n, q), 'ds_read_b64_tr_b16 %s, v%d offset:%d' % (vr(AF(n) + 4 * q + 2 * hf, 2), YA[r >> 1], (r & 1) * 32768 + hf * 2048 + q * 256))
    def rdYB(n, c):
        r = YR[n % 5]
        return rd(('YB', n, c), 'ds_read_b128 %s, v%d offset:%d' % (vr(BFy[c], 4), YB[r >> 1], (r & 1) * 32768 + c * 1024))
    if not isU:
        for n in range(14):
            for c in range(5):
                for q in range(4):
                    d = vr(yacc(c, q), 4)
                    i = S.mfma(MF % (d, vr(AF(n) + 4 * q, 4), vr(BFy[c], 4), '0' if n == 0 else d))
                    if c == 0: S.add_pre(i, lw(('YA', n, q)))
                    if q == 0: S.add_pre(i, lw(('YB', n, c)))
    BE = BY + (0 if isU else 280)
    tS = sKV
    def pfb(w, base, lim, idx, wq=False):
        vP = vKS0
        v = ['v_lshrrev_b32 v%d, 3, v1\nv_lshlrev_b32 v%d, 13, v%d' % (vP, vP, vP), 'v_and_b32 v%d, 7, v1\nv_lshl_add_u32 v%d, v%d, 7, v%d' % (vKS, vP, vKS, vP)] if wq else ['v_lshlrev_b32 v%d, 7, v1' % vP]
        return [base + '\ns_and_b32 s%d, s%d, 0xffff\ns_mov_b32 s%d, 0x00020000' % (tS + 1, tS + 1, tS + 3), lim + '\ns_cmp_eq_u32 s3, %d\ns_cselect_b32 s%d, s33, 0' % (w, tS + 2)] + v + \
               [vmi(idx + '\nv_add_u32 v%d, s32, v%d\nbuffer_load_dword v%d, v%d, %s, 0 offen' % (vP, vP, vPf, vP, sr(tS, 4)))]
    def pb(k): return 's_mov_b32 s%d, s%d\ns_mov_b32 s%d, s%d' % (tS, P[k], tS + 1, P[k] + 1)
    def xpart(sz, o): return 's_lshr_b32 s32, s2, 3\ns_add_u32 s32, s32, %d\ns_lshl_b32 s32, s32, 13\ns_mul_i32 s33, s%d, %d\ns_add_u32 s32, s32, s33' % (o, sX_, sz)
    def xlim(sz): return 's_add_u32 s33, s%d, 1\ns_mul_i32 s33, s33, %d' % (sX_, sz)
    def cl(v): return 's_mov_b32 s33, 0x%x' % v
    PF1 = [pfb(1, pb('B_x'), cl(2048 * 1280), 's_lshl_b32 s32, s2, 13')]
    for k in range(3):
        PF1.append(pfb(3 + k, pb('wq'), cl(640 * 8192), 's_lshr_b32 s32, s2, 3\ns_add_u32 s32, s32, %d\ns_lshl_b32 s32, s32, 16\ns_lshl_b32 s33, s%d, 10\ns_add_u32 s32, s32, s33' % (32 * k, sX_), True))
    PF1.append(pfb(7, pb('B_x'), cl(2048 * 1280), 's_lshl_b32 s32, s2, 13\ns_add_u32 s32, s32, 0x200000'))
    PF = {int(os.environ.get('PFW', 10)) + k: pfb(2 + k, pb('wo'), xlim(655360), xpart(655360, 32 * k)) for k in range(3)}
    if 'wou' in XO: PF = {int(os.environ.get('PFW', 10)) + k: pfb(2 + k, pb('wo'), xlim(655360), xpart(655360, 20 * k)) for k in range(4)} if isU else {}
    if 'pfu' in XO:
        PF1 = [pfb(1, pb('B_x'), cl(2048 * 1280), 's_lshl_b32 s32, s2, 13')]
        for k in range(4):
            PF1.append(pfb(3 + k, pb('wq'), cl(640 * 8192), 's_lshr_b32 s32, s2, 3\ns_add_u32 s32, s32, %d\ns_lshl_b32 s32, s32, 16\ns_lshl_b32 s33, s%d, 10\ns_add_u32 s32, s32, s33' % (20 * k, sX_), True))
        PF1.append(pfb(7, pb('B_x'), cl(2048 * 1280), 's_lshl_b32 s32, s2, 13\ns_add_u32 s32, s32, 0x%x' % (160 << 13)))
    elif not isU:
        for k in range(5): PF[2 + k] = PF1[k]
    BP = 12
    SSMP = int(os.environ.get('SP', 11)) if isU else 14
    for s in range(16):
        b = BK + 32 * s
        S.spread([rdW(s, 1, d, hf) for d in range(4) for hf in range(2)], b, b + 8)
        if s < 15: tags = [lambda s=s: tagW[s + 1], lambda s=s: tagA[(s + 1) >> 1]]
        else: tags = [lambda: tagQW[0], lambda: tagX[0]]
        if s == SSMP: tags.append(lambda: tg['ssm'])
        if s == 2 and not isU: tags.append(lambda: tg['sent'])
        S.add_post(b + BP, mkbar(tags, 2 + s))
        for q, p in enumerate((20, 28, 36)): S.add_post(b + p, 's_setprio %d' % (2 - q))
        if s == SSMP: S.add_post(b + BP, vmi(publish('x' if isU else 'cc')))
        if s == 2 and not isU: S.add_post(b + BP, vmi('s_sub_u32 s33, s2, 242\ns_cselect_b32 s33, 64, s33\ns_lshl_b32 s33, s33, 4\nv_mov_b32 v%d, 1\nbuffer_store_dword v%d, v%d, %s, s33 offen sc1' % (vTm, vTm, vFo, sr(sDG, 4))))
        if s < 15:
            for k, p in enumerate((13, 14, 15, 16, 17, 18, 20, 21)): S.add_post(b + p, rdW(s + 1, 0, k >> 1, k & 1))
            for kt in range(4): S.add_post(b + 19 + 4 * kt, rdA(s + 1, kt))
        D = []
        if s + 4 < 16: D += [dmaW(s + 4, 0), dmaW(s + 4, 1)]
        if 1 <= s <= 10:
            Dn = ((s - 1) >> 1) + 3; o = 2 * ((s - 1) & 1)
            D += [dmaA(Dn, o), dmaA(Dn, o + 1)]
        if s >= 12: D += [dmaQW(s - 12, 0), dmaQW(s - 12, 1)]
        if s >= 11:
            n = (s - 11) >> 1; o = 2 * ((s - 11) & 1)
            D += [dmaX(n, o), dmaX(n, o + 1)]
        for k, dd in enumerate(D): S.add_post(b + BP + 2 + 5 * k, dd)
        if s in PF and 'nopf' not in XO:
            S.spread(PF[s][:-1], b + 20, b + 29)
            S.add_post(b + 31, PF[s][-1])
    xset = ['s_sub_u32 s32, 15, s%d\ns_and_b32 s33, s3, 3\ns_lshl_b32 s%d, s32, 2\ns_add_u32 s%d, s%d, s33' % (sI, sDq, sDq, sDq),
            's_lshl_b32 s%d, s%d, 2\ns_and_b32 s33, s3, 3\ns_add_u32 s%d, s%d, s33' % (sN, sI, sN, sN),
            's_lshl_b32 s%d, s%d, 18\ns_lshl_b32 s%d, s%d, 18' % (sCtA, sN, sCtB, sDq),
            's_cmp_ge_u32 s3, 4\ns_cselect_b32 s%d, s%d, s%d' % (sJ1, sN, sDq),
            's_lshl_b32 s32, s%d, 5\nv_lshrrev_b32 v%d, 3, v1\nv_add_u32 v%d, s32, v%d' % (sJ1, vTm, vTm, vTm), 'v_mul_u32_u24 v%d, 1280, v%d' % (vTm, vTm),
            'v_and_b32 v%d, 0x70, v%d' % (vX, vX), 'v_and_b32 v%d, 0x70, v%d' % (vX + 1, vX + 1),
            'v_add_u32 v%d, v%d, v%d' % (vX, vX, vTm), 'v_add3_u32 v%d, v%d, v%d, s%d' % (vX + 1, vX + 1, vTm, sThr),
            srd_l(sA, P['B_x'], 2048 * 1280)]
    S.add_post(BK + 32 * 10 + 30, 's_movk_i32 s%d, 10240' % sThr)
    S.spread(xset, BK + 32 * 10 + 31, BK + 32 * 11 + 12)
    wset = ['s_lshr_b32 s32, s3, 2\ns_lshl_b32 s32, s32, 18\nv_add_u32 v%d, s32, v%d' % (vW, vW), srd_l(sW, P['wq'], 640 * 8192)]
    S.spread(wset, BK + 32 * 12 + 2, BK + 32 * 12 + 8)
    b = BK + 32 * 15
    S.spread(['s_add_u32 s33, s%d, 0x10000\nv_add_u32 v%d, s33, v%d\nv_add_u32 v%d, s33, v%d' % (sXl, vAr + 2, vL0, vAr + 3, vL0 + 1),
              'v_add_u32 v%d, s%d, v%d' % (vAr, sXl, vL0), 'v_add_u32 v%d, s%d, v%d' % (vAr + 1, sXl, vL0 + 1)], b + 1, b + 6)
    S.spread(['v_xor_b32 v%d, s%d, v%d' % (vT + dt, sD, vT + dt) for dt in range(4)], b + 8, b + 12)
    S.spread(['v_xor_b32 v%d, 0x80, v%d' % (vT + 4 + dt, vT + dt) for dt in range(4)], b + 13, b + 17)
    S.add_post(b + 12, 's_mov_b32 s%d, s%d' % (sD, sJ1))
    KP = 224
    S.spread(sum([pack8(KP + 4 * f, ACC + 8 * f) for f in (0, 4, 1, 5, 2, 6, 3, 7)], []), b + 7, b + 27)
    S.spread(sum([pack8(128 + 8 * f, 128 + 8 * f) for f in (0, 2, 4, 6, 1, 3, 5, 7)], []), b + 27, b + 47)
    def stK(f):
        kt, s_ = f & 3, f >> 2
        return vmi('s_add_u32 s33, s%d, 0x%x\nbuffer_store_dwordx4 %s, v%d, %s, s33 offen offset:%d sc1' % (sK0, (kt >> 1) * 16384 + (kt & 1) * 4096, vr(KP + 4 * f, 4), vL16, sr(sKVO, 4), s_ * 1024), 'kv')
    def stV(f):
        d, kb = f >> 1, f & 1
        return vmi('s_add_u32 s33, s%d, 0x%x\nbuffer_store_dwordx4 %s, v%d, %s, s33 offen offset:%d sc1' % (sV0, kb * 16384, vr(128 + 8 * f, 4), vL16, sr(sKVO, 4), d * 1024), 'kv')
    ST = [stK(f) for f in range(2)] + [stV(f) for f in range(8)] + [stK(f) for f in range(2, 8)]
    S.spread(qfirst(0), b + 16, b + 31)
    S.spread([dmaX(2, 2), dmaX(2, 3)], BQ + 1, BQ + 7)
    S.spread(ST, BQ + 7, BQ + (STE if isU else STN))
    def cis(m_mag, m_ang, re, im, tmp):
        return ['v_fract_f32 v%d, v%d' % (im, m_ang), 'v_exp_f32 v%d, v%d' % (tmp, m_mag), 'v_cos_f32 v%d, v%d' % (re, im), 'v_sin_f32 v%d, v%d' % (im, im),
                'v_mul_f32 v%d, v%d, v%d' % (re, re, tmp), 'v_mul_f32 v%d, v%d, v%d' % (im, im, tmp)]
    def allchk(name, adr, srd, vd, va, p0, p1):
        ld = 'buffer_load_dword v%d, v%d, %s, 0 offen sc1' % (vd, va, sr(srd, 4))
        S.spread(adr + ['s_lshl_b32 s32, s3, 20\nv_add_u32 v%d, s32, v%d' % (va, va), vmi(ld, name)], p0 - len(adr) - 1, p0 + 1)
        chk = 'v_cmp_ne_u32 vcc, 1, v%d' % vd
        S.spread([vmw(name), chk + '\ns_cmp_lg_u32 s3, 0\ns_cbranch_scc1 %s_ret\ns_cbranch_vccnz %s\n%s_ret:' % (name, name, name)], p1, p1 + 2)
        t = tail
        t.label(name); t('s_mov_b32 s32, %d' % SPIN); t.label(name + '_l'); t('s_sleep 8')
        t(ld); t('s_waitcnt vmcnt(0)'); t(chk)
        t('s_cbranch_vccz %s_ret' % name); t('s_sub_u32 s32, s32, 1'); t('s_cmp_lg_u32 s32, 0'); t('s_cbranch_scc1 %s_l' % name); t('s_branch %s_ret' % name)
    S.add_post(50, srd_l(sDG, P['dbg'], 256))
    allchk('f%s_in' % role, ['v_min_u32 v22, 13, v1', 'v_lshlrev_b32 v22, 4, v22'], sDG, 23, 22, *((100, 140) if isU else (260, 326)))
    if isU:
        for n in range(10):
            u = 16 * n
            tags = [lambda n=n: tagU[n + 1]] if n < 9 else [lambda: tagW[0], lambda: tagA[0]]
            S.add_pre(u, mkbar(tags, 20 + n))
            for q, p in enumerate((4, 8, 12)): S.add_post(u + p, 's_setprio %d' % (2 - q))
            if n < 9: S.spread(uaddr(n + 1) + [rdU(n + 1, ks, q) for ks in range(2) for q in range(6)], u, u + 12)
            else: S.spread(kvfirst, u, u + 12)
            if n < 5: D = [dmaU(n + 5, i) for i in range(4)]
            elif n in (5, 7): D = [dmaW(n - 5 + (i >> 1), i & 1) for i in range(4)]
            else: D = [dmaA((0, 0, 1, 2)[n - 6], i) for i in range(4)]
            S.spread(D, u + 1, u + 13)
            if 3 <= n < 3 + len(PF1) and 'nopf' not in XO:
                S.spread(PF1[n - 3][:-1], u + 6, u + 14); S.add_post(u + 15, PF1[n - 3][-1])
            if n == 2 and 'npfu' not in XO: S.add_post(u + 15, pfc)
        LR, L16, L32, PA, PB, EL, L256, EO, LO, G64, X_ = 208, 210, 212, 214, 216, 216, 6, 8, 10, 20, 22
        A_ = 216; PR = 218; TR = vPub
        SC = ['v_and_b32 v%d, 3, v1\nv_bfe_u32 v%d, v1, 2, 2' % (PR, TR), 'v_lshl_add_u32 v%d, v%d, 4, v%d' % (TR, TR, PR),
              's_lshl_b32 s32, s%d, 6\ns_and_b32 s33, s3, 3\ns_lshl_b32 s33, s33, 2\ns_add_u32 s32, s32, s33\nv_add_lshl_u32 v%d, v%d, s32, 1' % (sCB, TR, TR)]
        SC += [vmi('global_load_ushort v%d, v%d, %s' % (PR + p, TR, sr(P[k], 2)), 'par') for p, k in enumerate(('Lre', 'Lim', 'logdt'))]
        S.spread(SC, 2, 14)
        SC = [vmw('par')] + ['v_lshlrev_b32 v%d, 16, v%d' % (PR + p, PR + p) for p in range(3)] + lam_params(A_, PR, PR + 1, PR + 2)
        SC += cis(A_, A_ + 1, LR, LR + 1, TR)
        for W, m in ((L16, 16.0), (L32, 32.0), (L256, 256.0)):
            SC += ['v_mul_f32 v%d, %s, v%d' % (W + 1, f32(m), A_ + 1), 'v_mul_f32 v%d, %s, v%d' % (TR, f32(m), A_)] + cis(TR, W + 1, W, W + 1, TR)
        SC += ['v_lshrrev_b32 v%d, 4, v1' % TR, 'v_lshlrev_b32 v%d, 6, v%d' % (TR, TR), 'v_cvt_f32_u32 v%d, v%d' % (TR, TR),
               'v_mul_f32 v%d, v%d, v%d' % (G64 + 1, TR, A_ + 1), 'v_mul_f32 v%d, v%d, v%d' % (TR, TR, A_)] + cis(TR, G64 + 1, G64, G64 + 1, TR)
        S.spread(SC, 82, 156)
        def cfma(d, m, x, y):
            return ['v_fma_f32 v%d, v%d, v%d, v%d' % (d, m, x, y), 'v_fma_f32 v%d, v%d, v%d, v%d' % (d + 1, m, x + 1, y + 1),
                    'v_fma_f32 v%d, -v%d, v%d, v%d' % (d, m + 1, x + 1, d), 'v_fmac_f32 v%d, v%d, v%d' % (d + 1, m + 1, x)]
        def ur(k): return UACC + k
        def ui(k): return UACC + 16 + k
        SC = []
        for k in range(1, 16):
            d = PA if k & 1 else PB
            er, ei = (ur(0), ui(0)) if k == 1 else ((PB, PB + 1) if k & 1 else (PA, PA + 1))
            SC += ['v_fma_f32 v%d, v%d, v%d, v%d' % (d, LR, er, ur(k)), 'v_fma_f32 v%d, v%d, v%d, v%d' % (d + 1, LR, ei, ui(k)),
                   'v_fma_f32 v%d, -v%d, v%d, v%d' % (d, LR + 1, ei, d), 'v_fmac_f32 v%d, v%d, v%d' % (d + 1, LR + 1, er)]
        SC += ['v_mov_b32 v%d, v%d' % (EO + c, PA + c) for c in range(2)] + ['v_permlane16_swap_b32 v%d, v%d' % (EO + c, PA + c) for c in range(2)]
        SC += cfma(PA, L16, EO, PA)
        SC += ['v_mov_b32 v%d, v%d' % (LO + c, PA + c) for c in range(2)] + ['v_permlane32_swap_b32 v%d, v%d' % (LO + c, PA + c) for c in range(2)]
        SC += cfma(PA, L32, LO, PA)
        SC += ['v_min_u32 v%d, -2, v%d' % (PA + c, PA + c) for c in range(2)]
        SC += ['v_lshrrev_b32 v%d, 4, v1\nv_lshlrev_b32 v%d, 3, v1' % (TR, PB), 'v_lshl_add_u32 v%d, v%d, 12, v%d' % (PB, TR, PB)]
        SC += [vmi('buffer_store_dwordx2 %s, v%d, %s, s%d offen sc1' % (vr(PA, 2), PB, sr(sES, 4), sEo))]
        S.spread(SC, BK + 4, BK + 48)
        vE = X_
        emax = ['v_max3_u32 v%d, v%d, v%d, v%d' % (TR, EL, EL + 1, EL + 2)] + ['v_max3_u32 v%d, v%d, v%d, v%d' % (TR, TR, EL + k, EL + k + 1) for k in (3, 5)] + \
               ['v_max_u32 v%d, v%d, v%d' % (TR, TR, EL + 7), 'v_cmp_eq_u32 vcc, -1, v%d' % TR]
        t = tail
        def round_(r):
            eld = ['buffer_load_dwordx2 %s, v%d, %s, 0 offen offset:%d sc1' % (vr(EL + 2 * m, 2), vE, sr(sES, 4), 128 + 512 * (m + 4 - 4 * r)) for m in range(4)]
            nm = 'fU_es%d' % r
            t.label(nm); t('s_mov_b32 s32, %d' % SPIN); t.label(nm + '_l'); t('s_sleep 8')
            t.extend(eld); t('s_waitcnt vmcnt(0)'); t.extend(emax)
            t('s_cbranch_vccz %s_ret' % nm); t('s_sub_u32 s32, s32, 1'); t('s_cmp_lg_u32 s32, 0'); t('s_cbranch_scc1 %s_l' % nm); t('s_branch %s_ret' % nm)
            return [vmi(e, nm) for e in eld], [vmw(nm)] + emax[:-1] + [emax[-1] + '\ns_nop 0\ns_cbranch_vccnz %s\n%s_ret:' % (nm, nm)]
        l0, c0 = round_(0); l1, c1 = round_(1)
        S.spread(['v_lshl_add_u32 v%d, v1, 3, s%d' % (vE, sEo)] + l0, BK + 110, BK + 120)
        SC = c0 + cfma(EL + 4, L256, EL + 6, EL + 4) + cfma(EL + 2, L256, EL + 4, EL + 2) + cfma(PA, L256, EL + 2, EL) + l1
        R0 = [int(c) for c in os.environ.get('R0', '150,166,200').split(',')]
        S.spread(SC, BK + R0[0], BK + R0[1])
        SC = c1 + cfma(EL + 6, L256, PA, EL + 6)
        for m in range(2, -1, -1): SC += cfma(EL + 2 * m, L256, EL + 2 * m + 2, EL + 2 * m)
        C_ = EL + 2
        SC += ['v_mul_f32 v%d, v%d, v%d' % (C_, G64, EL), 'v_mul_f32 v%d, v%d, v%d' % (C_ + 1, G64, EL + 1),
               'v_fma_f32 v%d, -v%d, v%d, v%d' % (C_, G64 + 1, EL + 1, C_), 'v_fmac_f32 v%d, v%d, v%d' % (C_ + 1, G64 + 1, EL)]
        for sw in ('16', '32'):
            SC += ['v_mov_b32 v%d, v%d' % (X_ + c, C_ + c) for c in range(2)] + ['v_permlane%s_swap_b32 v%d, v%d' % (sw, C_ + c, X_ + c) for c in range(2)]
            SC += ['v_add_f32 v%d, v%d, v%d' % (C_ + c, C_ + c, X_ + c) for c in range(2)]
        SC += cfma(LO, L32, C_, LO)
        SC += ['v_cmp_lt_u32 vcc, 31, v1\nv_cndmask_b32 v%d, v%d, v%d, vcc\nv_cndmask_b32 v%d, v%d, v%d, vcc' % (C_, C_, LO, C_ + 1, C_ + 1, LO + 1)]
        SC += cfma(EO, L16, C_, EO)
        SC += ['v_and_b32 v%d, 16, v1' % TR, 'v_cmp_ne_u32 vcc, 0, v%d\nv_cndmask_b32 v%d, v%d, v%d, vcc\nv_cndmask_b32 v%d, v%d, v%d, vcc' % (TR, C_, C_, EO, C_ + 1, C_ + 1, EO + 1)]
        SC += [srd_l(sUS, P['ws'], 5 << 20, WS_HT),
               's_mul_i32 s32, s%d, 40\ns_add_u32 s32, s32, s%d\ns_lshl_b32 s32, s32, 1\ns_and_b32 s33, s%d, 1\ns_add_u32 s32, s32, s33\n' % (sX_, sHo, sTT) +
               's_lshl_b32 s32, s32, 1\ns_lshr_b32 s33, s3, 2\ns_add_u32 s32, s32, s33\ns_lshl_b32 s%d, s32, 12' % sHo,
               'v_xor_b32 v%d, 0x80, v%d' % (vE, vL16)]
        for k in range(16):
            pr, pi = (C_, C_ + 1) if k == 0 else (ur(k - 1), ui(k - 1))
            SC += ['v_fmac_f32 v%d, v%d, v%d' % (ur(k), LR, pr), 'v_fmac_f32 v%d, v%d, v%d' % (ui(k), LR, pi),
                   'v_fma_f32 v%d, -v%d, v%d, v%d' % (ur(k), LR + 1, pi, ur(k)), 'v_fmac_f32 v%d, v%d, v%d' % (ui(k), LR + 1, pr)]
            if k in (8, 15):
                hh = 0 if k == 8 else 1
                for c, base in enumerate((ur(8 * hh), ui(8 * hh))):
                    SC += pack8(base, base)
                    SC += [vmi('buffer_store_dwordx4 %s, v%d, %s, s%d offen offset:%d sc1' % (vr(base, 4), vE if hh else vL16, sr(sUS, 4), sHo, c * 2048 + hh * 1024), 'ssm')]
        S.spread(SC, BK + R0[2], BK + int(os.environ.get('SE', 272)))
    else:
        T = 224
        sWid, sDbk, sU_ = sUx, sUb, sTT
        C0 = T; CP = T + 16; TT = 6
        vC = vTm
        SC = ['s_sub_u32 s32, s2, 160\ns_lshl_b32 s32, s32, 3\ns_add_u32 s%d, s32, s3' % sWid,
              srd_l(sES, P['ws'], 1600 * 1024, WS_CC), 's_cmp_lt_u32 s%d, 400\ns_cselect_b32 s%d, s%d, 0\ns_cselect_b32 s%d, s%d, 0' % (sWid, sES + 2, sES + 2, sWid, sWid),
              's_mul_i32 s%d, s%d, 6554\ns_lshr_b32 s%d, s%d, 16' % (sDbk, sWid, sDbk, sDbk), 's_mul_i32 s32, s%d, 10\ns_sub_u32 s%d, s%d, s32' % (sDbk, sU_, sWid),
              's_lshl_b32 s32, s%d, 7\nv_lshl_add_u32 v%d, v1, 1, s32' % (sU_, vC)]
        SC += [vmi('global_load_ushort v%d, v%d, %s' % (CP + p, vC, sr(P[k], 2))) for p, k in enumerate(('Lre', 'Lim', 'logdt'))]
        SC += ['v_and_b32 v%d, 15, v1\ns_lshl_b32 s33, s%d, 4\nv_add_u32 v%d, s33, v%d' % (vC, sDbk, vC, vC), 'v_mul_u32_u24 v%d, 1280, v%d' % (vC, vC),
               'v_lshrrev_b32 v%d, 4, v1\nv_lshl_add_u32 v%d, v%d, 5, v%d' % (TT, vC, TT, vC), 's_lshl_b32 s32, s%d, 7\nv_add_u32 v%d, s32, v%d' % (sU_, vC, vC)]
        for p, k in enumerate(('Cre', 'Cim')):
            for o in range(2): SC.append(vmi('global_load_dwordx4 %s, v%d, %s offset:%d' % (vr(C0 + 8 * p + 4 * o, 4), vC, sr(P[k], 2), 16 * o), 'cc'))
        S.spread(SC, 14, 44)
        E = CP + 3
        SC = [vmw('cc')] + ['v_lshlrev_b32 v%d, 16, v%d' % (CP + p, CP + p) for p in range(3)] + lam_params(E, CP, CP + 1, CP + 2)
        SC += ['v_exp_f32 v%d, v%d' % (E, E), 'v_cos_f32 v%d, v%d' % (E + 2, E + 1), 'v_sin_f32 v%d, v%d' % (E + 1, E + 1),
               'v_fma_f32 v%d, v%d, v%d, -1.0' % (E + 2, E, E + 2), 'v_mul_f32 v%d, v%d, v%d' % (E + 1, E, E + 1),
               'v_mul_f32 v%d, v%d, v%d' % (E + 3, CP, CP), 'v_fmac_f32 v%d, v%d, v%d' % (E + 3, CP + 1, CP + 1),
               'v_rcp_f32 v%d, v%d' % (E + 3, E + 3), 'v_add_f32 v%d, v%d, v%d' % (E + 3, E + 3, E + 3),
               'v_mul_f32 v%d, v%d, v%d' % (E + 4, E + 2, CP), 'v_fmac_f32 v%d, v%d, v%d' % (E + 4, E + 1, CP + 1),
               'v_mul_f32 v%d, v%d, v%d' % (E, E + 1, CP), 'v_fma_f32 v%d, -v%d, v%d, v%d' % (E, E + 2, CP + 1, E)]
        AR, NAR, NAI = CP, CP + 1, CP + 2
        SC += ['v_mul_f32 v%d, v%d, v%d' % (AR, E + 4, E + 3), 'v_mul_f32 v%d, -v%d, v%d' % (NAR, E + 4, E + 3), 'v_mul_f32 v%d, -v%d, v%d' % (NAI, E, E + 3)]
        SC += ['s_mul_i32 s32, s%d, 6554\ns_lshr_b32 s32, s32, 16\ns_mul_i32 s33, s32, 390\ns_add_u32 s33, s33, s%d\ns_mul_i32 s32, s%d, 40\ns_add_u32 s33, s33, s32\ns_lshl_b32 s%d, s33, 10' % (sDbk, sDbk, sU_, sWid)]
        OB = (T + 24, T + 28); X = TT
        for n in range(16):
            re = C0 + (n >> 1); im = re + 8
            y0 = X + 2 + (n & 1); y1 = X + 4 + (n & 1)
            if n & 1: SC += ['v_and_b32 v%d, 0xffff0000, v%d' % (X, re), 'v_and_b32 v%d, 0xffff0000, v%d' % (X + 1, im)]
            else: SC += ['v_lshlrev_b32 v%d, 16, v%d' % (X, re), 'v_lshlrev_b32 v%d, 16, v%d' % (X + 1, im)]
            D = ' row_newbcast:%d row_mask:0xf bank_mask:0xf' % n
            SC += ['v_mul_f32_dpp v%d, v%d, v%d' % (y0, AR, X) + D, 'v_mul_f32_dpp v%d, v%d, v%d' % (y1, NAR, X + 1) + D,
                   'v_fmac_f32_dpp v%d, v%d, v%d' % (y0, NAI, X + 1) + D, 'v_fmac_f32_dpp v%d, v%d, v%d' % (y1, NAI, X) + D]
            if n & 1:
                O = OB[(n >> 2) & 1]
                SC += [cvt(O + ((n >> 1) & 1), X + 2, X + 3), cvt(O + 2 + ((n >> 1) & 1), X + 4, X + 5)]
            if n & 3 == 3:
                SC.append(vmi('s_add_u32 s33, s%d, %d\nbuffer_store_dwordx4 %s, v%d, %s, s33 offen sc1' % (sWid, (n >> 2) * 10240, vr(O, 4), vL16, sr(sES, 4)), 'ssm'))
        S.spread(SC, 150, 370)
    for s in range(10):
        b = BQ + 32 * s
        for g in range(3):
            S.spread([rdQW(s, g + 1, q, hf) for q in range(4) for hf in range(2)], b + 8 * g, b + 8 * g + 6)
        if isU or s < 7: S.spread([dmaX(s + 3, i) for i in range(4)], b + 8, b + 24)
        else: S.spread([dmaY((0, 2, 3)[s - 7], i) for i in range(4)], b + 8, b + 24)
        if s == 9 and isU: break
        tags = [lambda s=s: tagQW[s + 1], lambda s=s: tagX[s + 1]] if s < 9 else [lambda: tagY[0]]
        S.add_post(b + 25, mkbar(tags, 32 + s))
        for q, p in enumerate((33, 41, 49) if s < 9 else (29,)): S.add_post(b + p, 's_setprio %d' % (2 - q))
        if s < 9: S.spread(qfirst(s + 1), b + 25, b + 31)
        if s + 4 < 10: S.spread([dmaQW(s + 4, 0), dmaQW(s + 4, 1)], b + 28, b + 36)
        if not isU and s == 7: S.spread([dmaY(1, i) for i in range(4)], b + 27, b + 39)
    aset = ['s_lshl_b32 s32, s%d, 20\ns_add_u32 s%d, s%d, s32\ns_addc_u32 s%d, s%d, 0\ns_and_b32 s%d, s%d, 0xffff' % (sH, sKV, P['ws'], sKV + 1, P['ws'] + 1, sKV + 1, sKV + 1),
            's_sub_u32 s32, 16, s%d\ns_lshl_b32 s%d, s32, 16\ns_mov_b32 s%d, 0x00020000\ns_mov_b32 s%d, s%d' % (sI, sKV + 2, sKV + 3, sLim, sKV + 2),
            's_lshl_b32 s32, s%d, 13\ns_add_u32 s%d, s%d, s32\ns_add_u32 s%d, s%d, s32' % (sH, sCtA, sCtA, sCtB, sCtB),
            's_lshr_b32 s32, s3, 1\ns_lshl_b32 s32, s32, 14\ns_and_b32 s33, s3, 1\ns_lshl_b32 s33, s33, 12\ns_add_u32 s32, s32, s33\nv_add_u32 v%d, s32, v%d' % (vKS0, vL16),
            's_lshr_b32 s32, s3, 2\ns_lshl_b32 s32, s32, 14\ns_and_b32 s33, s3, 3\ns_lshl_b32 s33, s33, 11\ns_add_u32 s32, s32, s33\nv_add_u32 v%d, s32, v%d' % (vKS, vL16),
            's_mov_b32 s%d, s%d\ns_add_u32 s%d, s%d, 0x8000' % (sKm0, sWl, sVm0, sWl), 's_mov_b32 s%d, 0x20000\ns_mov_b32 s%d, 0x12000' % (sKsrc, sVsrc),
            's_lshl_b32 s32, s%d, 1\ns_add_u32 s%d, s32, 2' % (sI, sJ1), 's_mov_b32 s%d, 0\ns_mov_b32 s%d, 0' % (sJ, sN), 's_mov_b32 s%d, %s' % (sThr, f32(2.0 ** 30)),
            's_cmp_eq_u32 s3, 0\ns_cselect_b32 s%d, 0x6003, 0' % sHook]
    S.spread(aset, BQ + 100, BQ + 133)
    pr = (BQ + 184, BQ + 212) if isU else (BY + 130, BY + 190)
    S.add_post(pr[0], vmi(rdy_load(vPf, vPub), 'rdy'))
    S.spread([vmw('rdy'), '\n'.join(rdy_calc(vPf)) + '\ns_add_u32 s32, s%d, s3\ns_cmp_eq_u32 s32, 0\ns_cbranch_scc1 f%s_kv\nf%s_kv_ret:' % (sRdy, role, role)], pr[1], pr[1] + 4)
    t = tail
    t.label('f%s_kv' % role); t('s_mov_b32 s100, %d' % SPIN); t.label('f%s_kv_l' % role); t('s_sleep 8')
    t(rdy_load(vPf, vPub)); t('s_waitcnt vmcnt(0)'); t.extend(rdy_calc(vPf)); t('s_cmp_lg_u32 s%d, 0' % sRdy); t('s_cbranch_scc1 f%s_kv_ret' % role)
    t('s_sub_u32 s100, s100, 1'); t('s_cmp_lg_u32 s100, 0'); t('s_cbranch_scc1 f%s_kv_l' % role); t('s_branch f%s_kv_ret' % role)
    def fin(g):
        o = []
        for qt in range(2):
            for h2 in range(2):
                tt = tile(qt, 2 * g + h2)
                o += ['v_mul_f32 v%d, %s, v%d' % (tt + r, f32(QSCALE), tt + r) for r in range(4)]
                o += [cvt(qf(g, qt) + 2 * h2 + r, tt + 2 * r, tt + 2 * r + 1) for r in range(2)]
        return o
    e = BQ + 288
    if isU:
        for g in range(2): S.spread(fin(g), e + 8 * g + 11, e + 8 * g + 19)
        S.spread(fin(2)[:12], e + 27, e + 32)
    else:
        S.spread(fin(0) + fin(1) + fin(2) + fin(3), BY + 4, BY + 76)
        allchk('fN_ht', ['v_and_b32 v%d, 31, v1\ns_mul_i32 s32, s%d, 25\ns_lshr_b32 s32, s32, 1\nv_min_u32 v%d, 12, v%d\nv_add_lshl_u32 v%d, v%d, s32, 5' % (vTm, sHL, vTm, vTm, vTm, vTm),
                         'v_min_u32 v%d, 19, v1\ns_lshl_b32 s32, s%d, 5\nv_add_lshl_u32 v%d, v%d, s32, 2' % (vPub, sX_, vPub, vPub), 'v_add_u32 v%d, 0x%x, v%d' % (vTm, CCF - XFL, vTm),
                         'v_cmp_lt_u32 vcc, 31, v1\nv_cndmask_b32 v%d, v%d, v%d, vcc' % (vPub, vPub, vTm), 'v_add_u32 v%d, 0x%x, v%d' % (vPub, XFL, vPub)], sDB, vTm, vPub, BQ + 170, BQ + 212)
        yset = ['s_movk_i32 s32, 10240\ns_cmp_lt_u32 s3, 4\ns_cselect_b32 s%d, 0x4000, s32\ns_cselect_b32 s%d, s%d, s%d' % (sYs, sYo, sX_, sHL),
                's_mul_i32 s%d, s%d, 40\ns_sub_u32 s32, s%d, 5\ns_mul_i32 s32, s32, 14\ns_add_u32 s%d, s%d, s32\ns_mul_i32 s%d, s%d, s%d' % (sYo, sYo, sI, sYo, sYo, sYo, sYo, sYs),
                's_mov_b32 s32, 0x%x\ns_cmp_lt_u32 s3, 4\ns_cselect_b32 s32, 0x%x, s32\ns_add_u32 s32, s32, s%d\ns_add_u32 s%d, s%d, s32\ns_addc_u32 s%d, s%d, 0\ns_and_b32 s%d, s%d, 0xffff' % (WS_CC, WS_HT, sYo, sY, P['ws'], sY + 1, P['ws'] + 1, sY + 1, sY + 1),
                's_mov_b32 s%d, s%d\ns_mov_b32 s%d, 0x00020000' % (sY + 2, sYs, sY + 3),
                's_and_b32 s32, s%d, 0x3fff\nv_add_u32 v%d, s32, v%d' % (sXl, vY, vL16),
                'v_and_b32 v8, 3, v1', 'v_lshrrev_b32 v9, 2, v1', 'v_lshrrev_b32 v10, 1, v8', 'v_lshlrev_b32 v11, 3, v10', 'v_xor_b32 v9, v9, v11', 'v_lshlrev_b32 v9, 4, v9', 'v_lshl_add_u32 v9, v10, 10, v9',
                'v_and_b32 v8, 1, v8', 'v_lshl_add_u32 v9, v8, 3, v9', 's_lshr_b32 s32, s3, 1\ns_lshl_b32 s32, s32, 12\nv_add_u32 v%d, s32, v9' % YA[0],
                'v_add_u32 v%d, 0x10000, v%d' % (YA[1], YA[0]), 'v_add_u32 v%d, 0x20000, v%d' % (YA[2], YA[0]),
                's_and_b32 s33, s3, 1\ns_mul_i32 s33, s33, 5120\ns_add_u32 s33, s33, 0x4000\nv_add_u32 v%d, s33, v%d' % (YB[0], vL16), 'v_add_u32 v%d, 0x10000, v%d' % (YB[1], YB[0]),
                srd_l(sES, P['ws'], 8 << 20, WS_B + PY0),
                's_lshl_b32 s32, s%d, 3\ns_add_u32 s32, s32, s3\ns_mul_i32 s32, s32, 3\ns_add_u32 s32, s32, s%d\ns_sub_u32 s32, s32, 5\ns_mul_i32 s%d, s32, 10240' % (sH, sI, sEo)]
        S.spread(yset, BQ + 136, BQ + 200)
        S.add_post(BQ + 230, 'v_add_u32 v%d, 0x20000, v%d' % (YB[2], YB[0]))
        S.spread([rdYA(0, 0, 0), rdYA(0, 0, 1), rdYB(0, 0)] + [rdYA(0, q, hf) for q in range(1, 4) for hf in range(2)] + [rdYB(0, c) for c in range(1, 5)], e + 25, e + 32)
        S.spread([dmaY(4, i) for i in range(4)], e + 27, e + 35)
        for n in range(14):
            y = BY + 20 * n
            S.add_post(y + 3, mkbar(([lambda n=n: tagY[n + 1]] if n < 13 else []) + ([lambda: tg['kv']] if n == 1 else []), 18 + n if n in (0, 1) else (28 + n - 11 if n > 10 else None)))
            if n == 1: S.add_post(y + 3, vmi(publish('kv', vPf)))
            for k, p in enumerate((8, 13, 18)): S.add_post(y + p, 's_setprio %d' % (2 - k))
            if n < 13:
                S.spread([rdYB(n + 1, 0)] + [rdYA(n + 1, q, hf) for q in range(4) for hf in range(2)], y + 3, y + 12)
                for c in range(1, 5): S.add_post(y + 4 * c + 3, rdYB(n + 1, c))
            D = []
            if n < 9: D = [dmaY(n + 5, i) for i in range(4)]
            if n in (10, 12, 13): D = [dmaX({10: 10, 12: 11, 13: 12}[n], i) for i in range(4)]
            for p, x in zip((5, 8, 11, 14), D): S.add_post(y + p, x)
        def pys(p): return pack8(YP(p), YP(p)) + [vmi('s_add_u32 s33, s%d, %d\nbuffer_store_dwordx4 %s, v%d, %s, s33 offen offset:%d sc1' % (sEo, (p >> 2) * 4096, vr(YP(p), 4), vL16, sr(sES, 4), (p & 3) * 1024))]
        y = BY + 260
        for c in range(3): S.spread(pys(2 * c) + pys(2 * c + 1), y + 4 * c + 7, y + 4 * c + 11)
    vm.wait_for(a, tagU[0] if isU else tagA[0]); a('s_barrier')
    if dbg: ts(a, 1)
    if isU: first = uaddr(0) + [rdU(0, ks, q) for ks in range(2) for q in range(6)]
    else: first = kvfirst
    for f in first: f(a) if callable(f) else a(f)
    S.emit(a, 0, BE)
    assert max(list(S.post) + list(S.pre)) < BE, (max(list(S.post) + list(S.pre)), BE)
    if isU: a.extend(fin(2)[12:]); a.extend(fin(3))
    else:
        for p in range(6, 10):
            for f in pys(p): f(a) if callable(f) else a(f)
    a(rdy_load(vFl, vPub)); vm.issue()
    vm.wait_for(a, tagX[10])
    return a.lines
```
